```python
import torch

def _softmax(x, axis=-1):
    return torch.softmax(x, dim=axis)

def _gelu(x):
    return torch.nn.functional.gelu(x, approximate='tanh')

def _silu(x):
    return torch.nn.functional.silu(x)

def _sigmoid(x):
    return torch.sigmoid(x)

def _layernorm(x, axis=-1, eps=1e-05):
    m = x.mean(dim=axis, keepdim=True)
    v = x.var(dim=axis, keepdim=True, unbiased=False)
    return (x - m) / torch.sqrt(v + eps)

def _scatter_add(tgt, idx, src, axis=0):
    return tgt.clone().index_add_(axis, idx, src)

def _segment_sum(src, seg, n):
    out = torch.zeros((n,) + src.shape[1:], dtype=src.dtype)
    return out.index_add_(0, seg, src)

def _pad(x, pw):
    flat = tuple((v for pair in reversed(pw) for v in pair))
    return torch.nn.functional.pad(x, flat)
kernel_name = 'adaLN_cond__sliding_block_cached__glu_gated_geglu__decode'

def setup_inputs():

    _w = lambda a: (lambda t: t.to(torch.bfloat16) if t.is_floating_point() else t)(torch.as_tensor(a))

    def _A_setup():
        B, Sq, D = (1, 1, 576)
        Hq, Hkv, Sk, Dh = (32, 16, 65536, 128)
        assert Hq % Hkv == 0, (Hq, Hkv)
        return {'x': _w((lambda *s: torch.randn(*s, dtype=torch.bfloat16) * 0.1)(B, Sq, D)), 'k_cache': _w((lambda *s: torch.randn(*s, dtype=torch.bfloat16) * 0.8)(B, Hkv, Sk, Dh)), 'v_cache': _w((lambda *s: torch.randn(*s, dtype=torch.bfloat16) * 3.2)(B, Hkv, Sk, Dh)), 'wq': _w((lambda *s: torch.randn(*s, dtype=torch.bfloat16) * 0.8)(D, Hq * Dh) * D ** (-0.5)), 'wo': _w((lambda *s: torch.randn(*s, dtype=torch.bfloat16) * 3.2)(Hq * Dh, D) * (Hq * Dh) ** (-0.5))}
    _A_in = _A_setup()

    def _B_setup():
        B, S, Dm, Df = (1, 1, 576, 4608)
        return {'x': _w((lambda *s: torch.randn(*s, dtype=torch.bfloat16) * 0.1)(B, S, Dm)), 'w_gate': _w((lambda *s: torch.randn(*s, dtype=torch.bfloat16) * 3.2)(Dm, Df) * Dm ** (-0.5)), 'w_up': _w((lambda *s: torch.randn(*s, dtype=torch.bfloat16) * 3.2)(Dm, Df) * Dm ** (-0.5)), 'w_down': _w((lambda *s: torch.randn(*s, dtype=torch.bfloat16) * 3.2)(Df, Dm) * Df ** (-0.5))}
    _B_in = _B_setup()
    return {'A_x': _A_in['x'], 'A_k_cache': _A_in['k_cache'], 'A_v_cache': _A_in['v_cache'], 'A_wq': _A_in['wq'], 'A_wo': _A_in['wo'], 'B_x': _B_in['x'], 'B_w_gate': _B_in['w_gate'], 'B_w_up': _B_in['w_up'], 'B_w_down': _B_in['w_down'], 'c': _w((lambda *s: torch.randn(*s, dtype=torch.bfloat16) * 0.8)(1, 576) * 8.0), 'w_mod': _w((lambda *s: torch.randn(*s, dtype=torch.bfloat16) * 0.8)(576, 6 * 576) * 576 ** (-0.5) * 8.0)}

def reference(A_x, A_k_cache, A_v_cache, A_wq, A_wo, B_x, B_w_gate, B_w_up, B_w_down, c, w_mod):

    def _A_ref(x, k_cache, v_cache, wq, wo):
        B, Sq, D = x.shape
        Hq, Dh = (32, 128)
        Hkv, Sk = (k_cache.shape[1], k_cache.shape[2])
        W = min(4096, max(256, Sk // 4))
        rep = Hq // Hkv
        q = (lambda x, *d: x.permute(*d))((x @ wq).reshape(B, Sq, Hq, Dh), 0, 2, 1, 3)
        k = (lambda x, n, axis: torch.repeat_interleave(x, n, dim=axis))(k_cache[:, :, Sk - W:, :], rep, axis=1)
        v = (lambda x, n, axis: torch.repeat_interleave(x, n, dim=axis))(v_cache[:, :, Sk - W:, :], rep, axis=1)
        scores = torch.einsum('bhqd,bhkd->bhqk', q, k) * Dh ** (-0.5)
        p = _softmax(scores, axis=-1)
        o = torch.einsum('bhqk,bhkd->bhqd', p, v)
        return (lambda x, *d: x.permute(*d))(o, 0, 2, 1, 3).reshape(B, Sq, Hq * Dh) @ wo

    def _B_ref(x, w_gate, w_up, w_down):
        g = torch.einsum('bsd,df->bsf', x, w_gate)
        u = torch.einsum('bsd,df->bsf', x, w_up)
        h = _gelu(g) * u
        return torch.einsum('bsf,fd->bsd', h, w_down)
    x = A_x
    mod = (_silu(c) @ w_mod).reshape(c.shape[0], 6, 1, -1)
    sa, ca, ga, sb, cb, gb = (mod[:, 0].clone(), mod[:, 1].clone(), mod[:, 2].clone(), mod[:, 3].clone(), mod[:, 4].clone(), mod[:, 5].clone())
    h = _layernorm(x, axis=-1) * (1 + ca) + sa
    x = x + ga * _A_ref(h, A_k_cache, A_v_cache, A_wq, A_wo)
    h = _layernorm(x, axis=-1) * (1 + cb) + sb
    x = x + gb * _B_ref(h, B_w_gate, B_w_up, B_w_down)
    return x
```

```python
NAME = "adaLN_cond__sliding_block_cached__glu_gated_geglu__decode"
def wrap(body, grid, block, lds=0, vgpr=256, sgpr=102, accum=None, header_extra=""):
    ref = open(f"cdna_kernels/{NAME}.s.ref").read()
    head = ref.split("; Override launch geometry")[0]
    if accum is None:
        accum = min(256, (vgpr + 3) // 4 * 4)
    return (head + header_extra + f"; @launch grid=({grid},1,1) block=({block},1,1) lds={lds}\n"
      + '.amdgcn_target "amdgcn-amd-amdhsa--gfx950"\n.text\n'
      + f".globl {NAME}_kernel\n.p2align 8\n.type {NAME}_kernel,@function\n{NAME}_kernel:\n"
      + body + "\ns_endpgm\n"
      + '.section .rodata,"a"\n.p2align 6\n'
      + f".amdhsa_kernel {NAME}_kernel\n  .amdhsa_next_free_vgpr {vgpr}\n  .amdhsa_next_free_sgpr {sgpr}\n  .amdhsa_accum_offset {accum}\n"
      + "  .amdhsa_group_segment_fixed_size 0\n  .amdhsa_kernarg_size 112\n  .amdhsa_user_sgpr_count 2\n  .amdhsa_user_sgpr_kernarg_segment_ptr 1\n  .amdhsa_system_sgpr_workgroup_id_x 1\n.end_amdhsa_kernel\n")
```

```python
import re

TRANS = ("v_exp_f32", "v_log_f32", "v_rcp_f32", "v_rsq_f32", "v_sqrt_f32", "v_sin_f32", "v_cos_f32")
BIG = 1000


def regs_of(tok):
    tok = tok.strip()
    if tok.startswith("-"):
        tok = tok[1:]
    if tok.startswith("abs(") or tok.startswith("|"):
        tok = tok.replace("abs(", "").replace(")", "").replace("|", "")
    m = re.fullmatch(r"([vs])(\d+)", tok)
    if m:
        return [(m.group(1), int(m.group(2)))]
    m = re.fullmatch(r"([vs])\[(\d+):(\d+)\]", tok)
    if m:
        return [(m.group(1), i) for i in range(int(m.group(2)), int(m.group(3)) + 1)]
    if tok == "vcc":
        return [("s", 106), ("s", 107)]
    if tok == "vcc_lo":
        return [("s", 106)]
    if tok == "vcc_hi":
        return [("s", 107)]
    return []


class Em:
    def __init__(self):
        self.lines = []
        self.st = self._new()
        self.snap = {}
        self.dead = False
        self.maxv = 0
        self.maxs = 0
        self.nnops = 0

    @staticmethod
    def _new():
        return {k: {} for k in ("valu", "trans", "mfma", "sg", "stw", "mc", "dot")}

    def _age(self, n):
        for d in self.st.values():
            for r in list(d):
                v = d[r]
                if isinstance(v, tuple):
                    nv = (v[0] + n,) + v[1:]
                    if nv[0] > 24:
                        del d[r]
                    else:
                        d[r] = nv
                else:
                    if v + n > 24:
                        del d[r]
                    else:
                        d[r] = v + n

    def _copy(self):
        return {k: dict(d) for k, d in self.st.items()}

    def raw(self, text):
        self.lines.append(text)

    def c(self, text):
        self.lines.append("    ; " + text)

    def label(self, name):
        snaps = self.snap.pop(name, [])
        if self.dead:
            self.st = self._new()
            self.dead = False
        for s in snaps:
            for k, d in s.items():
                for r, v in d.items():
                    cur = self.st[k].get(r)
                    a = v[0] if isinstance(v, tuple) else v
                    if cur is None or a < (cur[0] if isinstance(cur, tuple) else cur):
                        self.st[k][r] = v
        self.lines.append(name + ":")

    def nop(self, n):
        while n > 0:
            k = min(n, 16)
            self.lines.append(f"    s_nop {k-1}")
            self._age(k)
            self.nnops += 1
            n -= k

    def __call__(self, text):
        for t in text.split("\n"):
            t = t.strip()
            if t:
                self._one(t)

    def _one(self, text):
        code = text.split(";")[0].strip()
        sp = code.split(None, 1)
        op = sp[0]
        rest = sp[1] if len(sp) > 1 else ""
        toks = []
        cur = ""
        depth = 0
        for ch in rest:
            if ch == "[":
                depth += 1
            if ch == "]":
                depth -= 1
            if ch == "," and depth == 0:
                toks.append(cur)
                cur = ""
            else:
                cur += ch
        if cur.strip():
            toks.append(cur)
        mods = ""
        if toks:
            last = toks[-1].strip().split(None, 1)
            toks[-1] = last[0]
            mods = last[1] if len(last) > 1 else ""
        toks = [t.strip() for t in toks]
        R = [regs_of(t) for t in toks]
        for rl in R:
            for k, n in rl:
                if k == "v":
                    self.maxv = max(self.maxv, n)
                elif n < 102:
                    self.maxs = max(self.maxs, n)
        flat = lambda ls: [r for l in ls for r in l]
        is_v = op.startswith("v_")
        is_mfma = op.startswith("v_mfma")
        is_dpp = "_dpp" in op or "row_" in mods or "quad_perm" in mods
        is_perml = op.startswith("v_permlane")
        is_rl = op.startswith("v_readlane") or op.startswith("v_readfirstlane")
        is_dot = op.startswith("v_dot")
        is_vmem = op.startswith(("buffer_", "global_"))
        is_ds = op.startswith("ds_")
        is_trans = op.replace("_e32", "").replace("_e64", "") in TRANS
        dst, src = [], []
        if is_v:
            if is_perml:
                dst = flat(R[:2]); src = flat(R[:2])
            elif op.startswith(("v_add_co", "v_sub_co", "v_addc_co", "v_subb_co", "v_subrev_co")):
                dst = flat(R[:2]); src = flat(R[2:])
            else:
                dst = R[0]; src = flat(R[1:])
                if op.startswith(("v_fmac", "v_dot2c", "v_writelane")) or is_dpp:
                    src = src + R[0]
        elif is_ds:
            if op.startswith(("ds_read", "ds_bpermute", "ds_swizzle", "ds_permute")):
                dst = R[0]; src = flat(R[1:])
            else:
                src = flat(R)
        elif is_vmem:
            if "_load" in op:
                dst = R[0]; src = flat(R[1:])
            else:
                src = flat(R)
        st = self.st
        need = 0

        def req(kind, regs, dist):
            nonlocal need
            for r in regs:
                v = st[kind].get(r)
                if v is not None:
                    a = v[0] if isinstance(v, tuple) else v
                    need = max(need, dist - a)

        vsrc = [r for r in src if r[0] == "v"]
        ssrc = [r for r in src if r[0] == "s"]
        vdst = [r for r in dst if r[0] == "v"]
        if is_mfma:
            req("valu", vsrc, 2)
            req("dot", vsrc, 3)
            req("mfma", flat(R[1:3]), 8)
            cregs = R[3] if len(R) > 3 else []
            for r in cregs:
                v = st["mfma"].get(r)
                if v is not None and v[1] != tuple(cregs):
                    need = max(need, 6 - v[0])
            for r in vdst:
                v = st["mfma"].get(r)
                if v is not None and r not in cregs:
                    need = max(need, 8 - v[0])
        elif is_v:
            req("mfma", vsrc + vdst, 8)
            if is_dpp:
                req("valu", [r for r in R[1] if r[0] == "v"], 2)
            if is_perml:
                req("valu", vsrc, 2)
            if is_rl:
                req("valu", vsrc, 1)
                req("sg", ssrc, 4)
            if op.startswith("v_writelane"):
                req("sg", ssrc, 4)
            if not is_trans:
                req("trans", vsrc, 1)
            req("sg", ssrc, 2)
            if op.startswith("v_cndmask") and len(toks) == 3:
                req("sg", [("s", 106), ("s", 107)], 2)
            req("stw", vdst, 2)
            req("mc", vdst, 3)
            if is_dot:
                for r in vsrc + vdst:
                    v = st["dot"].get(r)
                    if v is not None:
                        if v[1] == op and r in (R[3] if len(R) > 3 else []) and r not in flat(R[1:3]):
                            continue
                        need = max(need, 3 - v[0])
            else:
                req("dot", vsrc + vdst, 3)
        elif is_vmem or is_ds:
            req("mfma", vsrc + vdst, 8)
            req("dot", vsrc, 3)
            req("trans", vsrc, 1)
            if is_vmem:
                req("sg", ssrc, 5)
            req("stw", vdst, 1)
        if need > 0:
            self.nop(need)
        self.lines.append("    " + text)
        n = 1
        if op == "s_nop":
            n = int(toks[0], 0) + 1
        self._age(n)
        if is_mfma:
            for r in vdst:
                st["mfma"][r] = (0, tuple(vdst))
                st["valu"].pop(r, None)
            for r in (R[3] if len(R) > 3 else []):
                st["mc"][r] = 0
        elif is_v:
            for r in dst:
                if r[0] == "v":
                    st["valu"][r] = 0
                    st["mfma"].pop(r, None)
                    if is_trans:
                        st["trans"][r] = 0
                    else:
                        st["trans"].pop(r, None)
                    if is_dot:
                        st["dot"][r] = (0, op)
                    else:
                        st["dot"].pop(r, None)
                else:
                    st["sg"][r] = 0
        elif is_vmem and "_store" in op and ("x3" in op or "x4" in op):
            data = R[0] if op.startswith("buffer_") else R[1]
            for r in data:
                st["stw"][r] = 0
        elif op.startswith("s_") and R and not op.startswith(("s_cmp", "s_cbranch", "s_branch", "s_waitcnt", "s_bitcmp")):
            for r in R[0]:
                st["sg"].pop(r, None)
        if op.startswith("s_cbranch") or op == "s_branch":
            self.snap.setdefault(toks[0], []).append(self._copy())
            if op == "s_branch":
                self.dead = True
        if op == "s_endpgm":
            self.dead = True

    def text(self):
        return "\n".join(self.lines)
```

```python
import sys
from emit import Em
from asmgen import wrap, NAME

P1 = 0x1000
P2 = 0x10000
P3 = 0x60000
P4 = 0x70000
P5 = 0xC0000
P6 = 0xC8000
P7 = 0xD0000
P8 = 0xE0000
STAMP = 0x100000
WS_BYTES = 0x200000

L_XV = 0x0000
L_H32 = 0x2C00
L_ACC1 = 0x1200
L_ACC2 = 0x1300
L_LNS = 0x1400
L_ACCO = 0x1800
L_ST = 0x1C00
L_X1 = 0x2000
LDS_BYTES = 0x3000

sX, sJ, sW, sR, sSP = "s3", "s4", "s5", "s6", "s7"
WS, SK, SV, SW1, SW2, SS1, SS2 = "s[44:47]", "s[48:51]", "s[52:55]", "s[56:59]", "s[60:63]", "s[64:67]", "s[68:71]"
sM10, sHI, s4K, sSEL, sL2E = "s72", "s73", "s74", "s75", "s76"
mVAL, m36, mJ8, mT2, mODD, mHI = "s[80:81]", "s[82:83]", "s[84:85]", "s[86:87]", "s[88:89]", "s[90:91]"
vL, vL16 = "v0", "v1"
MK = [2, 3, 4, 5]
TG = [6, 7, 8, 9]
vTa0, vTa1 = "v10", "v11"
vXR, vXW0, vXW1 = "v12", "v13", "v14"
vST = "v15"
RK, RV, RW1, RW2 = 64, 96, 128, 164
vTb0, vTb1, vTs, vBO, vAA = "v200", "v201", "v202", "v203", "v204"
vE0, vE1 = 206, 207
SPIN = 400000


def v(n, k=1):
    return f"v{n}" if k == 1 else f"v[{n}:{n+k-1}]"


class Gen:
    def __init__(self, stamps=False, st_local="sc1", n_early_gu=3, n_early_wd=4, prefetch=True):
        self.e = Em()
        self.stamps = stamps
        self.st_local = st_local
        self.n_early_gu = n_early_gu
        self.n_early_wd = n_early_wd
        self.prefetch = prefetch
        self.uid = 0

    def lab(self, p):
        self.uid += 1
        return f"L_{p}{self.uid}"

    def stamp(self, k):
        if self.stamps:
            e = self.e
            e("s_memrealtime s[92:93]")
            e("s_waitcnt lgkmcnt(0)")
            e(f"v_writelane_b32 {vST}, s92, {k}")

    def srd(self, srd, lo, hi, nbytes):
        b = int(srd[2:].split(":")[0])
        e = self.e
        e(f"s_mov_b32 s{b}, {lo}")
        e(f"s_mov_b32 s{b+1}, {hi}")
        e(f"s_mov_b32 s{b+2}, {nbytes}")
        e(f"s_mov_b32 s{b+3}, 0x20000")

    def wvoff(self, dst, stride):
        e = self.e
        e(f"v_lshrrev_b32 v16, 3, {vL}")
        e(f"v_mul_u32_u24 v16, {stride}, v16")
        e(f"v_and_b32 v17, 0x70, {vL16}")
        e(f"v_add_u32 {dst}, v16, v17")

    def wloads(self, base, voff, srd, soff, stride, t0, t1):
        e = self.e
        for t in range(t0, t1):
            e(f"buffer_load_dwordx4 {v(base+4*t,4)}, {voff}, {srd}, {soff} offen nt")
            e(f"s_add_u32 {soff}, {soff}, {8*stride}")

    def rb2(self, a, b, t):
        e = self.e
        e(f"v_cvt_pk_bf16_f32 {t}, {a}, {b}")
        e(f"v_lshlrev_b32 {a}, 16, {t}")
        e(f"v_and_b32 {b}, {sHI}, {t}")

    def rb1(self, a):
        e = self.e
        e(f"v_cvt_pk_bf16_f32 {a}, {a}, {a}")
        e(f"v_and_b32 {a}, {sHI}, {a}")

    def xv_read(self, dst, T, addr=vXR, off=0):
        e = self.e
        e(f"ds_read_b128 {v(dst,4)}, {addr} offset:{off}")
        if T > 4:
            e(f"ds_read_b128 {v(dst+4,4)}, {addr} offset:{off+16}")
        if T > 8:
            e(f"ds_read_b32 {v(dst+8)}, {addr} offset:{off+32}")

    def core(self, X, W, T, D, A, vm_after=None):
        e = self.e
        for t in range(T):
            a = A + 4 * (t & 1)
            for k in range(4):
                e(f"v_and_b32 {v(a+k)}, {v(X+t)}, {v(MK[k])}")
            if vm_after is not None:
                e(f"s_waitcnt vmcnt({T-1-t+vm_after})")
            c = "0" if t == 0 else v(D, 4)
            e(f"v_mfma_f32_16x16x32_bf16 {v(D,4)}, {v(a,4)}, {v(W+4*t,4)}, {c}")

    def bsum_store(self, D, soff, flag):
        e = self.e
        e(f"v_permlane32_swap_b32 {v(D)}, {v(D+2)}")
        e(f"v_permlane32_swap_b32 {v(D+1)}, {v(D+3)}")
        e(f"v_add_f32_dpp {v(D)}, {v(D+2)}, {v(D)} row_ror:8 row_mask:0xf bank_mask:0xf")
        e(f"v_add_f32_dpp {v(D+1)}, {v(D+3)}, {v(D+1)} row_ror:8 row_mask:0xf bank_mask:0xf")
        e(f"v_bfi_b32 {v(D)}, {sM10}, {vTb0}, {v(D)}")
        e(f"v_bfi_b32 {v(D+1)}, {sM10}, {vTb1}, {v(D+1)}")
        e(f"s_mov_b64 exec, {mJ8}")
        e(f"buffer_store_dwordx2 {v(D,2)}, {vBO}, {WS}, {soff} offen {flag}")
        e("s_mov_b64 exec, -1")

    def acc_add(self, D, acc):
        e = self.e
        e(f"s_mov_b64 exec, {mVAL}")
        for r in range(4):
            e(f"ds_add_f32 {vAA}, {v(D+r)} offset:{acc+64*r}")
        e("s_mov_b64 exec, -1")
        e("s_waitcnt lgkmcnt(0)")
        e("s_barrier")

    def acc_publish(self, acc, soff, flag, round_bf16, D=16):
        e = self.e
        skip = self.lab("ap")
        e(f"s_cmp_lg_u32 {sW}, 0")
        e(f"s_cbranch_scc1 {skip}")
        e(f"v_lshlrev_b32 v22, 2, {vL}")
        e("s_mov_b64 exec, 0xffff")
        e(f"ds_read2_b32 {v(D,2)}, v22 offset0:{acc//4} offset1:{acc//4+16}") if acc // 4 + 48 < 256 else None
        if acc // 4 + 48 >= 256:
            e(f"v_add_u32 v22, {acc}, v22")
            e(f"ds_read2_b32 {v(D,2)}, v22 offset0:0 offset1:16")
            e(f"ds_read2_b32 {v(D+2,2)}, v22 offset0:32 offset1:48")
        else:
            e(f"ds_read2_b32 {v(D+2,2)}, v22 offset0:{acc//4+32} offset1:{acc//4+48}")
        e(f"v_and_b32 v23, 7, {vL}")
        e(f"v_lshlrev_b32 v23, 5, v23")
        e(f"v_lshrrev_b32 v24, 3, {vL}")
        e(f"v_lshl_add_u32 v23, v24, 4, v23")
        e("s_waitcnt lgkmcnt(0)")
        if round_bf16:
            self.rb2(v(D), v(D+1), "v24")
            self.rb2(v(D+2), v(D+3), "v25")
        for r in range(4):
            e(f"v_bfi_b32 {v(D+r)}, {sM10}, {v(TG[r])}, {v(D+r)}")
        e(f"buffer_store_dwordx4 {v(D,4)}, v23, {WS}, {soff} offen {flag}")
        e("s_mov_b64 exec, -1")
        e.label(skip)

    def poll(self, issue, checks, acc="v21"):
        e = self.e
        top = self.lab("poll")
        e(f"s_mov_b32 {sSP}, 0")
        e.label(top)
        e(f"s_add_u32 {sSP}, {sSP}, 1")
        e(f"s_cmp_gt_u32 {sSP}, {SPIN}")
        e("s_cbranch_scc1 L_end")
        issue()
        e(f"v_mov_b32 {acc}, 0")
        e("s_waitcnt vmcnt(0)")
        for mask, lst in checks:
            if mask:
                e(f"s_mov_b64 exec, {mask}")
            for r, t in lst:
                e(f"v_bitop3_b32 {acc}, {r}, {t}, {acc} bitop3:0xbe")
            if mask:
                e("s_mov_b64 exec, -1")
        e(f"v_and_b32 {acc}, {sM10}, {acc}")
        e(f"v_cmp_ne_u32 vcc, 0, {acc}")
        e(f"s_cbranch_vccnz {top}")

    def g4(self, base):
        return [(v(base + r), v(TG[r])) for r in range(4)]

    def reduce4(self, r):
        e = self.e
        e(f"v_permlane32_swap_b32 {v(r)}, {v(r+2)}")
        e(f"v_permlane32_swap_b32 {v(r+1)}, {v(r+3)}")
        e(f"v_add_f32 {v(r)}, {v(r)}, {v(r+2)}")
        e(f"v_add_f32 {v(r+1)}, {v(r+1)}, {v(r+3)}")
        e(f"v_permlane16_swap_b32 {v(r)}, {v(r+1)}")
        e(f"v_add_f32 {v(r)}, {v(r)}, {v(r+1)}")

    def ln_finish(self, S1, S2, mb, rinv):
        e = self.e
        e(f"v_mul_f32 {S1}, 0x3ae38e39, {S1}")
        e(f"v_mul_f32 {S2}, 0x3ae38e39, {S2}")
        e(f"v_fma_f32 {S2}, -{S1}, {S1}, {S2}")
        e(f"v_max_f32 {S2}, 0, {S2}")
        e(f"v_cvt_pk_bf16_f32 {rinv}, {S1}, {S2}")
        e(f"v_lshlrev_b32 {mb}, 16, {rinv}")
        e(f"v_and_b32 {S2}, {sHI}, {rinv}")
        e(f"v_add_f32 {S2}, 0x3727c5ac, {S2}")
        self.rb1(S2)
        e(f"v_sqrt_f32 {S2}, {S2}")
        self.rb1(S2)
        e(f"v_rcp_f32 {rinv}, {S2}")

    def silu_rows(self, rowbase_s):
        e = self.e
        e(f"v_lshlrev_b32 v31, 16, v30")
        e(f"v_and_b32 v32, {sHI}, v30")
        for a, t in (("v31", "v33"), ("v32", "v34")):
            e(f"v_mul_f32 {t}, 0xbfb8aa3b, {a}")
        e("v_exp_f32 v33, v33")
        e("v_exp_f32 v34, v34")
        e("v_add_f32 v33, 1.0, v33")
        e("v_add_f32 v34, 1.0, v34")
        e("v_rcp_f32 v33, v33")
        e("v_rcp_f32 v34, v34")
        e("v_mul_f32 v31, v31, v33")
        e("v_mul_f32 v32, v32, v34")
        self.xv_write_pair("v31", "v32")

    def xv_write_pair(self, a, b):
        e = self.e
        e(f"v_cvt_pk_bf16_f32 {a}, {a}, {a}")
        e(f"v_cvt_pk_bf16_f32 {b}, {b}, {b}")
        e(f"s_mov_b64 exec, {m36}")
        e(f"ds_write_b32 {vXW0}, {a}")
        e(f"ds_write_b32 {vXW1}, {b}")
        e("s_mov_b64 exec, -1")
        e("s_waitcnt lgkmcnt(0)")

    def consts(self):
        e = self.e
        e.c("constants")
        e(f"s_mov_b32 {sSEL}, 0x07060302")
        e(f"s_mov_b32 {sL2E}, 0x3fb8aa3b")
        e("s_mov_b32 s80, 0x00ff00ff"); e("s_mov_b32 s81, 0xff00ff00")
        e("s_mov_b32 s82, -1"); e("s_mov_b32 s83, 15")
        e("s_mov_b32 s84, 0x00ff00ff"); e("s_mov_b32 s85, 0x00ff00ff")
        e("s_mov_b32 s86, 0x0f0f0f0f"); e("s_mov_b32 s87, 0x0f0f0f0f")
        e("s_mov_b32 s88, 0xaaaaaaaa"); e("s_mov_b32 s89, 0xaaaaaaaa")
        e("s_mov_b32 s90, 0"); e("s_mov_b32 s91, -1")
        e(f"v_mov_b32 v16, 0xffff")
        e(f"v_mov_b32 v17, {sHI}")
        e(f"v_cndmask_b32 v16, v16, v17, {mODD}")
        e(f"v_bfe_u32 v17, {vL}, 1, 2")
        for k in range(4):
            e(f"v_cmp_eq_u32 vcc, {k}, v17")
            e(f"v_cndmask_b32 {v(MK[k])}, 0, v16, vcc")
        e(f"s_lshl_b32 s8, {sW}, 9")
        e(f"v_lshrrev_b32 v16, 3, {vL}")
        e(f"v_mul_u32_u24 v16, 48, v16")
        e(f"v_add_u32 {vXR}, s8, v16")
        e(f"v_and_b32 v16, 3, {vL}")
        e(f"v_mul_u32_u24 v16, 96, v16")
        e(f"v_and_b32 v17, 0x3c, {vL}")
        e(f"v_add3_u32 {vXW0}, v16, v17, s8")
        e(f"v_add_u32 {vXW1}, 48, {vXW0}")
        e(f"v_and_b32 v16, 15, {vL}")
        e(f"v_lshlrev_b32 v16, 5, v16")
        e(f"v_and_b32 v17, 16, {vL}")
        e(f"v_lshrrev_b32 v18, 5, {vL}")
        e(f"v_lshlrev_b32 v18, 3, v18")
        e(f"v_add3_u32 {vBO}, v16, v17, v18")
        e(f"v_and_b32 v16, 7, {vL}")
        e(f"v_lshlrev_b32 v16, 2, v16")
        e(f"v_lshl_add_u32 {vAA}, v17, 1, v16")
        e(f"v_mov_b32 v16, 0"); e(f"v_mov_b32 v17, 0"); e(f"v_mov_b32 v18, 0"); e(f"v_mov_b32 v19, 0")
        sk = self.lab("z")
        e(f"s_cmp_gt_u32 {sW}, 3")
        e(f"s_cbranch_scc1 {sk}")
        e(f"s_lshl_b32 s8, {sW}, 10")
        e(f"v_add_u32 v20, s8, {vL16}")
        e(f"s_cmp_eq_u32 {sW}, 3")
        e(f"s_cselect_b32 s8, 0xff800000, 0")
        e(f"v_mov_b32 v16, s8")
        e(f"v_mov_b32 v18, s8")
        e(f"ds_write_b128 v20, v[16:19] offset:{0x1000}")
        e.label(sk)

    def tags(self):
        e = self.e
        e.c("tags from epoch+1")
        e(f"v_add_co_u32 {v(vE0)}, vcc, 1, {v(vE0)}")
        e(f"v_addc_co_u32 {v(vE1)}, vcc, 0, {v(vE1)}, vcc")
        e(f"v_and_b32 {v(TG[0])}, {sM10}, {v(vE0)}")
        e(f"v_bfe_u32 {v(TG[1])}, {v(vE0)}, 10, 10")
        e(f"v_bfe_u32 {v(TG[2])}, {v(vE0)}, 20, 10")
        e(f"v_alignbit_b32 {v(TG[3])}, {v(vE1)}, {v(vE0)}, 30")
        e(f"v_and_b32 {v(TG[3])}, {sM10}, {v(TG[3])}")
        e(f"v_cndmask_b32 {vTa0}, {v(TG[0])}, {v(TG[2])}, {mODD}")
        e(f"v_cndmask_b32 {vTa1}, {v(TG[1])}, {v(TG[3])}, {mODD}")
        e(f"v_cndmask_b32 {vTb0}, {v(TG[0])}, {v(TG[2])}, {mHI}")
        e(f"v_cndmask_b32 {vTb1}, {v(TG[1])}, {v(TG[3])}, {mHI}")
        e(f"v_and_b32 v16, 16, {vL}")
        e(f"v_cmp_ne_u32 vcc, 0, v16")
        e(f"v_cndmask_b32 {vTs}, {vTb0}, {vTb1}, vcc")

    def attention(self, early):
        e = self.e
        e.c("==== attention ====")
        e(f"s_lshl_b32 s8, {sW}, 13")
        e(f"v_and_b32 v16, 15, {vL}")
        e(f"v_lshlrev_b32 v16, 6, v16")
        e(f"v_and_b32 v17, 0x30, {vL}")
        e(f"v_add3_u32 v26, v16, v17, s8")
        e(f"v_add_u32 v27, s8, {vL16}")
        for t in range(8):
            so = "0" if t < 4 else s4K
            e(f"buffer_load_dwordx4 {v(RK+4*t,4)}, v26, {SK}, {so} offen offset:{(t&3)*1024} nt")
        e(f"s_lshl_b32 s9, {sX}, 11")
        e(f"s_lshr_b32 s10, {sJ}, 4")
        e(f"s_lshl_b32 s10, s10, 10")
        e(f"s_add_u32 s9, s9, s10")
        e(f"s_add_u32 s9, s9, {P3}")
        e(f"v_and_b32 v16, 8, {vL}")
        e(f"v_lshlrev_b32 v16, 6, v16")
        e(f"v_and_b32 v18, 3, {vL}")
        e(f"v_lshlrev_b32 v18, 7, v18")
        e(f"v_lshlrev_b32 v17, 1, v17")
        e(f"v_add3_u32 v28, v16, v17, v18")

        def issue():
            e(f"buffer_load_dwordx4 v[32:35], v28, {WS}, s9 offen sc1")
            e(f"buffer_load_dwordx4 v[36:39], v28, {WS}, s9 offen offset:16 sc1")
        self.poll(issue, [(None, self.g4(32) + self.g4(36))])
        self.stamp(5)
        for t in range(8):
            so = "0" if t < 4 else s4K
            e(f"buffer_load_dwordx4 {v(RV+4*t,4)}, v27, {SV}, {so} offen offset:{(t&3)*1024} nt")
        for k in range(4):
            e(f"v_perm_b32 {v(32+k)}, {v(33+2*k)}, {v(32+2*k)}, {sSEL}")
        for k in range(4):
            e(f"v_cndmask_b32 {v(36+k)}, {v(32+k)}, 0, {mT2}")
        for k in range(4):
            e(f"v_cndmask_b32 {v(32+k)}, 0, {v(32+k)}, {mT2}")
        for u in range(4):
            e(f"v_mfma_f32_16x16x32_bf16 {v(40+4*u,4)}, {v(RK+8*u,4)}, v[32:35], 0")
        for u in range(4):
            e(f"v_mfma_f32_16x16x32_bf16 {v(40+4*u,4)}, {v(RK+8*u+4,4)}, v[36:39], {v(40+4*u,4)}")
        e(f"v_and_b32 v29, 8, {vL}")
        for u in range(4):
            e(f"v_mov_b32_dpp {v(56+u)}, {v(40+4*u)} quad_perm:[0,0,0,0] row_mask:0xf bank_mask:0xf")
        for i in range(1, 4):
            for u in range(4):
                e(f"v_add_f32_dpp {v(56+u)}, {v(40+4*u+i)}, {v(56+u)} quad_perm:[{i},{i},{i},{i}] row_mask:0xf bank_mask:0xf")
        self.rb2("v56", "v57", "v60")
        self.rb2("v58", "v59", "v61")
        for u in range(4):
            e(f"v_mul_f32 {v(56+u)}, 0x3db504f3, {v(56+u)}")
        self.rb2("v56", "v57", "v60")
        self.rb2("v58", "v59", "v61")
        e("v_max3_f32 v60, v56, v57, v58")
        e("v_max_f32 v60, v60, v59")
        e("s_mov_b32 s10, 0x11111111"); e("s_mov_b32 s11, 0x11111111")
        e("s_mov_b64 exec, s[10:11]")
        e(f"ds_max_f32 v29, v60 offset:{L_ST}")
        e("s_mov_b64 exec, -1")
        e("s_waitcnt lgkmcnt(0)")
        e("s_barrier")
        e(f"ds_read_b32 v60, v29 offset:{L_ST}")
        n_early = early()
        e("s_waitcnt lgkmcnt(0)")
        for u in range(4):
            e(f"v_sub_f32 {v(56+u)}, {v(56+u)}, v60")
        for u in range(4):
            e(f"v_mul_f32 {v(56+u)}, {sL2E}, {v(56+u)}")
        for u in range(4):
            e(f"v_exp_f32 {v(56+u)}, {v(56+u)}")
        for u in range(4):
            e(f"v_cvt_pk_bf16_f32 {v(56+u)}, {v(56+u)}, {v(56+u)}")
        for u in range(4):
            e(f"v_and_b32 {v(40+u)}, {sHI}, {v(56+u)}")
        e("v_add_f32 v40, v40, v41")
        e("v_add_f32 v42, v42, v43")
        e("v_add_f32 v40, v40, v42")
        e("s_mov_b64 exec, s[10:11]")
        e(f"ds_add_f32 v29, v40 offset:{L_ST+4}")
        e("s_mov_b64 exec, -1")
        dp = "row_mask:0xf bank_mask:0xf bound_ctrl:0"
        for t in range(8):
            p = v(56 + (t >> 1))
            a = RK + 4 * t
            for k in range(4):
                need_shift = (k >= 2) if (t & 1) == 0 else (k < 2)
                if need_shift:
                    sh = "row_shr:4" if (t & 1) == 0 else "row_shl:4"
                    e(f"v_and_b32_dpp {v(a+k)}, {p}, {v(MK[k])} {sh} {dp}")
                else:
                    e(f"v_and_b32 {v(a+k)}, {p}, {v(MK[k])}")
        e(f"v_lshlrev_b32 v29, 2, {vL}")
        self.stamp(6)
        for t in range(8):
            e(f"s_waitcnt vmcnt({7-t+n_early})")
            c = "0" if t == 0 else "v[40:43]"
            e(f"v_mfma_f32_16x16x32_bf16 v[40:43], {v(RK+4*t,4)}, {v(RV+4*t,4)}, {c}")
        self.stamp(7)
        for r in range(4):
            e(f"ds_add_f32 v29, {v(40+r)} offset:{L_ACCO+256*r}")
        e("s_waitcnt lgkmcnt(0)")
        e("s_barrier")
        sk = self.lab("p4")
        e(f"s_cmp_lg_u32 {sW}, 0")
        e(f"s_cbranch_scc1 {sk}")
        e(f"ds_read2st64_b32 v[40:41], v29 offset0:{L_ACCO//256} offset1:{L_ACCO//256+1}")
        e(f"ds_read2st64_b32 v[42:43], v29 offset0:{L_ACCO//256+2} offset1:{L_ACCO//256+3}")
        e(f"v_mov_b32 v16, 0")
        e(f"ds_read_b128 v[44:47], v16 offset:{L_ST}")
        e(f"v_and_b32 v16, 15, {vL}")
        e(f"v_lshlrev_b32 v16, 5, v16")
        e(f"v_and_b32 v17, 16, {vL}")
        e(f"v_and_b32 v18, 32, {vL}")
        e(f"v_lshlrev_b32 v18, 4, v18")
        e(f"v_add3_u32 v16, v16, v17, v18")
        e(f"s_lshl_b32 s8, {sX}, 5")
        e(f"s_add_u32 s8, s8, {sJ}")
        e(f"s_mul_i32 s8, s8, 1152")
        e(f"s_add_u32 s8, s8, {P4}")
        e("s_waitcnt lgkmcnt(0)")
        for r in range(4):
            e(f"v_bfi_b32 {v(40+r)}, {sM10}, {v(TG[r])}, {v(40+r)}")
        e(f"buffer_store_dwordx4 v[40:43], v16, {WS}, s8 offen {self.st_local}")
        for r in range(4):
            e(f"v_bfi_b32 {v(44+r)}, {sM10}, {v(TG[r])}, {v(44+r)}")
        e("s_mov_b64 exec, 1")
        e(f"buffer_store_dwordx4 v[44:47], off, {WS}, s8 offset:1024 {self.st_local}")
        e("s_mov_b64 exec, -1")
        e.label(sk)
        self.stamp(8)

    def build(self):
        e = self.e
        e("s_cmp_ge_u32 s2, 256")
        e("s_cbranch_scc1 L_end")
        e("s_load_dwordx16 s[16:31], s[0:1], 0")
        e("s_load_dwordx8 s[32:39], s[0:1], 64")
        e("s_load_dwordx4 s[40:43], s[0:1], 96")
        e("v_lshrrev_b32 v16, 6, v0")
        e("v_and_b32 v0, 63, v0")
        e(f"v_readfirstlane_b32 {sW}, v16")
        e(f"v_lshlrev_b32 {vL16}, 4, v0")
        e(f"s_and_b32 {sX}, s2, 7")
        e(f"s_lshr_b32 {sJ}, s2, 3")
        if self.stamps:
            e(f"v_mov_b32 {vST}, 0")
            e("s_memrealtime s[94:95]")
        if self.prefetch:
            sk = self.lab("pf")
            e(f"s_cmp_lg_u32 {sW}, 7")
            e(f"s_cbranch_scc1 {sk}")
            e("s_getpc_b64 s[8:9]")
            e.label("L_pc")
            e(f"v_lshlrev_b32 v16, 7, v0")
            e.raw("    .set CODE_LEFT, L_code_end - L_pc")
            for k in range(3):
                e(f"v_cmp_gt_u32 vcc, CODE_LEFT-4, v16")
                e("s_and_saveexec_b64 s[10:11], vcc")
                e(f"s_cbranch_execz L_pfx{k}")
                e(f"global_load_dword v205, v16, s[8:9]")
                e.label(f"L_pfx{k}")
                e("s_mov_b64 exec, -1")
                e("v_add_u32 v16, 0x2000, v16")
            e.label(sk)
        e(f"s_mov_b32 {sM10}, 0x3ff")
        e(f"s_mov_b32 {sHI}, 0xffff0000")
        e(f"s_movk_i32 {s4K}, 0x1000")
        e(f"s_lshl_b32 s12, {sX}, 1")
        e(f"s_lshr_b32 s13, {sJ}, 4")
        e(f"s_add_u32 s12, s12, s13")
        e(f"s_lshl_b32 s12, s12, 24")
        e(f"s_and_b32 s13, {sJ}, 15")
        e(f"s_lshl_b32 s13, s13, 16")
        e(f"s_add_u32 s12, s12, s13")
        e(f"s_add_u32 s12, s12, {61440*256}")
        e("s_waitcnt lgkmcnt(0)")
        if self.stamps:
            e(f"v_writelane_b32 {vST}, s94, 0")
        self.srd(WS, "s42", "s43", WS_BYTES)
        e(f"buffer_load_dwordx2 {v(vE0,2)}, off, {WS}, 0 sc1")
        e("s_add_u32 s48, s18, s12"); e("s_addc_u32 s49, s19, 0"); e("s_mov_b32 s50, 0x10000"); e("s_mov_b32 s51, 0x20000")
        e("s_add_u32 s52, s20, s12"); e("s_addc_u32 s53, s21, 0"); e("s_mov_b32 s54, 0x10000"); e("s_mov_b32 s55, 0x20000")
        e(f"s_cmp_lt_u32 {sJ}, 18")
        e("s_cbranch_scc1 L_GU")
        e(f"s_cmp_lt_u32 {sJ}, 27")
        e("s_cbranch_scc1 L_WD")
        self.role_mr()
        self.role_wd()
        self.role_gu()
        e.label("L_fin")
        if self.stamps:
            e(f"s_lshl_b32 s8, s2, 3")
            e(f"s_add_u32 s8, s8, {sW}")
            e(f"s_lshl_b32 s8, s8, 8")
            e(f"s_add_u32 s8, s8, {STAMP}")
            e(f"v_lshlrev_b32 v16, 2, {vL}")
            e(f"buffer_store_dword {vST}, v16, {WS}, s8 offen")
        e.label("L_end")
        return e

    def role_mr(self):
        e = self.e
        e.c("================ MR ================")
        e(f"s_sub_u32 {sR}, {sJ}, 27")
        e(f"s_lshl_b32 {sR}, {sR}, 3")
        e(f"s_add_u32 {sR}, {sR}, {sX}")
        e(f"s_cmp_ge_u32 {sR}, 36")
        e("s_cbranch_scc1 L_MR_idle")
        self.srd(SS1, "s34", "s35", 1152)
        self.srd(SW1, "s36", "s37", 576 * 6912)
        e(f"s_mul_i32 s8, {sW}, 144")
        e(f"v_lshlrev_b32 v29, 2, {vL}")
        e(f"buffer_load_dword v30, v29, {SS1}, s8 offen")
        self.wvoff("v25", 6912)
        e(f"s_mul_i32 s14, {sW}, {72*6912}")
        e(f"s_lshl_b32 s8, {sR}, 7")
        e(f"s_add_u32 s14, s14, s8")
        e(f"s_add_u32 s14, s14, {18*128}")
        self.wloads(RW1, "v25", SW1, "s14", 6912, 0, 9)
        self.consts()
        e("s_waitcnt vmcnt(9)")
        self.tags()
        self.silu_rows(None)
        e("s_barrier")
        self.xv_read(48, 9)
        e("s_waitcnt lgkmcnt(0)")
        self.core(48, RW1, 9, 40, 32, vm_after=0)
        self.acc_add(40, L_ACC1)
        e(f"s_lshl_b32 s8, {sR}, 8")
        e(f"s_add_u32 s8, s8, {P6}")
        self.acc_publish(L_ACC1, "s8", "sc1", True)
        self.stamp(4)
        e("s_branch L_MR_att")
        e.label("L_MR_idle")
        self.consts()
        e("s_waitcnt vmcnt(0)")
        self.tags()
        e("s_waitcnt lgkmcnt(0)")
        e("s_barrier")
        e.label("L_MR_att")
        self.attention(lambda: 0)
        e("s_branch L_fin")

    def role_wd(self):
        e = self.e
        e.label("L_WD")
        e.c("================ WD ================")
        e(f"s_sub_u32 {sR}, {sJ}, 18")
        self.srd(SW1, "s24", "s25", 4096 * 1152)
        self.srd(SW2, "s32", "s33", 4608 * 1152)
        self.wvoff("v25", 1152)
        e(f"s_lshl_b32 s14, {sX}, 3")
        e(f"s_add_u32 s14, s14, {sW}")
        e(f"s_mul_i32 s15, s14, {72*1152}")
        e(f"s_mul_i32 s14, s14, {64*1152}")
        e(f"s_lshl_b32 s8, {sR}, 7")
        e(f"s_add_u32 s14, s14, s8")
        e(f"s_add_u32 s15, s15, s8")
        self.wloads(RW1, "v25", SW1, "s14", 1152, 0, 8)
        ne = self.n_early_wd
        self.wloads(RW2, "v25", SW2, "s15", 1152, 0, ne)
        self.consts()
        e(f"s_waitcnt vmcnt({8+ne})")
        self.tags()
        e("s_waitcnt lgkmcnt(0)")
        e("s_barrier")
        self.attention(lambda: 0)
        e.c("---- combine: gather P4 ----")
        e(f"s_lshl_b32 s8, {sX}, 5")
        e(f"s_lshr_b32 s9, {sW}, 2")
        e(f"s_lshl_b32 s9, s9, 4")
        e(f"s_add_u32 s8, s8, s9")
        e(f"s_mul_i32 s8, s8, 1152")
        e(f"s_add_u32 s8, s8, {P4}")
        e(f"s_and_b32 s9, {sW}, 3")
        e(f"s_lshl_b32 s9, s9, 8")
        e(f"s_add_u32 s9, s9, s8")
        e(f"v_lshrrev_b32 v16, 4, {vL}")
        e(f"v_mul_u32_u24 v17, {4*1152}, v16")
        e(f"v_and_b32 v18, 0xf0, {vL16}")
        e(f"v_add_u32 v26, v17, v18")
        e(f"v_lshl_add_u32 v17, v16, 2, {vL}")
        e(f"v_and_b32 v17, 15, v17")
        e(f"v_mul_u32_u24 v27, 1152, v17")
        e(f"v_and_b32 v17, 1, {vL}")
        e(f"v_lshl_add_u32 v17, v17, 2, v16")
        e(f"v_mul_u32_u24 v17, 48, v17")
        e(f"v_and_b32 v18, 14, {vL}")
        e(f"v_lshlrev_b32 v18, 1, v18")
        e(f"s_lshl_b32 s10, {sW}, 9")
        e(f"v_add3_u32 v28, v17, v18, s10")

        def issue():
            e(f"buffer_load_dwordx4 v[48:51], v27, {WS}, s8 offen offset:1024 sc1")
            for m in range(4):
                e(f"buffer_load_dwordx4 {v(32+4*m,4)}, v26, {WS}, s9 offen offset:{1152*m} sc1")
        self.poll(issue, [(None, self.g4(48) + self.g4(32) + self.g4(36) + self.g4(40) + self.g4(44))])
        self.stamp(9)
        sk = self.lab("h")
        e(f"s_bitcmp0_b32 {sW}, 1")
        e(f"s_cbranch_scc1 {sk}")
        e("v_mov_b32 v48, v50")
        e("v_mov_b32 v49, v51")
        e.label(sk)
        e(f"v_and_b32 v48, {sHI}, v48")
        dp = "row_mask:0xf bank_mask:0xf"
        e(f"v_max_f32_dpp v50, v48, v48 row_ror:8 {dp}")
        for r in (4, 2, 1):
            e(f"v_max_f32_dpp v50, v50, v50 row_ror:{r} {dp}")
        e("v_sub_f32 v48, v48, v50")
        e(f"v_mul_f32 v48, {sL2E}, v48")
        e("v_exp_f32 v48, v48")
        e("v_mul_f32 v49, v48, v49")
        for r in (8, 4, 2, 1):
            e(f"v_add_f32_dpp v49, v49, v49 row_ror:{r} {dp}")
        e("v_rcp_f32 v49, v49")
        e("v_mul_f32 v48, v48, v49")
        for r in range(4):
            e(f"v_mul_f32_dpp {v(52+r)}, v48, {v(32+r)} row_newbcast:0 {dp}")
        for m in range(1, 4):
            for r in range(4):
                e(f"v_fmac_f32_dpp {v(52+r)}, v48, {v(32+4*m+r)} row_newbcast:{m} {dp}")
        self.reduce4(52)
        e("v_cvt_pk_bf16_f32 v52, v52, v52")
        e("ds_write_b32 v28, v52")
        e("s_waitcnt lgkmcnt(0)")
        self.xv_read(48, 8)
        e("s_waitcnt lgkmcnt(0)")
        self.core(48, RW1, 8, 40, 32)
        self.acc_add(40, L_ACC1)
        e(f"s_mul_i32 s8, {sX}, 2304")
        e(f"s_lshl_b32 s9, {sR}, 8")
        e(f"s_add_u32 s13, s8, s9")
        e(f"s_add_u32 s8, s13, {P5}")
        self.acc_publish(L_ACC1, "s8", "sc1", False)
        self.stamp(10)
        self.wloads(RW2, "v25", SW2, "s15", 1152, ne, 9)
        e.c("---- gather P7, gelu ----")
        e(f"s_mul_i32 s8, {sX}, 4608")
        e(f"s_mul_i32 s9, {sW}, 288")
        e(f"s_add_u32 s8, s8, s9")
        e(f"s_add_u32 s8, s8, {P7}")
        e(f"v_lshlrev_b32 v26, 3, {vL}")

        def issue2():
            e(f"s_mov_b64 exec, {m36}")
            e(f"buffer_load_dwordx2 v[32:33], v26, {WS}, s8 offen sc1")
            e(f"buffer_load_dwordx2 v[34:35], v26, {WS}, s8 offen offset:2304 sc1")
            e("s_mov_b64 exec, -1")
        self.poll(issue2, [(m36, [("v32", vTa0), ("v33", vTa1), ("v34", vTa0), ("v35", vTa1)])])
        self.stamp(11)
        for r in range(4):
            e(f"v_and_b32 {v(32+r)}, {sHI}, {v(32+r)}")
        for a, t in (("v32", "v36"), ("v33", "v37")):
            e(f"v_mul_f32 {t}, {a}, {a}")
        for a, t in (("v32", "v36"), ("v33", "v37")):
            e(f"v_mov_b32 v38, 0x3d372713")
            e(f"v_fma_f32 {t}, {t}, v38, 1.0")
        for a, t in (("v32", "v36"), ("v33", "v37")):
            e(f"v_mul_f32 {t}, {t}, {a}")
        for a, t in (("v32", "v36"), ("v33", "v37")):
            e(f"v_mul_f32 {t}, 0xc0135761, {t}")
        e("v_exp_f32 v36, v36"); e("v_exp_f32 v37, v37")
        e("v_add_f32 v36, 1.0, v36"); e("v_add_f32 v37, 1.0, v37")
        e("v_rcp_f32 v36, v36"); e("v_rcp_f32 v37, v37")
        e("v_mul_f32 v32, v32, v36"); e("v_mul_f32 v33, v33, v37")
        self.rb2("v32", "v33", "v36")
        e("v_mul_f32 v32, v32, v34"); e("v_mul_f32 v33, v33, v35")
        self.xv_write_pair("v32", "v33")
        self.xv_read(48, 9)
        e("s_waitcnt lgkmcnt(0)")
        self.core(48, RW2, 9, 40, 32)
        self.acc_add(40, L_ACC2)
        e(f"s_add_u32 s8, s13, {P8}")
        self.acc_publish(L_ACC2, "s8", "sc1", False)
        self.stamp(12)
        e("s_branch L_fin")

    def role_gu(self):
        e = self.e
        e.label("L_GU")
        e.c("================ GU ================")
        e(f"s_mov_b32 {sR}, {sJ}")
        self.srd(SS1, "s34", "s35", 1152)
        self.srd(SS2, "s16", "s17", 1152)
        self.srd(SW1, "s36", "s37", 576 * 6912)
        self.srd(SW2, "s22", "s23", 576 * 8192)
        e(f"v_lshlrev_b32 v29, 2, {vL}")
        w0 = self.lab("w0")
        e(f"s_cmp_lg_u32 {sW}, 0")
        e(f"s_cbranch_scc1 {w0}")
        e(f"s_mul_i32 s8, {sX}, 144")
        e(f"buffer_load_dword v30, v29, {SS1}, s8 offen")
        self.wvoff("v25", 6912)
        e(f"s_mul_i32 s14, {sX}, {72*6912}")
        e(f"s_lshl_b32 s8, {sR}, 7")
        e(f"s_add_u32 s14, s14, s8")
        self.wloads(RW1, "v25", SW1, "s14", 6912, 0, 9)
        e.label(w0)
        w1 = self.lab("w1")
        e(f"s_cmp_lg_u32 {sW}, 1")
        e(f"s_cbranch_scc1 {w1}")
        e(f"buffer_load_dwordx4 v[32:35], {vL16}, {SS2}, 0 offen")
        e(f"buffer_load_dwordx4 v[36:39], {vL16}, {SS2}, 0 offen offset:1024")
        e(f"v_and_b32 v16, 7, {vL}")
        e(f"v_lshrrev_b32 v17, 4, {vL}")
        e(f"v_lshl_add_u32 v28, v16, 2, v17")
        e(f"v_lshlrev_b32 v16, 1, v28")
        e(f"s_lshl_b32 s8, {sR}, 6")
        e(f"buffer_load_ushort v40, v16, {SS2}, s8 offen")
        e.label(w1)
        self.wvoff("v25", 8192)
        e(f"s_lshl_b32 s14, {sR}, 18")
        e(f"s_lshl_b32 s8, {sX}, 10")
        e(f"s_add_u32 s14, s14, s8")
        e(f"s_lshl_b32 s8, {sW}, 7")
        e(f"s_add_u32 s14, s14, s8")
        self.wloads(RW2, "v25", SW2, "s14", 8192, 0, 4)
        self.consts()
        n0 = self.lab("n0")
        e(f"s_cmp_lg_u32 {sW}, 0")
        e(f"s_cbranch_scc1 {n0}")
        e("s_waitcnt vmcnt(13)")
        self.tags()
        self.silu_rows(None)
        self.xv_read(48, 9)
        e("s_waitcnt lgkmcnt(0)")
        self.core(48, RW1, 9, 40, 32, vm_after=4)
        e(f"s_lshl_b32 s8, {sR}, 3")
        e(f"s_add_u32 s8, s8, {sX}")
        e(f"s_lshl_b32 s8, s8, 8")
        e(f"s_add_u32 s8, s8, {P1}")
        self.bsum_store(40, "s8", "sc1")
        self.stamp(1)
        e("s_branch L_GU_b1")
        e.label(n0)
        e("s_waitcnt vmcnt(4)")
        self.tags()
        e(f"s_cmp_lg_u32 {sW}, 1")
        e(f"s_cbranch_scc1 L_GU_b1")
        e("v_mov_b32 v41, 0x3f803f80")
        e("v_mov_b32 v42, 0")
        e("v_mov_b32 v43, 0")
        for r in range(8):
            e(f"v_dot2_f32_bf16 v42, {v(32+r)}, v41, v42")
        for r in range(8):
            e(f"v_dot2_f32_bf16 v43, {v(32+r)}, {v(32+r)}, v43")
        dp = "row_mask:0xf bank_mask:0xf"
        e("v_permlane32_swap_b32 v42, v43")
        e("v_add_f32 v42, v42, v43")
        e("v_mov_b32 v43, v42")
        e("v_permlane16_swap_b32 v42, v43")
        e("v_add_f32 v42, v42, v43")
        for r in (8, 4, 2, 1):
            e(f"v_add_f32_dpp v42, v42, v42 row_ror:{r} {dp}")
        e("v_mov_b32 v43, v42")
        e("v_permlane32_swap_b32 v42, v43")
        self.ln_finish("v42", "v43", "v44", "v45")
        e("v_lshlrev_b32 v40, 16, v40")
        e("v_sub_f32 v40, v40, v44")
        self.rb1("v40")
        e("v_mul_f32 v40, v40, v45")
        self.rb1("v40")
        e("v_and_b32 v16, 7, v28")
        e("v_mul_u32_u24 v16, 48, v16")
        e("v_lshrrev_b32 v17, 3, v28")
        e("v_lshl_add_u32 v28, v17, 2, v16")
        e(f"v_lshrrev_b32 v16, 3, {vL}")
        e(f"v_lshlrev_b32 v16, 8, v16")
        e(f"v_and_b32 v17, 0x70, {vL16}")
        e(f"v_add_u32 v26, v16, v17")
        e(f"s_lshr_b32 s8, {sR}, 1")
        e(f"s_lshl_b32 s8, s8, 11")
        e(f"s_and_b32 s9, {sR}, 1")
        e(f"s_lshl_b32 s9, s9, 7")
        e(f"s_add_u32 s8, s8, s9")
        e(f"s_add_u32 s8, s8, {P1}")
        e(f"s_add_u32 s9, s8, {9*2048}")

        def issue():
            e(f"buffer_load_dwordx4 v[32:35], v26, {WS}, s8 offen sc1")
            e(f"buffer_load_dwordx4 v[36:39], v26, {WS}, s9 offen sc1")
        self.poll(issue, [(None, self.g4(32) + self.g4(36))])
        self.stamp(2)
        self.reduce4(32)
        self.reduce4(36)
        e(f"v_add_f32_dpp v32, v32, v32 row_ror:8 {dp}")
        e(f"v_add_f32_dpp v36, v36, v36 row_ror:8 {dp}")
        self.rb2("v32", "v36", "v33")
        e("v_add_f32 v36, 1.0, v36")
        self.rb1("v36")
        e("v_mul_f32 v36, v36, v40")
        self.rb1("v36")
        e("v_add_f32 v36, v36, v32")
        e("v_cvt_pk_bf16_f32 v36, v36, v36")
        e(f"ds_write_b32 v28, v36 offset:{L_H32}")
        e.label("L_GU_b1")
        e(f"v_lshrrev_b32 v16, 3, {vL}")
        e(f"v_mul_u32_u24 v26, 48, v16")
        e("s_waitcnt lgkmcnt(0)")
        e("s_barrier")
        self.xv_read(48, 4, "v26", L_H32)
        e(f"s_mul_i32 s8, {sX}, 18")
        e(f"s_add_u32 s9, s8, {sR}")
        e(f"s_lshl_b32 s9, s9, 11")
        e(f"s_lshl_b32 s10, {sW}, 8")
        e(f"s_add_u32 s9, s9, s10")
        e(f"s_add_u32 s9, s9, {P2}")
        e("s_waitcnt vmcnt(0) lgkmcnt(0)")
        self.core(48, RW2, 4, 40, 32)
        self.bsum_store(40, "s9", self.st_local)
        self.stamp(3)
        e(f"s_cmp_lg_u32 {sW}, 0")
        e(f"s_cbranch_scc1 L_GU_b2")
        e(f"s_cmp_ge_u32 {sR}, 16")
        e(f"s_cbranch_scc1 L_GU_b2")
        e(f"s_lshl_b32 s8, s8, 11")
        e(f"s_lshl_b32 s9, {sR}, 7")
        e(f"s_add_u32 s8, s8, s9")
        e(f"s_add_u32 s8, s8, {P2}")
        e(f"s_add_u32 s9, s8, {8*2048}")
        e(f"s_add_u32 s10, s8, {16*2048}")
        e(f"v_lshlrev_b32 v16, 11, v16")
        e(f"v_and_b32 v17, 0x70, {vL16}")
        e(f"v_add_u32 v26, v16, v17")
        e(f"v_lshrrev_b32 v16, 4, {vL}")
        e(f"v_lshl_add_u32 v27, v16, 2, v17")
        e(f"s_lshl_b32 s11, {sX}, 11")
        e(f"s_lshl_b32 s12, {sR}, 7")
        e(f"s_add_u32 s11, s11, s12")
        e(f"s_add_u32 s11, s11, {P3}")

        def issue3():
            e(f"buffer_load_dwordx4 v[32:35], v26, {WS}, s8 offen sc1")
            e(f"buffer_load_dwordx4 v[36:39], v26, {WS}, s9 offen sc1")
            e("s_mov_b64 exec, 0xffff")
            e(f"buffer_load_dwordx4 v[40:43], v26, {WS}, s10 offen sc1")
            e("s_mov_b64 exec, -1")
        self.poll(issue3, [(None, self.g4(32) + self.g4(36)), ("0xffff", self.g4(40))])
        for r in range(4):
            e(f"v_add_f32 {v(32+r)}, {v(32+r)}, {v(36+r)}")
        e("s_mov_b64 exec, 0xffff")
        for r in range(4):
            e(f"v_add_f32 {v(32+r)}, {v(32+r)}, {v(40+r)}")
        e("s_mov_b64 exec, -1")
        self.reduce4(32)
        e(f"v_add_f32_dpp v32, v32, v32 row_ror:8 {dp}")
        self.rb1("v32")
        e(f"v_bfi_b32 v32, {sM10}, {vTs}, v32")
        e(f"s_mov_b64 exec, {mJ8}")
        e(f"buffer_store_dword v32, v27, {WS}, s11 offen {self.st_local}")
        e("s_mov_b64 exec, -1")
        self.stamp(4)
        e.label("L_GU_b2")
        e("s_barrier")
        e(f"s_cmp_ge_u32 {sR}, 9")
        e("s_cselect_b32 s60, s30, s28")
        e("s_cselect_b32 s61, s31, s29")
        e("s_cselect_b32 s8, 9, 0")
        e(f"s_mov_b32 s62, {576*9216}")
        e(f"s_sub_u32 s8, {sR}, s8")
        e(f"s_lshl_b32 s8, s8, 7")
        e(f"s_mul_i32 s14, {sX}, 1152")
        e(f"s_add_u32 s14, s14, s8")
        e(f"s_mul_i32 s8, {sW}, {72*9216}")
        e(f"s_add_u32 s14, s14, s8")
        self.wvoff("v25", 9216)
        ne = self.n_early_gu

        def early():
            self.wloads(RW2, "v25", SW2, "s14", 9216, 0, ne)
            return ne
        self.attention(early)
        self.wloads(RW2, "v25", SW2, "s14", 9216, ne, 9)
        e.c("---- gather P6 (ga, sb, cb) + x ----")
        e(f"s_mul_i32 s8, {sW}, 288")
        e(f"s_add_u32 s9, s8, {P6}")
        e(f"s_add_u32 s10, s9, 4608")
        e(f"s_lshr_b32 s11, s8, 1")
        e(f"v_lshlrev_b32 v26, 3, {vL}")
        e(f"v_lshlrev_b32 v29, 2, {vL}")
        e(f"buffer_load_dword v62, v29, {SS2}, s11 offen")

        def issue6():
            e(f"s_mov_b64 exec, {m36}")
            e(f"buffer_load_dwordx2 v[56:57], v26, {WS}, s9 offen sc1")
            e(f"buffer_load_dwordx2 v[58:59], v26, {WS}, s9 offen offset:2304 sc1")
            e(f"buffer_load_dwordx2 v[60:61], v26, {WS}, s10 offen sc1")
            e("s_mov_b64 exec, -1")
        self.poll(issue6, [(m36, [(v(56+r), vTa0 if r % 2 == 0 else vTa1) for r in range(6)])])
        for r in range(6):
            e(f"v_and_b32 {v(56+r)}, {sHI}, {v(56+r)}")
        e("v_add_f32 v60, 1.0, v60")
        e("v_add_f32 v61, 1.0, v61")
        self.rb2("v60", "v61", "v16")
        e(f"v_and_b32 v63, {sHI}, v62")
        e(f"v_lshlrev_b32 v62, 16, v62")
        self.stamp(9)
        e.c("---- gather P5 ----")
        e(f"v_and_b32 v16, 1, {vL}")
        e(f"v_mul_u32_u24 v16, {4*2304}, v16")
        e(f"v_lshrrev_b32 v17, 1, {vL}")
        e(f"v_lshl_add_u32 v27, v17, 4, v16")
        e(f"s_add_u32 s9, s8, {P5}")
        e(f"s_add_u32 s10, s9, 4608")
        e(f"v_add_u32 v28, s8, v26")
        e(f"v_lshrrev_b32 v31, 5, {vL}")
        e(f"v_lshlrev_b32 v31, 2, v31")
        e("s_mov_b32 s12, 0x00010001"); e("s_mov_b32 s13, 0x00010001")

        def issue5():
            e(f"s_mov_b64 exec, {m36}")
            e(f"buffer_load_dwordx4 v[32:35], v27, {WS}, s9 offen sc1")
            e(f"buffer_load_dwordx4 v[36:39], v27, {WS}, s9 offen offset:2304 sc1")
            e(f"buffer_load_dwordx4 v[40:43], v27, {WS}, s10 offen sc1")
            e(f"buffer_load_dwordx4 v[44:47], v27, {WS}, s10 offen offset:2304 sc1")
            e("s_mov_b64 exec, -1")
        self.poll(issue5, [(m36, self.g4(32) + self.g4(36) + self.g4(40) + self.g4(44))])
        self.stamp(10)
        e("v_pk_add_f32 v[32:33], v[32:33], v[36:37]")
        e("v_pk_add_f32 v[34:35], v[34:35], v[38:39]")
        e("v_pk_add_f32 v[40:41], v[40:41], v[44:45]")
        e("v_pk_add_f32 v[42:43], v[42:43], v[46:47]")
        e("v_pk_add_f32 v[32:33], v[32:33], v[40:41]")
        e("v_pk_add_f32 v[34:35], v[34:35], v[42:43]")
        for r in range(4):
            e(f"v_add_f32_dpp {v(36+r)}, {v(32+r)}, {v(32+r)} quad_perm:[1,0,3,2] {dp}")
        e(f"v_cndmask_b32 v32, v36, v38, {mODD}")
        e(f"v_cndmask_b32 v33, v37, v39, {mODD}")
        self.rb2("v32", "v33", "v34")
        e("v_mul_f32 v32, v32, v56"); e("v_mul_f32 v33, v33, v57")
        self.rb2("v32", "v33", "v34")
        e("v_add_f32 v32, v32, v62"); e("v_add_f32 v33, v33, v63")
        self.rb2("v32", "v33", "v34")
        e("v_add_f32 v36, v32, v33")
        e("v_mul_f32 v37, v32, v32")
        e("v_fmac_f32 v37, v33, v33")
        e(f"v_cndmask_b32 v36, 0, v36, {m36}")
        e(f"v_cndmask_b32 v37, 0, v37, {m36}")
        e(f"s_mov_b64 exec, {m36}")
        e(f"ds_write_b64 v28, v[32:33] offset:{L_X1}")
        e("s_mov_b64 exec, -1")
        e("v_permlane32_swap_b32 v36, v37")
        e("v_add_f32 v36, v36, v37")
        for r in (8, 4, 2, 1):
            e(f"v_add_f32_dpp v36, v36, v36 row_ror:{r} {dp}")
        e("s_mov_b64 exec, s[12:13]")
        e(f"ds_add_f32 v31, v36 offset:{L_LNS}")
        e("s_mov_b64 exec, -1")
        e("v_mov_b32 v16, 0")
        e("s_waitcnt lgkmcnt(0)")
        e("s_barrier")
        e(f"ds_read_b64 v[36:37], v16 offset:{L_LNS}")
        e("s_waitcnt lgkmcnt(0)")
        self.ln_finish("v36", "v37", "v38", "v39")
        e("v_sub_f32 v32, v32, v38"); e("v_sub_f32 v33, v33, v38")
        self.rb2("v32", "v33", "v34")
        e("v_mul_f32 v32, v32, v39"); e("v_mul_f32 v33, v33, v39")
        self.rb2("v32", "v33", "v34")
        e("v_mul_f32 v32, v32, v60"); e("v_mul_f32 v33, v33, v61")
        self.rb2("v32", "v33", "v34")
        e("v_add_f32 v32, v32, v58"); e("v_add_f32 v33, v33, v59")
        self.xv_write_pair("v32", "v33")
        self.xv_read(48, 9)
        e("s_waitcnt lgkmcnt(0)")
        self.core(48, RW2, 9, 40, 32)
        self.acc_add(40, L_ACC1)
        e(f"s_mul_i32 s8, {sX}, 4608")
        e(f"s_lshl_b32 s9, {sR}, 8")
        e(f"s_add_u32 s8, s8, s9")
        e(f"s_add_u32 s8, s8, {P7}")
        self.acc_publish(L_ACC1, "s8", self.st_local, True)
        self.stamp(11)
        e.c("---- final (wave 0 of i<9, x == i&7) ----")
        e(f"s_cmp_lg_u32 {sW}, 0")
        e("s_cbranch_scc1 L_fin")
        e(f"s_cmp_ge_u32 {sR}, 9")
        e("s_cbranch_scc1 L_fin")
        e(f"s_and_b32 s8, {sR}, 7")
        e(f"s_cmp_lg_u32 s8, {sX}")
        e("s_cbranch_scc1 L_fin")
        self.srd(SS1, "s38", "s39", 1152)
        e(f"v_lshrrev_b32 v16, 4, {vL}")
        e(f"v_and_b32 v17, 0xf0, {vL16}")
        e(f"v_lshl_add_u32 v26, v16, 2, v17")
        e(f"v_mul_u32_u24 v16, 2304, v16")
        e(f"v_add_u32 v27, v16, v17")
        e(f"v_add_u32 v28, s9, v26")
        e(f"ds_read_b32 v44, v28 offset:{L_X1}")
        e(f"s_add_u32 s8, s9, {P6+3*2304}")

        def issue_gb():
            e(f"buffer_load_dword v45, v26, {WS}, s8 offen sc1")
        self.poll(issue_gb, [(None, [("v45", vTs)])])
        e(f"v_and_b32 v45, {sHI}, v45")
        e(f"s_add_u32 s8, s9, {P8}")
        e(f"s_add_u32 s10, s8, {4*2304}")
        e(f"v_lshrrev_b32 v26, 1, v26")
        e(f"s_lshl_b32 s11, {sR}, 7")

        def issue8():
            e(f"buffer_load_dwordx4 v[32:35], v27, {WS}, s8 offen sc1")
            e(f"buffer_load_dwordx4 v[36:39], v27, {WS}, s10 offen sc1")
        self.poll(issue8, [(None, self.g4(32) + self.g4(36))])
        e("v_pk_add_f32 v[32:33], v[32:33], v[36:37]")
        e("v_pk_add_f32 v[34:35], v[34:35], v[38:39]")
        self.reduce4(32)
        self.rb1("v32")
        e("v_mul_f32 v32, v32, v45")
        self.rb1("v32")
        e("s_waitcnt lgkmcnt(0)")
        e("v_add_f32 v32, v32, v44")
        e("v_cvt_pk_bf16_f32 v32, v32, v32")
        e(f"buffer_store_short v32, v26, {SS1}, s11 offen")
        self.stamp(12)
        e(f"s_cmp_lg_u32 {sR}, 0")
        e("s_cbranch_scc1 L_fin")
        e("s_mov_b64 exec, 1")
        e(f"buffer_store_dwordx2 {v(vE0,2)}, off, {WS}, 0")
        e("s_mov_b64 exec, -1")


def generate(fn, **kw):
    g = Gen(**kw)
    e = g.build()
    body = e.text()
    nv = max(e.maxv + 1, 136)
    txt = wrap(body, 256, 512, lds=LDS_BYTES, vgpr=nv, sgpr=max(e.maxs + 1, 96))
    txt = txt.replace("\ns_endpgm\n", "\n    s_endpgm\nL_code_end:\n")
    open(fn, "w").write(txt)
    return e


if __name__ == "__main__":
    e = generate("k1.s")
    generate("k1s.s", stamps=True)
    print("vgpr", e.maxv + 1, "sgpr", e.maxs + 1, "nops", e.nnops, "lines", len(e.lines))
```

```python
import sys
from emit import Em
from asmgen import wrap, NAME

P1 = 0x1000
P2 = 0x10000
P3 = 0x60000
P4 = 0x70000
P5 = 0xC0000
P6 = 0xC8000
P7 = 0xD0000
P8 = 0xE0000
P9 = 0xE8000
CEN = 0xF0000
STAMP = 0x100000
WS_BYTES = 0x200000

L_ACC1 = 0x0000
L_ACC2 = 0x0900
L_LNS = 0x1200
L_MX = 0x1280
L_H32 = 0x1300
L_ACCO = 0x1400
LDS_BYTES = 0x3800
ACCS = 272

sX, sJ, sW, sR, sSP = "s3", "s4", "s5", "s6", "s7"
WS, SK, SV, SW1, SW2, SS1, SS2 = "s[44:47]", "s[48:51]", "s[52:55]", "s[56:59]", "s[60:63]", "s[64:67]", "s[68:71]"
sM10, sHI, sLOC, sSEL, sL2E, sKV = "s72", "s73", "s74", "s75", "s76", "s77"
m36, mJ8, mT2, mODD, mHI = "s[82:83]", "s[84:85]", "s[86:87]", "s[88:89]", "s[90:91]"
vL, vL16 = "v0", "v1"
MK = [2, 3, 4, 5]
TG = [6, 7, 8, 9]
vTa0, vTa1 = "v10", "v11"
vWA, vWB = "v12", "v13"
vKO, vVO = "v14", "v210"
vST = "v15"
RK, RV, RW1, RW2 = 64, 96, 128, 164
vTb0, vTb1, vTs, vBO, vAA = "v200", "v201", "v202", "v203", "v204"
vDUM = "v205"
vE0, vE1 = 206, 207
vAR, vCO = "v208", "v209"
PS = [212, 213, 214, 215]
vTq, vTg = "v216", "v217"
SPIN = 400000
DPF = "row_mask:0xf bank_mask:0xf"


def v(n, k=1):
    return f"v{n}" if k == 1 else f"v[{n}:{n+k-1}]"


class Gen:
    def __init__(self, stamps=False, force=None, thr=3, thr_gu=3, n_early_gu=3, n_early_wd=0, prefetch=True,
                 pretouch=True, kpre=3, thr_gu2=4):
        self.e = Em()
        self.stamps = stamps
        self.force = force
        self.thr = thr
        self.thr_gu = thr_gu
        self.n_early_gu = n_early_gu
        self.n_early_wd = n_early_wd
        self.prefetch = prefetch
        self.pretouch = pretouch
        self.kpre = kpre
        self.thr_gu2 = thr_gu2
        self.uid = 0

    def lab(self, p):
        self.uid += 1
        return f"L_{p}{self.uid}"

    def stamp(self, k):
        if self.stamps:
            e = self.e
            e("s_memrealtime s[92:93]")
            e("s_waitcnt lgkmcnt(0)")
            e(f"v_writelane_b32 {vST}, s92, {k}")

    def srd(self, srd, lo, hi, nbytes):
        b = int(srd[2:].split(":")[0])
        e = self.e
        e(f"s_mov_b32 s{b}, {lo}")
        e(f"s_mov_b32 s{b+1}, {hi}")
        e(f"s_mov_b32 s{b+2}, {nbytes}")
        e(f"s_mov_b32 s{b+3}, 0x20000")

    def lstore(self, text):
        e = self.e
        if self.force is not None:
            e(f"{text} {self.force}")
            return
        a, b = self.lab("ls"), self.lab("le")
        e(f"s_cmp_eq_u32 {sLOC}, 0")
        e(f"s_cbranch_scc1 {a}")
        e(text)
        e(f"s_branch {b}")
        e.label(a)
        e(f"{text} sc1")
        e.label(b)

    def voff9(self, stride):
        e = self.e
        e(f"v_lshrrev_b32 v16, 3, {vL}")
        e(f"v_and_b32 v17, 0x70, {vL16}")
        e(f"v_mul_u32_u24 v16, {stride}, v16")
        e(f"v_lshl_add_u32 {vWA}, v16, 3, v17")
        e(f"v_add_u32 v16, {56*stride}, v16")
        e(f"v_add_u32 {vWB}, v16, v17")

    def wloads(self, base, srd, soff, step, t0, t1, thr=None):
        e = self.e
        for t in range(t0, t1):
            vo = vWB if t == 8 else vWA
            e(f"buffer_load_dwordx4 {v(base+4*t,4)}, {vo}, {srd}, {soff} offen nt")
            e(f"s_add_u32 {soff}, {soff}, {step}")
            if thr is not None:
                e(f"s_waitcnt vmcnt({thr})")

    def kvloads(self, base, vo, srd, t0, t1, thr=None):
        e = self.e
        for t in range(t0, t1):
            e(f"s_mov_b32 {sKV}, {t*8192}")
            e(f"buffer_load_dwordx4 {v(base+4*t,4)}, {vo}, {srd}, {sKV} offen nt")
            if thr is not None:
                e(f"s_waitcnt vmcnt({thr})")

    def rb2(self, a, b, t):
        e = self.e
        e(f"v_cvt_pk_bf16_f32 {t}, {a}, {b}")
        e(f"v_lshlrev_b32 {a}, 16, {t}")
        e(f"v_and_b32 {b}, {sHI}, {t}")

    def rb1(self, a):
        e = self.e
        e(f"v_cvt_pk_bf16_f32 {a}, {a}, {a}")
        e(f"v_and_b32 {a}, {sHI}, {a}")

    def swz(self, X, src, n=8):
        for t in range(n):
            self.e(f"ds_swizzle_b32 {v(X+t)}, {src} offset:{(t << 5) | 0x18}")

    def core(self, X, W, T, D, A, vm_after=None, lgkm=None, perm=False, order=None):
        e = self.e
        first = True
        for n, t in enumerate(order or range(T)):
            a = A + 4 * (n & 1)
            if lgkm is not None and t < lgkm:
                e(f"s_waitcnt lgkmcnt({lgkm-1-t})")
            for k in range(4):
                if perm:
                    e(f"v_perm_b32 {v(a+k)}, {v(X+t)}, {v(X+t)}, {v(PS[k])}")
                else:
                    e(f"v_and_b32 {v(a+k)}, {v(X+t)}, {v(MK[k])}")
            if vm_after is not None:
                e(f"s_waitcnt vmcnt({T-1-t+vm_after})")
            c = "0" if first else v(D, 4)
            first = False
            e(f"v_mfma_f32_16x16x32_bf16 {v(D,4)}, {v(a,4)}, {v(W+4*t,4)}, {c}")

    def bsum(self, D):
        e = self.e
        e(f"v_permlane32_swap_b32 {v(D)}, {v(D+2)}")
        e(f"v_permlane32_swap_b32 {v(D+1)}, {v(D+3)}")
        e(f"v_add_f32_dpp {v(D)}, {v(D+2)}, {v(D)} row_ror:8 {DPF}")
        e(f"v_add_f32_dpp {v(D+1)}, {v(D+3)}, {v(D+1)} row_ror:8 {DPF}")

    def bsum_store(self, D, soff, local):
        e = self.e
        self.bsum(D)
        e(f"v_bfi_b32 {v(D)}, {sM10}, {vTb0}, {v(D)}")
        e(f"v_bfi_b32 {v(D+1)}, {sM10}, {vTb1}, {v(D+1)}")
        e(f"s_mov_b64 exec, {mJ8}")
        t = f"buffer_store_dwordx2 {v(D,2)}, {vBO}, {WS}, {soff} offen"
        if local:
            self.lstore(t)
        else:
            e(t + " sc1")
        e("s_mov_b64 exec, -1")

    def acc_add(self, D, acc):
        e = self.e
        self.bsum(D)
        e(f"s_mov_b64 exec, {mJ8}")
        e(f"ds_write_b64 {vAA}, {v(D,2)} offset:{acc}")
        e("s_mov_b64 exec, -1")
        e("s_waitcnt lgkmcnt(0)")
        e("s_barrier")

    def acc_publish(self, acc, soff, local, round_bf16, D=16):
        e = self.e
        skip = self.lab("ap")
        e(f"s_cmp_lg_u32 {sW}, 0")
        e(f"s_cbranch_scc1 {skip}")
        e(f"ds_read_b128 {v(D,4)}, {vAR} offset:{acc}")
        e(f"ds_read_b128 {v(D+4,4)}, {vAR} offset:{acc+4*ACCS}")
        e("s_waitcnt lgkmcnt(0)")
        e(f"v_pk_add_f32 {v(D,2)}, {v(D,2)}, {v(D+4,2)}")
        e(f"v_pk_add_f32 {v(D+2,2)}, {v(D+2,2)}, {v(D+6,2)}")
        self.reduce4(D)
        if round_bf16:
            e(f"v_cvt_pk_bf16_f32 {v(D)}, {v(D)}, {v(D)}")
        e(f"v_bfi_b32 {v(D)}, {sM10}, {vTs}, {v(D)}")
        t = f"buffer_store_dword {v(D)}, {vCO}, {WS}, {soff} offen"
        if local:
            self.lstore(t)
        else:
            e(t + " sc1")
        e.label(skip)

    def poll(self, issue, checks, acc="v21"):
        e = self.e
        top = self.lab("poll")
        e(f"s_mov_b32 {sSP}, 0")
        e.label(top)
        e(f"s_add_u32 {sSP}, {sSP}, 1")
        e(f"s_cmp_gt_u32 {sSP}, {SPIN}")
        e("s_cbranch_scc1 L_end")
        issue()
        e(f"v_mov_b32 {acc}, 0")
        e("s_waitcnt vmcnt(0)")
        for mask, lst in checks:
            if mask:
                e(f"s_mov_b64 exec, {mask}")
            for r, t in lst:
                e(f"v_bitop3_b32 {acc}, {r}, {t}, {acc} bitop3:0xbe")
            if mask:
                e("s_mov_b64 exec, -1")
        e(f"v_and_b32 {acc}, {sM10}, {acc}")
        e(f"v_cmp_ne_u32 vcc, 0, {acc}")
        e(f"s_cbranch_vccnz {top}")

    def mpoll(self, loads, base_mask=None, sb=96):
        e = self.e
        regs = [f"s[{sb+2*m}:{sb+2*m+1}]" for m in range(3)] + ["s[78:79]", "s[80:81]"]
        top = self.lab("mp")
        bm = base_mask or "-1"
        for m in range(len(loads)):
            e(f"s_mov_b64 {regs[m]}, {bm}")
        e(f"s_mov_b32 {sSP}, 0")
        e.label(top)
        e(f"s_add_u32 {sSP}, {sSP}, 1")
        e(f"s_cmp_gt_u32 {sSP}, {SPIN}")
        e("s_cbranch_scc1 L_end")
        for m, (txt, _) in enumerate(loads):
            sk = self.lab("ms")
            e(f"s_mov_b64 exec, {regs[m]}")
            e(f"s_cbranch_execz {sk}")
            e(txt)
            e.label(sk)
        e(f"s_mov_b64 exec, {bm}")
        e("s_waitcnt vmcnt(0)")
        for m, (_, lst) in enumerate(loads):
            a = f"v{218+m}"
            e(f"v_xor_b32 {a}, {lst[0][0]}, {lst[0][1]}")
            for r, t in lst[1:]:
                e(f"v_bitop3_b32 {a}, {r}, {t}, {a} bitop3:0xbe")
        for m in range(len(loads)):
            e(f"v_and_b32 v{218+m}, {sM10}, v{218+m}")
        for m in range(len(loads)):
            e(f"v_cmp_ne_u32 {regs[m]}, 0, v{218+m}")
        e(f"s_or_b64 vcc, {regs[0]}, {regs[1]}")
        for m in range(2, len(loads)):
            e(f"s_or_b64 vcc, vcc, {regs[m]}")
        e("s_mov_b64 exec, -1")
        e(f"s_cbranch_scc1 {top}")

    def g4(self, base):
        return [(v(base + r), v(TG[r])) for r in range(4)]

    def reduce4(self, r):
        e = self.e
        e(f"v_permlane32_swap_b32 {v(r)}, {v(r+2)}")
        e(f"v_permlane32_swap_b32 {v(r+1)}, {v(r+3)}")
        e(f"v_add_f32 {v(r)}, {v(r)}, {v(r+2)}")
        e(f"v_add_f32 {v(r+1)}, {v(r+1)}, {v(r+3)}")
        e(f"v_permlane16_swap_b32 {v(r)}, {v(r+1)}")
        e(f"v_add_f32 {v(r)}, {v(r)}, {v(r+1)}")

    def c_loads(self, soff):
        e = self.e
        e(f"v_lshlrev_b32 v18, 1, {vL}")
        e(f"v_lshrrev_b32 v19, 3, {vL}")
        e(f"v_lshlrev_b32 v19, 1, v19")
        e(f"buffer_load_ushort v30, v18, {SS1}, {soff} offen")
        e(f"buffer_load_ushort v31, v19, {SS1}, {soff} offen offset:128")

    def silu2(self, X):
        e = self.e
        e(f"v_lshlrev_b32 v30, 16, v30")
        e(f"v_lshlrev_b32 v31, 16, v31")
        e(f"v_mul_f32 v33, 0xbfb8aa3b, v30")
        e(f"v_mul_f32 v34, 0xbfb8aa3b, v31")
        e("v_exp_f32 v33, v33")
        e("v_exp_f32 v34, v34")
        e("v_add_f32 v33, 1.0, v33")
        e("v_add_f32 v34, 1.0, v34")
        e("v_rcp_f32 v33, v33")
        e("v_rcp_f32 v34, v34")
        e("v_mul_f32 v30, v30, v33")
        e("v_mul_f32 v31, v31, v34")
        e("v_cvt_pk_bf16_f32 v30, v30, v30")
        e(f"v_cvt_pk_bf16_f32 {v(X+8)}, v31, v31")
        self.swz(X, "v30")

    def consts(self, perm=False):
        e = self.e
        e.c("constants")
        e(f"s_mov_b32 {sSEL}, 0x07060302")
        e(f"s_mov_b32 {sL2E}, 0x3fb8aa3b")
        e("s_mov_b32 s82, -1"); e("s_mov_b32 s83, 15")
        e("s_mov_b32 s84, 0x00ff00ff"); e("s_mov_b32 s85, 0x00ff00ff")
        e("s_mov_b32 s86, 0x0f0f0f0f"); e("s_mov_b32 s87, 0x0f0f0f0f")
        e("s_mov_b32 s88, 0xaaaaaaaa"); e("s_mov_b32 s89, 0xaaaaaaaa")
        e("s_mov_b32 s90, 0"); e("s_mov_b32 s91, -1")
        e(f"v_mov_b32 v16, 0xffff")
        e(f"v_mov_b32 v17, {sHI}")
        e(f"v_cndmask_b32 v16, v16, v17, {mODD}")
        e(f"v_bfe_u32 v17, {vL}, 1, 2")
        if perm:
            e(f"v_mov_b32 v18, 0x0c0c0302")
            e(f"v_mov_b32 v19, 0x03020c0c")
            e(f"v_cndmask_b32 v18, v18, v19, {mODD}")
            e(f"v_mov_b32 v19, 0x0c0c0c0c")
        for k in range(4):
            e(f"v_cmp_eq_u32 vcc, {k}, v17")
            e(f"v_cndmask_b32 {v(MK[k])}, 0, v16, vcc")
            if perm:
                e(f"v_cndmask_b32 {v(PS[k])}, v19, v18, vcc")
        e(f"v_and_b32 v16, 15, {vL}")
        e(f"v_lshlrev_b32 v16, 5, v16")
        e(f"v_and_b32 v17, 16, {vL}")
        e(f"v_lshrrev_b32 v18, 5, {vL}")
        e(f"v_lshlrev_b32 v18, 3, v18")
        e(f"v_add3_u32 {vBO}, v16, v17, v18")
        e(f"s_mul_i32 s8, {sW}, {ACCS}")
        e(f"v_add_u32 {vAA}, s8, {vBO}")
        e(f"v_lshrrev_b32 v16, 4, {vL}")
        e(f"v_mul_u32_u24 v17, {ACCS}, v16")
        e(f"v_and_b32 v18, 0xf0, {vL16}")
        e(f"v_add_u32 {vAR}, v17, v18")
        e(f"v_lshl_add_u32 {vCO}, v16, 2, v18")

    def tags(self, touch=()):
        e = self.e
        e.c("tags from epoch+1")
        e(f"v_add_co_u32 {v(vE0)}, vcc, 0x40100401, {v(vE0)}")
        e(f"v_addc_co_u32 {v(vE1)}, vcc, 0, {v(vE1)}, vcc")
        e(f"v_and_b32 {v(TG[0])}, {sM10}, {v(vE0)}")
        e(f"v_bfe_u32 {v(TG[1])}, {v(vE0)}, 10, 10")
        e(f"v_bfe_u32 {v(TG[2])}, {v(vE0)}, 20, 10")
        e(f"v_alignbit_b32 {v(TG[3])}, {v(vE1)}, {v(vE0)}, 30")
        e(f"v_and_b32 {v(TG[3])}, {sM10}, {v(TG[3])}")
        e(f"v_cndmask_b32 {vTa0}, {v(TG[0])}, {v(TG[2])}, {mODD}")
        e(f"v_cndmask_b32 {vTa1}, {v(TG[1])}, {v(TG[3])}, {mODD}")
        e(f"v_cndmask_b32 {vTb0}, {v(TG[0])}, {v(TG[2])}, {mHI}")
        e(f"v_cndmask_b32 {vTb1}, {v(TG[1])}, {v(TG[3])}, {mHI}")
        e(f"v_and_b32 v16, 16, {vL}")
        e(f"v_cmp_ne_u32 vcc, 0, v16")
        e(f"v_cndmask_b32 {vTs}, {vTb0}, {vTb1}, vcc")
        e(f"v_and_b32 v16, 3, {vL}")
        e(f"v_mul_u32_u24 v16, 10, v16")
        e(f"v_lshrrev_b64 v[18:19], v16, {v(vE0,2)}")
        e(f"v_and_b32 {vTq}, {sM10}, v18")
        e(f"v_bfe_u32 v16, {vL}, 3, 2")
        e(f"v_mul_u32_u24 v16, 10, v16")
        e(f"v_lshrrev_b64 v[18:19], v16, {v(vE0,2)}")
        e(f"v_and_b32 {vTg}, {sM10}, v18")
        if self.force is None:
            sk = self.lab("cen")
            e(f"s_cmp_lg_u32 {sW}, 2")
            e(f"s_cbranch_scc1 {sk}")
            e("s_getreg_b32 s8, hwreg(HW_REG_XCC_ID)")
            e("s_and_b32 s8, s8, 0xff")
            e("s_lshl_b32 s8, s8, 16")
            e(f"v_or_b32 v16, s8, {vTq}")
            e(f"s_lshl_b32 s8, {sX}, 5")
            e(f"s_add_u32 s8, s8, {sJ}")
            e(f"s_lshl_b32 s8, s8, 4")
            e(f"s_add_u32 s8, s8, {CEN}")
            e(f"v_lshlrev_b32 v17, 2, {vL}")
            e("s_mov_b64 exec, 15")
            e(f"buffer_store_dword v16, v17, {WS}, s8 offen sc1")
            e("s_mov_b64 exec, -1")
            e.label(sk)

    def touch(self, items):
        if not self.pretouch:
            return
        e = self.e
        sk = self.lab("tch")
        e(f"s_cmp_lg_u32 {sW}, 3")
        e(f"s_cbranch_scc1 {sk}")
        e(f"v_lshlrev_b32 v17, 7, {vL}")
        for fn, n in items:
            fn("s8")
            e(f"s_mov_b64 exec, {(1 << n) - 1}")
            e(f"buffer_load_dword {vDUM}, v17, {WS}, s8 offen sc1")
        e("s_mov_b64 exec, -1")
        e.label(sk)

    def off_p4(self, d):
        e = self.e
        e(f"s_lshl_b32 {d}, {sX}, 5")
        e(f"s_add_u32 {d}, {d}, {sJ}")
        e(f"s_mul_i32 {d}, {d}, 1152")
        e(f"s_add_u32 {d}, {d}, {P4}")

    def attention(self, early, thr, getflag, k0):
        e = self.e
        e.c("==== attention ====")
        if k0 < 8:
            self.kvloads(RK, vKO, SK, k0, min(8, k0 + 2), thr)
        e(f"s_lshl_b32 s9, {sX}, 11")
        e(f"s_lshr_b32 s10, {sJ}, 4")
        e(f"s_lshl_b32 s10, s10, 10")
        e(f"s_add_u32 s9, s9, s10")
        e(f"s_add_u32 s9, s9, {P3}")
        e(f"v_and_b32 v16, 8, {vL}")
        e(f"v_lshlrev_b32 v29, 2, v16")
        e(f"v_lshlrev_b32 v16, 6, v16")
        e(f"v_and_b32 v18, 3, {vL}")
        e(f"v_lshlrev_b32 v18, 7, v18")
        e(f"v_and_b32 v17, 0x30, {vL}")
        e(f"v_lshlrev_b32 v17, 1, v17")
        e(f"v_add3_u32 v28, v16, v17, v18")

        def issue():
            e(f"buffer_load_dwordx4 v[32:35], v28, {WS}, s9 offen sc1")
            e(f"buffer_load_dwordx4 v[36:39], v28, {WS}, s9 offen offset:16 sc1")
        e(f"s_lshl_b32 s8, {sW}, 2")
        e(f"v_add_u32 v30, s8, v29")
        e(f"v_and_b32 v16, 15, {vL}")
        e(f"v_lshlrev_b32 v16, 5, v16")
        e(f"v_and_b32 v17, 16, {vL}")
        e(f"v_and_b32 v18, 32, {vL}")
        e(f"v_lshlrev_b32 v18, 4, v18")
        e(f"v_add3_u32 v22, v16, v17, v18")
        e(f"s_mul_i32 s8, {sW}, 1152")
        e(f"v_add_u32 v22, s8, v22")
        e(f"v_and_b32 v16, 8, {vL}")
        e(f"v_add_u32 v31, s8, v16")
        e(f"v_lshrrev_b32 v16, 3, {vL}")
        e(f"v_mul_u32_u24 v24, 1152, v16")
        e(f"v_and_b32 v17, 0x70, {vL16}")
        e(f"s_lshl_b32 s8, {sW}, 7")
        e(f"v_add3_u32 v23, v24, v17, s8")
        e(f"v_lshrrev_b32 v16, 4, {vL}")
        e(f"v_lshl_add_u32 v20, v16, 2, v17")
        self.off_p4("s12")
        e(f"s_add_u32 s13, s12, s8")
        self.kvloads(RK, vKO, SK, min(8, k0 + 2), 8, thr)
        issue()
        self.kvloads(RV, vVO, SV, 0, thr - 1, thr + 2)
        self.kvloads(RV, vVO, SV, thr - 1, thr, thr)
        chk = self.g4(32) + self.g4(36)
        e(f"v_xor_b32 v21, {chk[0][0]}, {chk[0][1]}")
        for r, t in chk[1:]:
            e(f"v_bitop3_b32 v21, {r}, {t}, v21 bitop3:0xbe")
        e(f"v_and_b32 v21, {sM10}, v21")
        e(f"v_cmp_ne_u32 vcc, 0, v21")
        ok = self.lab("qok")
        e(f"s_cbranch_vccz {ok}")
        self.stamp(13)
        self.poll(issue, [(None, chk)])
        e.label(ok)
        self.stamp(5)
        vnext = [thr]

        def vstep():
            if vnext[0] < 8:
                e(f"s_waitcnt vmcnt({thr})")
                self.kvloads(RV, vVO, SV, vnext[0], vnext[0] + 1)
                vnext[0] += 1
        vstep()
        if getflag and self.force is None:
            e(f"v_readfirstlane_b32 {sLOC}, v32")
            e(f"s_and_b32 {sLOC}, {sLOC}, 0x8000")
        for k in range(4):
            e(f"v_perm_b32 {v(32+k)}, {v(33+2*k)}, {v(32+2*k)}, {sSEL}")
        for k in range(4):
            e(f"v_cndmask_b32 {v(36+k)}, {v(32+k)}, 0, {mT2}")
        for k in range(4):
            e(f"v_cndmask_b32 {v(32+k)}, 0, {v(32+k)}, {mT2}")
        for u in range(4):
            e(f"v_mfma_f32_16x16x32_bf16 {v(40+4*u,4)}, {v(RK+8*u,4)}, v[32:35], 0")
        for u in range(4):
            e(f"v_mfma_f32_16x16x32_bf16 {v(40+4*u,4)}, {v(RK+8*u+4,4)}, v[36:39], {v(40+4*u,4)}")
        for u in range(4):
            e(f"v_mov_b32_dpp {v(56+u)}, {v(40+4*u)} quad_perm:[0,0,0,0] {DPF}")
        for i in range(1, 4):
            for u in range(4):
                e(f"v_add_f32_dpp {v(56+u)}, {v(40+4*u+i)}, {v(56+u)} quad_perm:[{i},{i},{i},{i}] {DPF}")
        self.rb2("v56", "v57", "v60")
        self.rb2("v58", "v59", "v61")
        for u in range(4):
            e(f"v_mul_f32 {v(56+u)}, 0x3db504f3, {v(56+u)}")
        self.rb2("v56", "v57", "v60")
        self.rb2("v58", "v59", "v61")
        e("v_max3_f32 v60, v56, v57, v58")
        e("v_max_f32 v60, v60, v59")
        e(f"v_max_f32_dpp v60, v60, v60 row_half_mirror {DPF}")
        e("v_mov_b32 v61, v60")
        e("v_permlane16_swap_b32 v60, v61")
        e("v_max_f32 v60, v60, v61")
        e("v_mov_b32 v61, v60")
        e("v_permlane32_swap_b32 v60, v61")
        e("v_max_f32 v60, v60, v61")
        e("s_mov_b64 exec, 0x101")
        e(f"ds_write_b32 v30, v60 offset:{L_MX}")
        e("s_mov_b64 exec, -1")
        vstep()
        e("s_waitcnt lgkmcnt(0)")
        e("s_barrier")
        e(f"ds_read_b128 v[40:43], v29 offset:{L_MX}")
        e(f"ds_read_b128 v[44:47], v29 offset:{L_MX+16}")
        vstep()
        e("s_waitcnt lgkmcnt(0)")
        e("v_max3_f32 v60, v40, v41, v42")
        e("v_max3_f32 v61, v43, v44, v45")
        e("v_max3_f32 v60, v60, v46, v47")
        e("v_max_f32 v60, v60, v61")
        for u in range(4):
            e(f"v_sub_f32 {v(56+u)}, {v(56+u)}, v60")
        for u in range(4):
            e(f"v_mul_f32 {v(56+u)}, {sL2E}, {v(56+u)}")
        for u in range(4):
            e(f"v_exp_f32 {v(56+u)}, {v(56+u)}")
        for u in range(4):
            e(f"v_cvt_pk_bf16_f32 {v(56+u)}, {v(56+u)}, {v(56+u)}")
        dp = DPF + " bound_ctrl:0"
        for t in range(8):
            p = v(56 + (t >> 1))
            a = RK + 4 * t
            for k in range(4):
                need_shift = (k >= 2) if (t & 1) == 0 else (k < 2)
                if need_shift:
                    sh = "row_shr:4" if (t & 1) == 0 else "row_shl:4"
                    e(f"v_and_b32_dpp {v(a+k)}, {p}, {v(MK[k])} {sh} {dp}")
                else:
                    e(f"v_and_b32 {v(a+k)}, {p}, {v(MK[k])}")
            if t == 3:
                vstep()
        for u in range(4):
            e(f"v_and_b32 {v(44+u)}, {sHI}, {v(56+u)}")
        e("v_add_f32 v44, v44, v45")
        e("v_add_f32 v46, v46, v47")
        e("v_add_f32 v61, v44, v46")
        e(f"v_add_f32_dpp v61, v61, v61 row_half_mirror {DPF}")
        e("v_mov_b32 v44, v61")
        e("v_permlane16_swap_b32 v61, v44")
        e("v_add_f32 v61, v61, v44")
        e("v_mov_b32 v44, v61")
        e("v_permlane32_swap_b32 v61, v44")
        e("v_add_f32 v61, v61, v44")
        e(f"s_cmp_eq_u32 {sW}, 0")
        e("s_cselect_b32 s10, -1, 0")
        e("v_and_b32 v60, s10, v60")
        e("s_mov_b64 exec, 0x101")
        e(f"ds_write_b64 v31, v[60:61] offset:{L_ACCO+1024}")
        e("s_mov_b64 exec, -1")
        while vnext[0] < 8:
            vstep()
        self.stamp(6)
        ne = 0
        for t in range(8):
            e(f"s_waitcnt vmcnt({7-t+ne})")
            c = "0" if t == 0 else "v[40:43]"
            e(f"v_mfma_f32_16x16x32_bf16 v[40:43], {v(RK+4*t,4)}, {v(RV+4*t,4)}, {c}")
            ne += early(ne) if 7 - thr <= t < 7 else 0
        self.stamp(7)
        e(f"ds_write_b128 v22, v[40:43] offset:{L_ACCO}")
        e("s_waitcnt lgkmcnt(0)")
        e("s_barrier")
        e(f"ds_read_b128 v[40:43], v23 offset:{L_ACCO}")
        e(f"ds_read_b128 v[44:47], v24 offset:{L_ACCO+1024}")
        e("s_waitcnt lgkmcnt(1)")
        self.reduce4(40)
        e(f"v_add_f32_dpp v40, v40, v40 row_ror:8 {DPF}")
        e(f"v_bfi_b32 v40, {sM10}, {vTs}, v40")
        e(f"s_mov_b64 exec, {mJ8}")
        self.lstore(f"buffer_store_dword v40, v20, {WS}, s13 offen")
        e("s_mov_b64 exec, -1")
        sk = self.lab("p4")
        e(f"s_cmp_lg_u32 {sW}, 7")
        e(f"s_cbranch_scc1 {sk}")
        e("s_waitcnt lgkmcnt(0)")
        self.reduce4(44)
        e(f"v_add_f32_dpp v44, v44, v44 row_ror:8 {DPF}")
        e(f"v_bfi_b32 v44, {sM10}, {vTs}, v44")
        e("s_mov_b32 s10, 0x00010001"); e("s_mov_b32 s11, 0x00010001")
        e("s_mov_b64 exec, s[10:11]")
        self.lstore(f"buffer_store_dword v44, v20, {WS}, s12 offen offset:1024")
        e("s_mov_b64 exec, -1")
        e.label(sk)
        e("s_waitcnt lgkmcnt(0)")
        self.stamp(8)
        return ne

    def build(self):
        e = self.e
        e("s_cmp_ge_u32 s2, 256")
        e("s_cbranch_scc1 L_end")
        e("s_load_dwordx16 s[16:31], s[0:1], 0")
        e("s_load_dwordx8 s[32:39], s[0:1], 64")
        e("s_load_dwordx4 s[40:43], s[0:1], 96")
        e("v_lshrrev_b32 v16, 6, v0")
        e("v_and_b32 v0, 63, v0")
        e(f"v_readfirstlane_b32 {sW}, v16")
        e(f"v_lshlrev_b32 {vL16}, 4, v0")
        e(f"s_and_b32 {sX}, s2, 7")
        e(f"s_lshr_b32 {sJ}, s2, 3")
        if self.stamps:
            e(f"v_mov_b32 {vST}, 0")
            e("s_memrealtime s[94:95]")
        if self.prefetch:
            sk = self.lab("pf")
            e(f"s_cmp_lg_u32 {sW}, 7")
            e(f"s_cbranch_scc1 {sk}")
            e("s_getpc_b64 s[8:9]")
            e.label("L_pc")
            e(f"v_lshlrev_b32 v16, 7, v0")
            e.raw("    .set CODE_LEFT, L_code_end - L_pc")
            for k in range(3):
                e(f"v_cmp_gt_u32 vcc, CODE_LEFT-4, v16")
                e("s_and_saveexec_b64 s[10:11], vcc")
                e(f"s_cbranch_execz L_pfx{k}")
                e(f"global_load_dword {vDUM}, v16, s[8:9]")
                e.label(f"L_pfx{k}")
                e("s_mov_b64 exec, -1")
                e("v_add_u32 v16, 0x2000, v16")
            e.label(sk)
        e(f"s_mov_b32 {sM10}, 0x3ff")
        e(f"s_mov_b32 {sHI}, 0xffff0000")
        e(f"s_mov_b32 {sLOC}, 0")
        e(f"s_lshl_b32 s12, {sX}, 1")
        e(f"s_lshr_b32 s13, {sJ}, 4")
        e(f"s_add_u32 s12, s12, s13")
        e(f"s_lshl_b32 s12, s12, 24")
        e(f"s_and_b32 s13, {sJ}, 15")
        e(f"s_lshl_b32 s13, s13, 16")
        e(f"s_add_u32 s12, s12, s13")
        e(f"s_add_u32 s12, s12, {61440*256}")
        e(f"s_lshl_b32 s8, {sW}, 10")
        e(f"v_and_b32 v16, 15, {vL}")
        e(f"v_lshlrev_b32 v16, 6, v16")
        e(f"v_and_b32 v17, 0x30, {vL}")
        e(f"v_add3_u32 {vKO}, v16, v17, s8")
        e(f"v_add_u32 {vVO}, s8, {vL16}")
        e("s_waitcnt lgkmcnt(0)")
        if self.stamps:
            e(f"v_writelane_b32 {vST}, s94, 0")
        self.srd(WS, "s42", "s43", WS_BYTES)
        e(f"buffer_load_dwordx2 {v(vE0,2)}, off, {WS}, 0 sc1")
        e("s_add_u32 s48, s18, s12"); e("s_addc_u32 s49, s19, 0"); e("s_mov_b32 s50, 0x10000"); e("s_mov_b32 s51, 0x20000")
        e("s_add_u32 s52, s20, s12"); e("s_addc_u32 s53, s21, 0"); e("s_mov_b32 s54, 0x10000"); e("s_mov_b32 s55, 0x20000")
        e(f"s_cmp_ge_u32 {sJ}, 27")
        e("s_cbranch_scc1 L_MR")
        e(f"s_cmp_ge_u32 {sJ}, 18")
        e("s_cbranch_scc1 L_WD")
        self.role_gu()
        self.role_wd()
        self.role_mr()
        e.label("L_fin")
        if self.stamps:
            e(f"s_lshl_b32 s8, s2, 3")
            e(f"s_add_u32 s8, s8, {sW}")
            e(f"s_lshl_b32 s8, s8, 8")
            e(f"s_add_u32 s8, s8, {STAMP}")
            e(f"v_lshlrev_b32 v16, 2, {vL}")
            e(f"buffer_store_dword {vST}, v16, {WS}, s8 offen")
        e.label("L_end")
        return e

    def role_mr(self):
        e = self.e
        thr = self.thr
        e.label("L_MR")
        e.c("================ MR ================")
        e(f"s_sub_u32 {sR}, {sJ}, 27")
        e(f"s_lshl_b32 {sR}, {sR}, 3")
        e(f"s_add_u32 {sR}, {sR}, {sX}")

        def off_p9(d):
            e(f"s_mul_i32 {d}, {sX}, 2304")
            e(f"s_add_u32 {d}, {d}, {P9}")
        e(f"s_cmp_ge_u32 {sR}, 36")
        e("s_cbranch_scc1 L_MR_idle")
        self.srd(SS1, "s34", "s35", 1152)
        self.srd(SW1, "s36", "s37", 576 * 6912)
        e(f"s_mul_i32 s8, {sW}, 144")
        self.c_loads("s8")
        self.voff9(6912)
        e(f"s_mul_i32 s14, {sW}, {72*6912}")
        e(f"s_lshl_b32 s8, {sR}, 7")
        e(f"s_add_u32 s14, s14, s8")
        e(f"s_add_u32 s14, s14, {18*128}")
        self.wloads(RW1, SW1, "s14", 6912, 0, 4)
        self.consts()
        e("s_waitcnt vmcnt(4)")
        self.tags()
        self.touch([(self.off_p4, 9), (off_p9, 18)])
        self.silu2(48)
        self.wloads(RW1, SW1, "s14", 6912, 4, 9, thr)
        self.kvloads(RK, vKO, SK, 0, thr + 1, thr)
        self.core(48, RW1, 9, 40, 32, lgkm=8)
        self.acc_add(40, L_ACC1)
        e(f"s_lshl_b32 s8, {sR}, 8")
        e(f"s_add_u32 s8, s8, {P6}")
        self.acc_publish(L_ACC1, "s8", False, True)
        self.stamp(4)
        self.kvloads(RK, vKO, SK, thr + 1, 6, thr)
        e("s_branch L_MR_att")
        e.label("L_MR_idle")
        self.kvloads(RK, vKO, SK, 0, 4)
        self.consts()
        e("s_waitcnt vmcnt(4)")
        self.tags()
        self.touch([(self.off_p4, 9), (off_p9, 18)])
        self.kvloads(RK, vKO, SK, 4, 6, thr)
        e.label("L_MR_att")
        self.attention(lambda n: 0, thr, True, 6)
        e(f"s_cmp_lg_u32 {sJ}, 31")
        e("s_cbranch_scc1 L_fin")
        e.c("================ LN ================")
        self.srd(SS2, "s16", "s17", 1152)
        self.srd(SS1, "s38", "s39", 1152)
        e(f"s_mul_i32 s8, {sW}, 288")
        e(f"s_add_u32 s9, s8, {P6}")
        e(f"s_add_u32 s10, s9, 4608")
        e(f"s_lshr_b32 s11, s8, 1")
        e(f"v_lshlrev_b32 v26, 3, {vL}")
        e(f"v_lshlrev_b32 v29, 2, {vL}")
        e(f"buffer_load_dword v62, v29, {SS2}, s11 offen")
        e(f"buffer_load_dword {vDUM}, v29, {SS1}, s11 offen")

        def issue6():
            e(f"s_mov_b64 exec, {m36}")
            e(f"buffer_load_dwordx2 v[56:57], v26, {WS}, s9 offen sc1")
            e(f"buffer_load_dwordx2 v[58:59], v26, {WS}, s9 offen offset:2304 sc1")
            e(f"buffer_load_dwordx2 v[60:61], v26, {WS}, s10 offen sc1")
            e(f"buffer_load_dwordx2 v[54:55], v26, {WS}, s10 offen offset:2304 sc1")
            e("s_mov_b64 exec, -1")
        self.poll(issue6, [(m36, [(v(54+r), vTa0 if r % 2 == 0 else vTa1) for r in range(8)])])
        for r in range(8):
            e(f"v_and_b32 {v(54+r)}, {sHI}, {v(54+r)}")
        e("v_add_f32 v60, 1.0, v60")
        e("v_add_f32 v61, 1.0, v61")
        self.rb2("v60", "v61", "v16")
        e(f"v_and_b32 v63, {sHI}, v62")
        e(f"v_lshlrev_b32 v62, 16, v62")
        self.stamp(9)
        e(f"v_and_b32 v16, 1, {vL}")
        e(f"v_mul_u32_u24 v16, {4*2304}, v16")
        e(f"v_lshrrev_b32 v17, 1, {vL}")
        e(f"v_lshl_add_u32 v27, v17, 4, v16")
        e(f"s_add_u32 s9, s8, {P5}")
        e(f"s_add_u32 s10, s9, 4608")
        e(f"v_lshrrev_b32 v31, 5, {vL}")
        e(f"v_lshlrev_b32 v31, 2, v31")
        e(f"s_lshl_b32 s12, {sW}, 3")
        e(f"v_add_u32 v31, s12, v31")
        e("s_mov_b32 s12, 1"); e("s_mov_b32 s13, 1")
        off_p9("s14")
        e("s_add_u32 s14, s14, s8")
        e("v_mov_b32 v16, 0")

        def issue5():
            e(f"s_mov_b64 exec, {m36}")
            e(f"buffer_load_dwordx4 v[32:35], v27, {WS}, s9 offen sc1")
            e(f"buffer_load_dwordx4 v[36:39], v27, {WS}, s9 offen offset:2304 sc1")
            e(f"buffer_load_dwordx4 v[40:43], v27, {WS}, s10 offen sc1")
            e(f"buffer_load_dwordx4 v[44:47], v27, {WS}, s10 offen offset:2304 sc1")
            e("s_mov_b64 exec, -1")

        def sum8():
            e("v_pk_add_f32 v[32:33], v[32:33], v[36:37]")
            e("v_pk_add_f32 v[34:35], v[34:35], v[38:39]")
            e("v_pk_add_f32 v[40:41], v[40:41], v[44:45]")
            e("v_pk_add_f32 v[42:43], v[42:43], v[46:47]")
            e("v_pk_add_f32 v[32:33], v[32:33], v[40:41]")
            e("v_pk_add_f32 v[34:35], v[34:35], v[42:43]")
            for r in range(4):
                e(f"v_add_f32_dpp {v(36+r)}, {v(32+r)}, {v(32+r)} quad_perm:[1,0,3,2] {DPF}")
            e(f"v_cndmask_b32 v32, v36, v38, {mODD}")
            e(f"v_cndmask_b32 v33, v37, v39, {mODD}")
        l5 = [(f"buffer_load_dwordx4 {v(32+4*m,4)}, v27, {WS}, {so} offen offset:{off} sc1", self.g4(32+4*m))
              for m, (so, off) in enumerate([("s9", 0), ("s9", 2304), ("s10", 0), ("s10", 2304)])]
        self.mpoll(l5, m36)
        self.stamp(10)
        sum8()
        e("v_fma_f32 v62, v32, v56, v62")
        e("v_fma_f32 v63, v33, v57, v63")
        e("v_add_f32 v36, v62, v63")
        e("v_mul_f32 v37, v62, v62")
        e("v_fmac_f32 v37, v63, v63")
        e(f"v_cndmask_b32 v36, 0, v36, {m36}")
        e(f"v_cndmask_b32 v37, 0, v37, {m36}")
        e("v_permlane32_swap_b32 v36, v37")
        e("v_add_f32 v36, v36, v37")
        e("v_mov_b32 v37, v36")
        e("v_permlane16_swap_b32 v36, v37")
        e("v_add_f32 v36, v36, v37")
        for r in (8, 4, 2, 1):
            e(f"v_add_f32_dpp v36, v36, v36 row_ror:{r} {DPF}")
        e("s_mov_b64 exec, s[12:13]")
        e(f"ds_write_b32 v31, v36 offset:{L_LNS}")
        e("s_mov_b64 exec, -1")
        e("s_waitcnt lgkmcnt(0)")
        e("s_barrier")
        for r in range(4):
            e(f"ds_read_b128 {v(36+4*r,4)}, v16 offset:{L_LNS+16*r}")
        e("s_waitcnt lgkmcnt(0)")
        e("v_pk_add_f32 v[36:37], v[36:37], v[38:39]")
        e("v_pk_add_f32 v[40:41], v[40:41], v[42:43]")
        e("v_pk_add_f32 v[44:45], v[44:45], v[46:47]")
        e("v_pk_add_f32 v[48:49], v[48:49], v[50:51]")
        e("v_pk_add_f32 v[36:37], v[36:37], v[40:41]")
        e("v_pk_add_f32 v[44:45], v[44:45], v[48:49]")
        e("v_pk_add_f32 v[36:37], v[36:37], v[44:45]")
        e("v_mul_f32 v36, 0x3ae38e39, v36")
        e("v_mul_f32 v37, 0x3ae38e39, v37")
        e("v_fma_f32 v37, -v36, v36, v37")
        e("v_max_f32 v37, 0, v37")
        e("v_add_f32 v37, 0x3727c5ac, v37")
        e("v_rsq_f32 v37, v37")
        e("v_sub_f32 v32, v62, v36")
        e("v_sub_f32 v33, v63, v36")
        e("v_mul_f32 v32, v32, v60")
        e("v_mul_f32 v33, v33, v61")
        e("v_fma_f32 v32, v32, v37, v58")
        e("v_fma_f32 v33, v33, v37, v59")
        e("v_cvt_pk_bf16_f32 v32, v32, v32")
        e("v_cvt_pk_bf16_f32 v33, v33, v33")
        e(f"v_bfi_b32 v32, {sM10}, {vTa0}, v32")
        e(f"v_bfi_b32 v33, {sM10}, {vTa1}, v33")
        e(f"s_mov_b64 exec, {m36}")
        self.lstore(f"buffer_store_dwordx2 v[32:33], v26, {WS}, s14 offen")
        e("s_mov_b64 exec, -1")
        self.stamp(11)
        e.c("---- final: wave x of the LN workgroup of slot x ----")
        e(f"s_cmp_lg_u32 {sW}, {sX}")
        e("s_cbranch_scc1 L_fin")
        e(f"s_add_u32 s9, s8, {P8}")
        e(f"s_add_u32 s10, s9, 4608")
        self.mpoll(l5, m36)
        sum8()
        e("v_fma_f32 v32, v32, v54, v62")
        e("v_fma_f32 v33, v33, v55, v63")
        e("v_cvt_pk_bf16_f32 v32, v32, v33")
        e(f"s_mov_b64 exec, {m36}")
        e(f"buffer_store_dword v32, v29, {SS1}, s11 offen")
        e("s_mov_b64 exec, -1")
        self.stamp(12)
        e(f"s_cmp_lg_u32 {sX}, 0")
        e("s_cbranch_scc1 L_fin")
        e("s_mov_b64 exec, 1")
        e(f"buffer_store_dwordx2 {v(vE0,2)}, off, {WS}, 0")
        e("s_mov_b64 exec, -1")

    def role_wd(self):
        e = self.e
        thr = self.thr
        e.label("L_WD")
        e.c("================ WD ================")
        e(f"s_sub_u32 {sR}, {sJ}, 18")
        self.srd(SW1, "s24", "s25", 4096 * 1152)
        self.srd(SW2, "s32", "s33", 4608 * 1152)
        e(f"v_and_b32 v16, 8, {vL}")
        e(f"v_lshlrev_b32 v16, 2, v16")
        e(f"v_lshrrev_b32 v17, 4, {vL}")
        e(f"v_add_u32 v16, v16, v17")
        e(f"v_mul_u32_u24 v16, 1152, v16")
        e(f"v_and_b32 v17, 0x70, {vL16}")
        e(f"v_add_u32 {vWA}, v16, v17")
        e(f"s_lshl_b32 s14, {sX}, 3")
        e(f"s_add_u32 s14, s14, {sW}")
        e(f"s_mul_i32 s15, s14, {72*1152}")
        e(f"s_mul_i32 s14, s14, {64*1152}")
        e(f"s_lshl_b32 s8, {sR}, 7")
        e(f"s_add_u32 s14, s14, s8")
        e(f"s_add_u32 s15, s15, s8")
        self.wloads(RW1, SW1, "s14", 4 * 1152, 0, 4)
        self.consts()
        e(f"s_waitcnt vmcnt(4)")
        self.tags()
        self.touch([(self.off_p4, 9)])
        self.wloads(RW1, SW1, "s14", 4 * 1152, 4, 8, thr)
        self.voff9(1152)
        ne = self.n_early_wd
        self.wloads(RW2, SW2, "s15", 1152, 0, ne, thr)
        self.attention(lambda n: 0, thr, True, 0)
        e.c("---- combine: gather P4 ----")
        e(f"s_lshl_b32 s8, {sX}, 5")
        e(f"s_lshr_b32 s9, {sW}, 2")
        e(f"s_lshl_b32 s9, s9, 4")
        e(f"s_add_u32 s8, s8, s9")
        e(f"s_mul_i32 s8, s8, 1152")
        e(f"s_add_u32 s8, s8, {P4}")
        e(f"s_and_b32 s9, {sW}, 3")
        e(f"s_lshl_b32 s9, s9, 8")
        e(f"s_add_u32 s9, s9, s8")
        e(f"v_lshrrev_b32 v16, 4, {vL}")
        e(f"v_mul_u32_u24 v17, {4*1152}, v16")
        e(f"v_and_b32 v18, 0xf0, {vL16}")
        e(f"v_add_u32 v26, v17, v18")
        e(f"v_lshl_add_u32 v17, v16, 2, {vL}")
        e(f"v_and_b32 v17, 15, v17")
        e(f"v_mul_u32_u24 v27, 1152, v17")
        e(f"s_mul_i32 s10, {sX}, 2304")
        e(f"s_lshl_b32 s11, {sR}, 8")
        e(f"s_add_u32 s13, s10, s11")
        e(f"s_add_u32 s12, s13, {P5}")
        e(f"s_bitcmp1_b32 {sW}, 1")
        e("s_cselect_b64 s[10:11], -1, 0")

        self.mpoll([(f"buffer_load_dwordx4 v[48:51], v27, {WS}, s8 offen offset:1024 sc1", self.g4(48))]
                   + [(f"buffer_load_dwordx4 {v(32+4*m,4)}, v26, {WS}, s9 offen offset:{1152*m} sc1", self.g4(32+4*m)) for m in range(4)])
        self.stamp(9)
        e("v_cndmask_b32 v48, v48, v50, s[10:11]")
        e("v_cndmask_b32 v49, v49, v51, s[10:11]")
        e(f"v_and_b32 v48, {sHI}, v48")
        e(f"v_max_f32_dpp v50, v48, v48 row_ror:8 {DPF}")
        for r in (4, 2, 1):
            e(f"v_max_f32_dpp v50, v50, v50 row_ror:{r} {DPF}")
        e("v_sub_f32 v48, v48, v50")
        e(f"v_mul_f32 v48, {sL2E}, v48")
        e("v_exp_f32 v48, v48")
        e("v_mul_f32 v49, v48, v49")
        seq = [(m, r) for m in range(4) for r in range(4)]
        rr = [8, 4, 2, 1]
        for n, (m, r) in enumerate(seq):
            if n % 4 == 0:
                e(f"v_add_f32_dpp v49, v49, v49 row_ror:{rr[n//4]} {DPF}")
            op = "v_mul_f32_dpp" if m == 0 else "v_fmac_f32_dpp"
            e(f"{op} {v(52+r)}, v48, {v(32+4*m+r)} row_newbcast:{m} {DPF}")
        e("v_rcp_f32 v49, v49")
        self.reduce4(52)
        e("v_mul_f32 v52, v52, v49")
        e("v_cvt_pk_bf16_f32 v52, v52, v52")
        self.swz(56, "v52")
        self.core(56, RW1, 8, 40, 32, lgkm=8)
        self.acc_add(40, L_ACC1)
        self.acc_publish(L_ACC1, "s12", False, False)
        self.stamp(10)
        e("s_barrier")
        self.wloads(RW2, SW2, "s15", 1152, ne, 9)
        e.c("---- gather P7, gelu ----")
        e(f"s_mul_i32 s8, {sX}, 4608")
        e(f"s_mul_i32 s9, {sW}, 288")
        e(f"s_add_u32 s8, s8, s9")
        e(f"s_add_u32 s8, s8, {P7}")
        e(f"v_lshlrev_b32 v26, 2, {vL}")
        e(f"v_lshrrev_b32 v27, 3, {vL}")
        e(f"v_lshlrev_b32 v27, 2, v27")
        e(f"v_mov_b32 v38, 0x3d372713")
        e(f"s_add_u32 s12, s13, {P8}")

        def issue2():
            e(f"buffer_load_dword v32, v26, {WS}, s8 offen sc1")
            e(f"buffer_load_dword v33, v27, {WS}, s8 offen offset:256 sc1")
            e(f"buffer_load_dword v34, v26, {WS}, s8 offen offset:2304 sc1")
            e(f"buffer_load_dword v35, v27, {WS}, s8 offen offset:2560 sc1")
        self.poll(issue2, [(None, [("v32", vTq), ("v33", vTg), ("v34", vTq), ("v35", vTg)])])
        self.stamp(11)
        for r in range(4):
            e(f"v_and_b32 {v(32+r)}, {sHI}, {v(32+r)}")
        pr = (("v32", "v36"), ("v33", "v37"))
        for a, t in pr:
            e(f"v_mul_f32 {t}, {a}, {a}")
        for a, t in pr:
            e(f"v_fma_f32 {t}, {t}, v38, 1.0")
        for a, t in pr:
            e(f"v_mul_f32 {t}, {t}, {a}")
        for a, t in pr:
            e(f"v_mul_f32 {t}, 0xc0135761, {t}")
        e("v_exp_f32 v36, v36"); e("v_exp_f32 v37, v37")
        e("v_mul_f32 v32, v32, v34"); e("v_mul_f32 v33, v33, v35")
        e("v_add_f32 v36, 1.0, v36"); e("v_add_f32 v37, 1.0, v37")
        e("v_rcp_f32 v36, v36"); e("v_rcp_f32 v37, v37")
        e("v_mul_f32 v32, v32, v36"); e("v_mul_f32 v33, v33, v37")
        e("v_cvt_pk_bf16_f32 v47, v32, v32")
        self.swz(48, "v47")
        e("v_cvt_pk_bf16_f32 v56, v33, v33")
        self.core(48, RW2, 9, 40, 32, lgkm=8, order=[8, 0, 1, 2, 3, 4, 5, 6, 7])
        self.acc_add(40, L_ACC2)
        self.acc_publish(L_ACC2, "s12", False, False)
        self.stamp(12)
        e("s_branch L_fin")

    def role_gu(self):
        e = self.e
        thr = self.thr_gu
        e.c("================ GU ================")
        e(f"s_mov_b32 {sR}, {sJ}")
        self.srd(SW2, "s22", "s23", 576 * 8192)
        w0 = self.lab("w0")
        e(f"s_cmp_lg_u32 {sW}, 0")
        e(f"s_cbranch_scc1 {w0}")
        self.srd(SS1, "s34", "s35", 1152)
        self.srd(SW1, "s36", "s37", 576 * 6912)
        e(f"s_mul_i32 s8, {sX}, 144")
        self.c_loads("s8")
        self.voff9(6912)
        e(f"s_mul_i32 s14, {sX}, {72*6912}")
        e(f"s_lshl_b32 s8, {sR}, 7")
        e(f"s_add_u32 s14, s14, s8")
        self.wloads(RW1, SW1, "s14", 6912, 0, 9)
        e.label(w0)
        w1 = self.lab("w1")
        e(f"s_cmp_lg_u32 {sW}, 1")
        e(f"s_cbranch_scc1 {w1}")
        self.srd(SS2, "s16", "s17", 1152)
        e(f"buffer_load_dwordx4 v[32:35], {vL16}, {SS2}, 0 offen")
        e(f"buffer_load_dwordx4 v[36:39], {vL16}, {SS2}, 0 offen offset:1024")
        e(f"v_and_b32 v16, 7, {vL}")
        e(f"v_lshrrev_b32 v17, 4, {vL}")
        e(f"v_lshl_add_u32 v28, v16, 2, v17")
        e(f"v_lshlrev_b32 v16, 1, v28")
        e(f"s_lshl_b32 s8, {sR}, 6")
        e(f"buffer_load_ushort v40, v16, {SS2}, s8 offen")
        e.label(w1)
        e(f"v_lshrrev_b32 v16, 3, {vL}")
        e(f"v_lshlrev_b32 v16, 15, v16")
        e(f"v_and_b32 v17, 0x70, {vL16}")
        e(f"v_add_u32 {vWA}, v16, v17")
        e(f"s_lshl_b32 s14, {sR}, 18")
        e(f"s_lshl_b32 s8, {sX}, 10")
        e(f"s_add_u32 s14, s14, s8")
        e(f"s_lshl_b32 s8, {sW}, 7")
        e(f"s_add_u32 s14, s14, s8")
        self.wloads(RW2, SW2, "s14", 8192, 0, 4)
        self.consts(perm=True)
        n0 = self.lab("n0")
        e(f"s_cmp_lg_u32 {sW}, 0")
        e(f"s_cbranch_scc1 {n0}")
        e("s_waitcnt vmcnt(13)")
        self.silu2(48)
        self.tags()
        self.core(48, RW1, 9, 40, 32, vm_after=4, lgkm=8)
        e(f"s_lshl_b32 s8, {sR}, 3")
        e(f"s_add_u32 s8, s8, {sX}")
        e(f"s_lshl_b32 s8, s8, 8")
        e(f"s_add_u32 s8, s8, {P1}")
        self.bsum_store(40, "s8", False)
        self.stamp(1)
        self.kvloads(RK, vKO, SK, 0, self.kpre, thr)
        e("s_branch L_GU_b1")
        e.label(n0)
        e("s_waitcnt vmcnt(4)")
        self.tags()

        def off_p2(d):
            e(f"s_mul_i32 {d}, {sX}, 18")
            e(f"s_add_u32 {d}, {d}, {sR}")
            e(f"s_lshl_b32 {d}, {d}, 11")
            e(f"s_add_u32 {d}, {d}, {P2}")

        def off_p3(d):
            e(f"s_lshl_b32 {d}, {sX}, 4")
            e(f"s_add_u32 {d}, {d}, {sR}")
            e(f"s_lshl_b32 {d}, {d}, 7")
            e(f"s_add_u32 {d}, {d}, {P3}")

        def off_p7(d):
            e(f"s_mul_i32 {d}, {sX}, 18")
            e(f"s_add_u32 {d}, {d}, {sR}")
            e(f"s_lshl_b32 {d}, {d}, 8")
            e(f"s_add_u32 {d}, {d}, {P7}")
        self.touch([(off_p2, 16), (off_p3, 1), (self.off_p4, 9), (off_p7, 2)])
        kp1 = min(2, self.kpre)
        self.kvloads(RK, vKO, SK, 0, kp1, thr)
        e(f"s_cmp_eq_u32 {sW}, 1")
        e(f"s_cbranch_scc1 L_GU_w1")
        self.kvloads(RK, vKO, SK, kp1, self.kpre, thr)
        e(f"s_branch L_GU_b1")
        e.label("L_GU_w1")
        e("v_mov_b32 v41, 0x3f803f80")
        e("v_mov_b32 v42, 0")
        e("v_mov_b32 v43, 0")
        for r in range(8):
            e(f"v_dot2_f32_bf16 v42, {v(32+r)}, v41, v42")
        for r in range(8):
            e(f"v_dot2_f32_bf16 v43, {v(32+r)}, {v(32+r)}, v43")
        e("v_permlane32_swap_b32 v42, v43")
        e("v_add_f32 v42, v42, v43")
        e("v_mov_b32 v43, v42")
        e("v_permlane16_swap_b32 v42, v43")
        e("v_add_f32 v42, v42, v43")
        for r in (8, 4, 2, 1):
            e(f"v_add_f32_dpp v42, v42, v42 row_ror:{r} {DPF}")
        e("v_mov_b32 v43, v42")
        e("v_permlane32_swap_b32 v42, v43")
        S1, S2, mb, rinv = "v42", "v43", "v44", "v45"
        e(f"v_mul_f32 {S1}, 0x3ae38e39, {S1}")
        e(f"v_mul_f32 {S2}, 0x3ae38e39, {S2}")
        e(f"v_fma_f32 {S2}, -{S1}, {S1}, {S2}")
        e(f"v_max_f32 {S2}, 0, {S2}")
        e(f"v_cvt_pk_bf16_f32 {rinv}, {S1}, {S2}")
        e(f"v_lshlrev_b32 {mb}, 16, {rinv}")
        e(f"v_and_b32 {S2}, {sHI}, {rinv}")
        e(f"v_add_f32 {S2}, 0x3727c5ac, {S2}")
        self.rb1(S2)
        e(f"v_sqrt_f32 {S2}, {S2}")
        self.rb1(S2)
        e(f"v_rcp_f32 {rinv}, {S2}")
        e("v_lshlrev_b32 v40, 16, v40")
        e("v_sub_f32 v40, v40, v44")
        self.rb1("v40")
        e("v_mul_f32 v40, v40, v45")
        self.rb1("v40")
        e("v_lshlrev_b32 v28, 2, v28")
        e(f"v_lshrrev_b32 v16, 3, {vL}")
        e(f"v_lshlrev_b32 v16, 8, v16")
        e(f"v_and_b32 v17, 0x70, {vL16}")
        e(f"v_add_u32 v26, v16, v17")
        e(f"s_lshr_b32 s8, {sR}, 1")
        e(f"s_lshl_b32 s8, s8, 11")
        e(f"s_and_b32 s9, {sR}, 1")
        e(f"s_lshl_b32 s9, s9, 7")
        e(f"s_add_u32 s8, s8, s9")
        e(f"s_add_u32 s8, s8, {P1}")
        e(f"s_add_u32 s9, s8, {9*2048}")
        e(f"s_lshl_b32 s10, {sX}, 9")
        e(f"s_add_u32 s10, s10, {CEN}")
        e(f"v_and_b32 v27, 0x1f0, {vL16}")
        cen = self.force is None
        self.kvloads(RK, vKO, SK, kp1, self.kpre, thr)

        def issue():
            e(f"buffer_load_dwordx4 v[32:35], v26, {WS}, s8 offen sc1")
            e(f"buffer_load_dwordx4 v[36:39], v26, {WS}, s9 offen sc1")
            if cen:
                e(f"buffer_load_dwordx4 v[44:47], v27, {WS}, s10 offen sc1")
        self.poll(issue, [(None, self.g4(32) + self.g4(36) + (self.g4(44) if cen else []))])
        self.stamp(2)
        if cen:
            e("v_readfirstlane_b32 s10, v44")
        self.reduce4(32)
        self.reduce4(36)
        if cen:
            e("v_cmp_ne_u32 vcc, s10, v44")
            e("s_cmp_eq_u64 vcc, 0")
            e("s_cselect_b32 s10, 0x8000, 0")
            e("v_mov_b32 v44, s10")
            e("v_mov_b32 v45, 0")
            e(f"ds_write_b32 v45, v44 offset:{L_H32+128}")
        e(f"v_add_f32_dpp v32, v32, v32 row_ror:8 {DPF}")
        e(f"v_add_f32_dpp v36, v36, v36 row_ror:8 {DPF}")
        self.rb2("v32", "v36", "v33")
        e("v_add_f32 v36, 1.0, v36")
        self.rb1("v36")
        e("v_mul_f32 v36, v36, v40")
        self.rb1("v36")
        e("v_add_f32 v36, v36, v32")
        e("v_cvt_pk_bf16_f32 v36, v36, v36")
        e(f"ds_write_b32 v28, v36 offset:{L_H32}")
        e.label("L_GU_b1")
        e(f"v_lshrrev_b32 v25, 3, {vL}")
        e(f"v_lshlrev_b32 v26, 4, v25")
        e("v_mov_b32 v27, 0")
        off_p2("s9")
        e(f"s_lshl_b32 s10, {sW}, 8")
        e(f"s_add_u32 s9, s9, s10")
        e("s_waitcnt lgkmcnt(0)")
        e("s_barrier")
        e(f"ds_read_b128 v[48:51], v26 offset:{L_H32}")
        if cen:
            e(f"ds_read_b32 v52, v27 offset:{L_H32+128}")
        e("s_waitcnt lgkmcnt(0)")
        if cen:
            e(f"v_readfirstlane_b32 {sLOC}, v52")
        e(f"s_waitcnt vmcnt({self.kpre})")
        self.core(48, RW2, 4, 40, 32)
        self.bsum_store(40, "s9", True)
        self.stamp(3)
        e(f"s_cmp_lg_u32 {sW}, 0")
        e(f"s_cbranch_scc1 L_GU_b2")
        e(f"s_cmp_ge_u32 {sR}, 16")
        e(f"s_cbranch_scc1 L_GU_b2")
        e(f"s_mul_i32 s8, {sX}, {18*2048}")
        e(f"s_lshl_b32 s9, {sR}, 7")
        e(f"s_add_u32 s8, s8, s9")
        e(f"s_add_u32 s8, s8, {P2}")
        e(f"s_add_u32 s9, s8, {8*2048}")
        e(f"s_add_u32 s10, s8, {16*2048}")
        e(f"v_lshlrev_b32 v16, 11, v25")
        e(f"v_and_b32 v17, 0x70, {vL16}")
        e(f"v_add_u32 v26, v16, v17")
        e(f"v_lshrrev_b32 v16, 4, {vL}")
        e(f"v_lshl_add_u32 v27, v16, 2, v17")
        off_p3("s11")
        e(f"v_or_b32 v28, {sLOC}, {vTs}")

        def issue3():
            e(f"buffer_load_dwordx4 v[32:35], v26, {WS}, s8 offen sc1")
            e(f"buffer_load_dwordx4 v[36:39], v26, {WS}, s9 offen sc1")
            e("s_mov_b64 exec, 0xffff")
            e(f"buffer_load_dwordx4 v[40:43], v26, {WS}, s10 offen sc1")
            e("s_mov_b64 exec, -1")
        self.poll(issue3, [(None, self.g4(32) + self.g4(36)), ("0xffff", self.g4(40))])
        e("v_pk_add_f32 v[32:33], v[32:33], v[36:37]")
        e("v_pk_add_f32 v[34:35], v[34:35], v[38:39]")
        e("s_mov_b64 exec, 0xffff")
        e("v_pk_add_f32 v[32:33], v[32:33], v[40:41]")
        e("v_pk_add_f32 v[34:35], v[34:35], v[42:43]")
        e("s_mov_b64 exec, -1")
        self.reduce4(32)
        e(f"v_add_f32_dpp v32, v32, v32 row_ror:8 {DPF}")
        e("v_cvt_pk_bf16_f32 v32, v32, v32")
        e(f"v_and_or_b32 v32, v32, {sHI}, v28")
        e(f"s_mov_b64 exec, {mJ8}")
        self.lstore(f"buffer_store_dword v32, v27, {WS}, s11 offen")
        e("s_mov_b64 exec, -1")
        self.stamp(4)
        e.label("L_GU_b2")
        e(f"s_cmp_ge_u32 {sR}, 9")
        e("s_cselect_b32 s60, s30, s28")
        e("s_cselect_b32 s61, s31, s29")
        e("s_cselect_b32 s8, 9, 0")
        e(f"s_mov_b32 s62, {576*9216}")
        e(f"s_sub_u32 s8, {sR}, s8")
        e(f"s_lshl_b32 s8, s8, 7")
        e(f"s_mul_i32 s14, {sX}, 1152")
        e(f"s_add_u32 s14, s14, s8")
        e(f"s_mul_i32 s8, {sW}, {72*9216}")
        e(f"s_add_u32 s14, s14, s8")
        self.voff9(9216)
        e("s_barrier")

        def early(n):
            if n < self.n_early_gu:
                self.wloads(RW2, SW2, "s14", 9216, n, n + 1)
                return 1
            return 0
        ne = self.attention(early, self.thr_gu2, False, self.kpre)
        e("s_barrier")
        self.wloads(RW2, SW2, "s14", 9216, ne, 9)
        e.c("---- gather P9 (h2) in A layout ----")
        e(f"s_mul_i32 s8, {sX}, 2304")
        e(f"s_mul_i32 s9, {sW}, 288")
        e(f"s_add_u32 s8, s8, s9")
        e(f"s_add_u32 s8, s8, {P9}")
        e(f"v_lshrrev_b32 v16, 3, {vL}")
        e(f"v_lshlrev_b32 v26, 5, v16")
        e(f"v_lshlrev_b32 v27, 2, v16")
        off_p7("s12")

        def issue9():
            e(f"buffer_load_dwordx4 v[48:51], v26, {WS}, s8 offen sc1")
            e(f"buffer_load_dwordx4 v[52:55], v26, {WS}, s8 offen offset:16 sc1")
            e(f"buffer_load_dword v56, v27, {WS}, s8 offen offset:256 sc1")
        self.poll(issue9, [(None, self.g4(48) + self.g4(52) + [("v56", vTg)])])
        self.stamp(10)
        self.core(48, RW2, 9, 40, 32, perm=True)
        self.acc_add(40, L_ACC1)
        self.acc_publish(L_ACC1, "s12", True, True)
        self.stamp(11)
        e("s_branch L_fin")


def generate(fn, **kw):
    g = Gen(**kw)
    e = g.build()
    body = e.text()
    nv = max(e.maxv + 1, 136)
    txt = wrap(body, 256, 512, lds=LDS_BYTES, vgpr=nv, sgpr=max(e.maxs + 1, 96))
    txt = txt.replace("\ns_endpgm\n", "\n    s_endpgm\nL_code_end:\n")
    open(fn, "w").write(txt)
    return e


if __name__ == "__main__":
    import itertools
    names = []
    for spec in sys.argv[1:]:
        nm, _, kv = spec.partition(":")
        kw = {}
        for p in kv.split(","):
            if p:
                k, _, val = p.partition("=")
                kw[k] = eval(val)
        e = generate(nm, **kw)
        names.append(nm)
    print(" ".join(names))
```

```python
import sys
from emit import Em
from asmgen import wrap, NAME

P1 = 0x1000
P2 = 0x10000
P3 = 0x60000
P4 = 0x70000
P5 = 0xC0000
P6 = 0xC8000
P7 = 0x180000
P8 = 0xE0000
P9 = 0xE8000
P10 = 0xEE000
CEN = 0xF8000
STAMP = 0x100000
WS_BYTES = 0x200000
XS = 224

L_ACC1 = 0x0000
L_ACC2 = 0x0900
L_LNS = 0x1200
L_MX = 0x1280
L_H32 = 0x1300
L_ACCO = 0x1400
LDS_BYTES = 0x3800
ACCS = 272

sX, sJ, sW, sR, sSP = "s3", "s4", "s5", "s6", "s7"
WS, SK, SV, SW1, SW2, SS1, SS2 = "s[44:47]", "s[48:51]", "s[52:55]", "s[56:59]", "s[60:63]", "s[64:67]", "s[68:71]"
sM10, sHI, sLOC, sSEL, sL2E, sKV = "s72", "s73", "s74", "s75", "s76", "s77"
m36, mJ8, mT2, mODD, mHI = "s[82:83]", "s[84:85]", "s[86:87]", "s[88:89]", "s[90:91]"
vL, vL16 = "v0", "v1"
MK = [2, 3, 4, 5]
TG = [6, 7, 8, 9]
vTa0, vTa1 = "v10", "v11"
vWA, vWB = "v12", "v13"
vKO, vVO = "v14", "v210"
vST = "v15"
RK, RV, RW1, RW2 = 64, 96, 128, 164
vTb0, vTb1, vTs, vBO, vAA = "v200", "v201", "v202", "v203", "v204"
vDUM = "v205"
vE0, vE1 = 206, 207
vAR, vCO = "v208", "v209"
PS = [212, 213, 214, 215]
vA0, vA1, vL4 = "v204", "v211", "v234"
vTq, vTg = "v216", "v217"
KVO = ["s18", "s19", "s20", "s21", "s40", "s41", "s94", "s95"]
SPIN = 400000
DPF = "row_mask:0xf bank_mask:0xf"


def v(n, k=1):
    return f"v{n}" if k == 1 else f"v[{n}:{n+k-1}]"


class Stream:
    def __init__(self, e, items):
        self.e, self.items, self.pos, self.log = e, items, 0, []

    def step(self, wait=True, stop=None):
        if self.pos >= len(self.items) or (stop is not None and self.pos >= stop):
            return False
        name, fn, thr = self.items[self.pos]
        bulk = [i for i, (n, b) in enumerate(self.log) if b]
        if wait and thr is not None and len(bulk) > thr:
            self.e(f"s_waitcnt vmcnt({len(self.log) - 1 - bulk[-(thr + 1)]})")
        fn()
        self.log.append((name, True))
        self.pos += 1
        return True

    def run(self, stop):
        while self.step(stop=stop):
            pass

    def extra(self, name):
        self.log.append((name, False))

    def issued(self, name):
        return any(n == name for n, _ in self.log)

    def wait_for(self, name):
        idx = max(i for i, (n, _) in enumerate(self.log) if n == name)
        self.e(f"s_waitcnt vmcnt({len(self.log) - 1 - idx})")

    def index(self, name):
        return [n for n, _, _ in self.items].index(name)


class Gen:
    def __init__(self, stamps=False, force=None, thr=3, thr_gu=3, n_early_gu=0, n_early_wd=0, prefetch=True,
                 pretouch=True, kpre=4, thr_gu2=4, kvf='nt', wf='nt', qpos=0, qpos_gu=0, resume=False, mr_pre=9, late_first=True, thr_mr=None, thr_post=None, p1wait=False, thr_w=1, wd_pre=0, qpos_wd=2, gate_n=0, mod_on_gu=False, pipe4=False, pipe79=False, thr_dn=None, l2pf=0, kvmap='contig', pair=True, rotc=3, slp=0, k0=2, pfw=1, kdelay=False, tlbw=False, hold=0):
        self.e = Em()
        self.stamps = stamps
        self.force = force
        self.thr = thr
        self.thr_gu = thr_gu
        self.n_early_gu = n_early_gu
        self.n_early_wd = n_early_wd
        self.prefetch = prefetch
        self.pretouch = pretouch
        self.kpre = kpre
        self.kvf = kvf
        self.qpos = qpos
        self.pv_steps = 0
        self.thr_w = thr_w
        self.pipe4 = pipe4
        self.kvmap = 'rot'
        self.k0 = k0
        self.pfw = pfw
        self.hold = hold
        self.tlbw = tlbw
        self.kdelay = kdelay
        self.rotc = rotc
        self.slp = slp
        self.pair = pair
        self.l2pf = l2pf
        self.pipe79 = pipe79
        self.thr_dn = thr_dn
        self.gate_n = gate_n
        self.mod_on_gu = mod_on_gu
        self.qpos_wd = qpos_wd
        self.wd_pre = wd_pre
        self.p1wait = p1wait
        self.thr_post = thr_post
        self.qpos_gu = qpos_gu
        self.resume = resume
        self.mr_pre = mr_pre
        self.late_first = late_first
        self.thr_mr = thr if thr_mr is None else thr_mr
        self.wf = wf
        self.thr_gu2 = thr_gu2
        self.uid = 0

    def lab(self, p):
        self.uid += 1
        return f"L_{p}{self.uid}"

    def stamp(self, k):
        if self.stamps:
            e = self.e
            e("s_memrealtime s[92:93]")
            e("s_waitcnt lgkmcnt(0)")
            e(f"v_writelane_b32 {vST}, s92, {k}")

    def srd(self, srd, lo, hi, nbytes):
        b = int(srd[2:].split(":")[0])
        e = self.e
        e(f"s_mov_b32 s{b}, {lo}")
        e(f"s_mov_b32 s{b+1}, {hi}")
        e(f"s_mov_b32 s{b+2}, {nbytes}")
        e(f"s_mov_b32 s{b+3}, 0x20000")

    def lstore(self, text):
        e = self.e
        if self.force is not None:
            e(f"{text} {self.force}")
            return
        a, b = self.lab("ls"), self.lab("le")
        e(f"s_cmp_eq_u32 {sLOC}, 0")
        e(f"s_cbranch_scc1 {a}")
        e(text)
        e(f"s_branch {b}")
        e.label(a)
        e(f"{text} sc1")
        e.label(b)

    def lstore_multi(self, lines):
        e = self.e

        def emit(flag):
            for t in lines:
                e(f"{t} {flag}" if t.startswith("buffer_store") else t)
        if self.force is not None:
            emit(self.force)
            return
        a, b = self.lab("ls"), self.lab("le")
        e(f"s_cmp_eq_u32 {sLOC}, 0")
        e(f"s_cbranch_scc1 {a}")
        emit("")
        e(f"s_branch {b}")
        e.label(a)
        emit("sc1")
        e.label(b)

    def voff9(self, stride):
        e = self.e
        e(f"v_lshrrev_b32 v16, 3, {vL}")
        e(f"v_and_b32 v17, 0x70, {vL16}")
        e(f"v_mul_u32_u24 v16, {stride}, v16")
        e(f"v_lshl_add_u32 {vWA}, v16, 3, v17")
        e(f"v_add_u32 v16, {56*stride}, v16")
        e(f"v_add_u32 {vWB}, v16, v17")

    def wloads(self, base, srd, soff, step, t0, t1, thr=None):
        e = self.e
        for t in range(t0, t1):
            vo = vWB if t == 8 else vWA
            e(f"buffer_load_dwordx4 {v(base+4*t,4)}, {vo}, {srd}, {soff} offen {self.wf}")
            e(f"s_add_u32 {soff}, {soff}, {step}")
            if thr is not None:
                e(f"s_waitcnt vmcnt({thr})")

    def kvloads(self, base, vo, srd, t0, t1, thr=None):
        e = self.e
        for t in range(t0, t1):
            if self.kvmap == "rot2":
                e(f"buffer_load_dwordx4 {v(base+4*t,4)}, {vo}, {srd}, {KVO[t]} offen {self.kvf}")
                if thr is not None:
                    e(f"s_waitcnt vmcnt({thr})")
                continue
            if self.kvmap == "contig":
                e(f"s_mov_b32 {sKV}, {t*8192}")
            else:
                e(f"s_add_u32 {sKV}, s94, {t*0x20000}")
                e(f"s_and_b32 {sKV}, {sKV}, 0xfffff")
            e(f"buffer_load_dwordx4 {v(base+4*t,4)}, {vo}, {srd}, {sKV} offen {self.kvf}")
            if thr is not None:
                e(f"s_waitcnt vmcnt({thr})")

    def stream(self, items):
        S = Stream(self.e, self.it_kv("K", 0, self.k0, None) + items)
        S.pos = self.k0
        S.log = [(f"K{t}", True) for t in range(self.k0)]
        return S

    def it_kv(self, kind, t0, t1, thr):
        base, vo, srd = (RK, vKO, SK) if kind == "K" else (RV, vVO, SV)
        return [(f"{kind}{t}", (lambda t=t: self.kvloads(base, vo, srd, t, t + 1)), thr) for t in range(t0, t1)]

    def it_w(self, base, srd, soff, step, t0, t1, thr):
        return [(f"W{t}", (lambda t=t: self.wloads(base, srd, soff, step, t, t + 1)), thr) for t in range(t0, t1)]

    def rb2(self, a, b, t):
        e = self.e
        e(f"v_cvt_pk_bf16_f32 {t}, {a}, {b}")
        e(f"v_lshlrev_b32 {a}, 16, {t}")
        e(f"v_and_b32 {b}, {sHI}, {t}")

    def rb1(self, a):
        e = self.e
        e(f"v_cvt_pk_bf16_f32 {a}, {a}, {a}")
        e(f"v_and_b32 {a}, {sHI}, {a}")

    def swz(self, X, src, n=8):
        for t in range(n):
            self.e(f"ds_swizzle_b32 {v(X+t)}, {src} offset:{(t << 5) | 0x18}")

    def core(self, X, W, T, D, A, vm_after=None, lgkm=None, perm=False, order=None):
        e = self.e
        seq = list(order or range(T))

        def prep(n):
            t = seq[n]
            a = A + 4 * (n & 1)
            if lgkm is not None and t < lgkm:
                e(f"s_waitcnt lgkmcnt({lgkm-1-t})")
            for k in range(4):
                if perm:
                    e(f"v_perm_b32 {v(a+k)}, {v(X+t)}, {v(X+t)}, {v(PS[k])}")
                else:
                    e(f"v_and_b32 {v(a+k)}, {v(X+t)}, {v(MK[k])}")
        prep(0)
        for n, t in enumerate(seq):
            a = A + 4 * (n & 1)
            if n == 0 and len(seq) > 1:
                prep(1)
            if vm_after is not None:
                e(f"s_waitcnt vmcnt({T-1-t+vm_after})")
            c = "0" if n == 0 else v(D, 4)
            e(f"v_mfma_f32_16x16x32_bf16 {v(D,4)}, {v(a,4)}, {v(W+4*t,4)}, {c}")
            if n + 2 < len(seq):
                prep(n + 2)

    def bsum(self, D):
        e = self.e
        e(f"v_permlane32_swap_b32 {v(D)}, {v(D+2)}")
        e(f"v_permlane32_swap_b32 {v(D+1)}, {v(D+3)}")
        e(f"v_add_f32_dpp {v(D)}, {v(D+2)}, {v(D)} row_ror:8 {DPF}")
        e(f"v_add_f32_dpp {v(D+1)}, {v(D+3)}, {v(D+1)} row_ror:8 {DPF}")

    def bsum_store(self, D, soff, local):
        e = self.e
        self.bsum(D)
        e(f"v_bfi_b32 {v(D)}, {sM10}, {vTb0}, {v(D)}")
        e(f"v_bfi_b32 {v(D+1)}, {sM10}, {vTb1}, {v(D+1)}")
        e(f"s_mov_b64 exec, {mJ8}")
        t = f"buffer_store_dwordx2 {v(D,2)}, {vBO}, {WS}, {soff} offen"
        if local:
            self.lstore(t)
        else:
            e(t + " sc1")
        e("s_mov_b64 exec, -1")

    def acc_addr(self, mode):
        e = self.e
        e(f"s_mul_i32 s8, {sW}, {ACCS}")
        if mode == "N":
            e(f"v_and_b32 v16, 1, {vL}")
            e(f"v_lshlrev_b32 v16, 5, v16")
            e(f"v_and_b32 v17, 16, {vL}")
            e(f"v_lshrrev_b32 v18, 5, {vL}")
            e(f"v_lshlrev_b32 v18, 3, v18")
            e(f"v_add3_u32 v16, v16, v17, v18")
            e(f"v_bfe_u32 v17, {vL}, 1, 2")
            e(f"v_add_lshl_u32 v16, v16, v17, 2")
            e(f"v_add_u32 {vA0}, s8, v16")
            e(f"v_add_u32 {vA1}, 16, {vA0}")
        else:
            e(f"v_and_b32 v16, 32, {vL}")
            e(f"v_and_b32 v17, 7, {vL}")
            e(f"v_lshl_add_u32 v16, v17, 1, v16")
            e(f"v_bfe_u32 v17, {vL}, 4, 1")
            e(f"v_add_lshl_u32 v16, v16, v17, 2")
            e(f"v_add_u32 {vA0}, s8, v16")
            e(f"v_add_u32 {vA1}, 64, {vA0}")

    def acc_add(self, D, acc):
        e = self.e
        self.bsum(D)
        e(f"s_mov_b64 exec, {mJ8}")
        e(f"ds_write_b32 {vA0}, {v(D)} offset:{acc}")
        e(f"ds_write_b32 {vA1}, {v(D+1)} offset:{acc}")
        e("s_mov_b64 exec, -1")
        e("s_waitcnt lgkmcnt(0)")
        e("s_barrier")

    def acc_publish(self, acc, soff, local, round_bf16, D=16):
        e = self.e
        skip = self.lab("ap")
        e(f"s_cmp_lg_u32 {sW}, 0")
        e(f"s_cbranch_scc1 {skip}")
        e(f"ds_read_b128 {v(D,4)}, {vAR} offset:{acc}")
        e(f"ds_read_b128 {v(D+4,4)}, {vAR} offset:{acc+4*ACCS}")
        e("s_waitcnt lgkmcnt(0)")
        self.sumrows([D])
        if round_bf16:
            e(f"v_cvt_pk_bf16_f32 {v(D)}, {v(D)}, {v(D)}")
        e(f"v_bfi_b32 {v(D)}, {sM10}, {vTq}, {v(D)}")
        t = f"buffer_store_dword {v(D)}, {vL4}, {WS}, {soff} offen"
        if local:
            self.lstore(t)
        else:
            e(t + " sc1")
        e.label(skip)

    def poll(self, issue, checks, acc="v21", pipe=0, slp=0):
        e = self.e
        top = self.lab("poll")
        e(f"s_mov_b32 {sSP}, 0")
        if pipe:
            issue()
        e.label(top)
        if slp:
            e(f"s_sleep {slp}")
        issue()
        e(f"s_add_u32 {sSP}, {sSP}, 1")
        e(f"s_cmp_gt_u32 {sSP}, {SPIN}")
        e("s_cbranch_scc1 L_end")
        first = checks[0][0] is None
        if not first:
            e(f"v_mov_b32 {acc}, 0")
        e(f"s_waitcnt vmcnt({pipe})")
        for mask, lst in checks:
            if mask:
                e(f"s_mov_b64 exec, {mask}")
            for r, t in lst:
                if first:
                    e(f"v_xor_b32 {acc}, {r}, {t}")
                    first = False
                else:
                    e(f"v_bitop3_b32 {acc}, {r}, {t}, {acc} bitop3:0xbe")
            if mask:
                e("s_mov_b64 exec, -1")
        e(f"v_and_b32 {acc}, {sM10}, {acc}")
        e(f"v_cmp_ne_u32 vcc, 0, {acc}")
        e(f"s_cbranch_vccnz {top}")

    def mpoll(self, loads, sb=96, pipe=False):
        e = self.e
        regs = [f"s[{sb+2*m}:{sb+2*m+1}]" for m in range(3)] + ["s[78:79]", "s[80:81]"]
        top = self.lab("mp")
        for m, (_, _, bm) in enumerate(loads):
            e(f"s_mov_b64 {regs[m]}, {bm or -1}")
        e(f"s_mov_b32 {sSP}, 0")
        if pipe:
            for m, (txt, _, _) in enumerate(loads):
                e(f"s_mov_b64 exec, {regs[m]}")
                e(txt)
        e.label(top)
        for m, (txt, _, _) in enumerate(loads):
            e(f"s_mov_b64 exec, {regs[m]}")
            if pipe:
                e(txt)
            else:
                sk = self.lab("ms")
                e(f"s_cbranch_execz {sk}")
                e(txt)
                e.label(sk)
        e(f"s_mov_b64 exec, -1")
        e(f"s_add_u32 {sSP}, {sSP}, 1")
        e(f"s_cmp_gt_u32 {sSP}, {SPIN}")
        e("s_cbranch_scc1 L_end")
        e(f"s_waitcnt vmcnt({len(loads) if pipe else 0})")
        for m, (_, lst, _) in enumerate(loads):
            a = f"v{218+m}"
            e(f"v_xor_b32 {a}, {lst[0][0]}, {lst[0][1]}")
            for r, t in lst[1:]:
                e(f"v_bitop3_b32 {a}, {r}, {t}, {a} bitop3:0xbe")
        for m in range(len(loads)):
            e(f"v_and_b32 v{218+m}, {sM10}, v{218+m}")
        cur = None
        for m, (_, _, bm) in enumerate(loads):
            if bm != cur:
                e(f"s_mov_b64 exec, {bm or -1}")
                cur = bm
            e(f"v_cmp_ne_u32 {regs[m]}, 0, v{218+m}")
        e(f"s_or_b64 vcc, {regs[0]}, {regs[1]}")
        for m in range(2, len(loads)):
            e(f"s_or_b64 vcc, vcc, {regs[m]}")
        if cur is not None:
            e("s_mov_b64 exec, -1")
        e(f"s_cbranch_scc1 {top}")

    def g4(self, base):
        return [(v(base + r), v(TG[r])) for r in range(4)]

    def reduce4(self, r):
        e = self.e
        e(f"v_permlane32_swap_b32 {v(r)}, {v(r+2)}")
        e(f"v_permlane32_swap_b32 {v(r+1)}, {v(r+3)}")
        e(f"v_add_f32 {v(r)}, {v(r)}, {v(r+2)}")
        e(f"v_add_f32 {v(r+1)}, {v(r+1)}, {v(r+3)}")
        e(f"v_permlane16_swap_b32 {v(r)}, {v(r+1)}")
        e(f"v_add_f32 {v(r)}, {v(r)}, {v(r+1)}")

    def c_loads(self, soff):
        e = self.e
        e(f"v_lshlrev_b32 v18, 1, {vL}")
        e(f"v_lshrrev_b32 v19, 3, {vL}")
        e(f"v_lshlrev_b32 v19, 1, v19")
        e(f"buffer_load_ushort v30, v18, {SS1}, {soff} offen")
        e(f"buffer_load_ushort v31, v19, {SS1}, {soff} offen offset:128")

    def silu2(self, X):
        e = self.e
        e(f"v_lshlrev_b32 v30, 16, v30")
        e(f"v_lshlrev_b32 v31, 16, v31")
        e(f"v_mul_f32 v33, 0xbfb8aa3b, v30")
        e(f"v_mul_f32 v34, 0xbfb8aa3b, v31")
        e("v_exp_f32 v33, v33")
        e("v_exp_f32 v34, v34")
        e("v_add_f32 v33, 1.0, v33")
        e("v_add_f32 v34, 1.0, v34")
        e("v_rcp_f32 v33, v33")
        e("v_rcp_f32 v34, v34")
        e("v_mul_f32 v30, v30, v33")
        e("v_mul_f32 v31, v31, v34")
        e("v_cvt_pk_bf16_f32 v30, v30, v30")
        e(f"v_cvt_pk_bf16_f32 {v(X+8)}, v31, v31")
        self.swz(X, "v30")

    def consts(self, perm=False):
        e = self.e
        e.c("constants")
        e(f"s_mov_b32 {sSEL}, 0x07060302")
        e(f"s_mov_b32 {sL2E}, 0x3fb8aa3b")
        e("s_mov_b32 s82, -1"); e("s_mov_b32 s83, 15")
        e("s_mov_b32 s84, 0x00ff00ff"); e("s_mov_b32 s85, 0x00ff00ff")
        e("s_mov_b32 s86, 0x0f0f0f0f"); e("s_mov_b32 s87, 0x0f0f0f0f")
        e("s_mov_b32 s88, 0xaaaaaaaa"); e("s_mov_b32 s89, 0xaaaaaaaa")
        e("s_mov_b32 s90, 0"); e("s_mov_b32 s91, -1")
        e(f"v_mov_b32 v16, 0xffff")
        e(f"v_mov_b32 v17, {sHI}")
        e(f"v_cndmask_b32 v16, v16, v17, {mODD}")
        e(f"v_bfe_u32 v17, {vL}, 1, 2")
        if perm:
            e(f"v_mov_b32 v18, 0x0c0c0302")
            e(f"v_mov_b32 v19, 0x03020c0c")
            e(f"v_cndmask_b32 v18, v18, v19, {mODD}")
            e(f"v_mov_b32 v19, 0x0c0c0c0c")
        for k in range(4):
            e(f"v_cmp_eq_u32 vcc, {k}, v17")
            e(f"v_cndmask_b32 {v(MK[k])}, 0, v16, vcc")
            if perm:
                e(f"v_cndmask_b32 {v(PS[k])}, v19, v18, vcc")
        e(f"v_and_b32 v16, 15, {vL}")
        e(f"v_lshlrev_b32 v16, 5, v16")
        e(f"v_and_b32 v17, 16, {vL}")
        e(f"v_lshrrev_b32 v18, 5, {vL}")
        e(f"v_lshlrev_b32 v18, 3, v18")
        e(f"v_add3_u32 {vBO}, v16, v17, v18")
        e(f"v_lshlrev_b32 {vL4}, 2, {vL}")
        e(f"v_lshrrev_b32 v16, 4, {vL}")
        e(f"v_mul_u32_u24 v17, {ACCS}, v16")
        e(f"v_and_b32 v18, 0xf0, {vL16}")
        e(f"v_add_u32 {vAR}, v17, v18")
        e(f"v_lshl_add_u32 {vCO}, v16, 2, v18")
        self.acc_addr("N")

    def tags(self, touch=()):
        e = self.e
        e.c("tags from epoch+1")
        e("s_waitcnt lgkmcnt(0)")
        self.stamp(15)
        e("s_add_u32 s26, s26, 0x40100401")
        e("s_addc_u32 s27, s27, 0")
        e(f"v_mov_b32 {v(vE0)}, s26")
        e(f"v_mov_b32 {v(vE1)}, s27")
        e(f"v_and_b32 {v(TG[0])}, {sM10}, {v(vE0)}")
        e(f"v_bfe_u32 {v(TG[1])}, {v(vE0)}, 10, 10")
        e(f"v_bfe_u32 {v(TG[2])}, {v(vE0)}, 20, 10")
        e(f"v_alignbit_b32 {v(TG[3])}, {v(vE1)}, {v(vE0)}, 30")
        e(f"v_and_b32 {v(TG[3])}, {sM10}, {v(TG[3])}")
        e(f"v_cndmask_b32 {vTa0}, {v(TG[0])}, {v(TG[2])}, {mODD}")
        e(f"v_cndmask_b32 {vTa1}, {v(TG[1])}, {v(TG[3])}, {mODD}")
        e(f"v_cndmask_b32 {vTb0}, {v(TG[0])}, {v(TG[2])}, {mHI}")
        e(f"v_cndmask_b32 {vTb1}, {v(TG[1])}, {v(TG[3])}, {mHI}")
        e(f"v_and_b32 v16, 16, {vL}")
        e(f"v_cmp_ne_u32 vcc, 0, v16")
        e(f"v_cndmask_b32 {vTs}, {vTb0}, {vTb1}, vcc")
        e(f"v_and_b32 v16, 3, {vL}")
        e(f"v_mul_u32_u24 v16, 10, v16")
        e(f"v_lshrrev_b64 v[18:19], v16, {v(vE0,2)}")
        e(f"v_and_b32 {vTq}, {sM10}, v18")
        e(f"v_bfe_u32 v16, {vL}, 3, 2")
        e(f"v_mul_u32_u24 v16, 10, v16")
        e(f"v_lshrrev_b64 v[18:19], v16, {v(vE0,2)}")
        e(f"v_and_b32 {vTg}, {sM10}, v18")
        if self.force is None:
            sk = self.lab("cen")
            e(f"s_cmp_lg_u32 {sW}, 2")
            e(f"s_cbranch_scc1 {sk}")
            e("s_getreg_b32 s8, hwreg(HW_REG_XCC_ID)")
            e("s_and_b32 s8, s8, 0xff")
            e("s_lshl_b32 s8, s8, 16")
            e(f"v_or_b32 v16, s8, {vTq}")
            e(f"s_lshl_b32 s8, {sX}, 5")
            e(f"s_add_u32 s8, s8, {sJ}")
            e(f"s_lshl_b32 s8, s8, 4")
            e(f"s_add_u32 s8, s8, {CEN}")
            e(f"v_lshlrev_b32 v17, 2, {vL}")
            e("s_mov_b64 exec, 15")
            e(f"buffer_store_dword v16, v17, {WS}, s8 offen")
            e("s_mov_b64 exec, -1")
            e.label(sk)

    def touch(self, items):
        if not self.pretouch:
            return
        e = self.e
        sk = self.lab("tch")
        e(f"s_cmp_lg_u32 {sW}, 3")
        e(f"s_cbranch_scc1 {sk}")
        e(f"v_lshlrev_b32 v17, 7, {vL}")
        for fn, n in items:
            fn("s8")
            e(f"s_mov_b64 exec, {(1 << n) - 1}")
            e(f"buffer_load_dword {vDUM}, v17, {WS}, s8 offen sc1")
        e("s_mov_b64 exec, -1")
        e.label(sk)

    def census_load(self, r):
        e = self.e
        e(f"s_lshl_b32 s10, {sX}, 9")
        e(f"s_add_u32 s10, s10, {CEN}")
        e(f"v_and_b32 v16, 0x1f0, {vL16}")
        e(f"buffer_load_dwordx4 {v(r,4)}, v16, {WS}, s10 offen sc1")

    def sumrows(self, regs):
        e = self.e
        for r in regs:
            e(f"v_pk_add_f32 {v(r,2)}, {v(r,2)}, {v(r+4,2)}")
            e(f"v_pk_add_f32 {v(r+2,2)}, {v(r+2,2)}, {v(r+6,2)}")
        for r in regs:
            e(f"v_permlane32_swap_b32 {v(r)}, {v(r+2)}")
            e(f"v_permlane32_swap_b32 {v(r+1)}, {v(r+3)}")
        for r in regs:
            e(f"v_pk_add_f32 {v(r,2)}, {v(r,2)}, {v(r+2,2)}")
        for r in regs:
            e(f"v_permlane16_swap_b32 {v(r)}, {v(r+1)}")
        for r in regs:
            e(f"v_add_f32 {v(r)}, {v(r)}, {v(r+1)}")

    def census_eval(self, r, dst):
        e = self.e
        e(f"v_readfirstlane_b32 s10, {v(r)}")
        e(f"v_xor_b32 v17, {v(r)}, {v(TG[0])}")
        for k in range(1, 4):
            e(f"v_bitop3_b32 v17, {v(r+k)}, {v(TG[k])}, v17 bitop3:0xbe")
        e(f"v_and_b32 v17, {sM10}, v17")
        e(f"v_xor_b32 v18, s10, {v(r)}")
        e(f"v_or_b32 v17, v17, v18")
        e(f"v_cmp_ne_u32 vcc, 0, v17")
        e("s_cmp_eq_u64 vcc, 0")
        e(f"s_cselect_b32 {dst}, 1, 0")

    def off_p4(self, d):
        e = self.e
        e(f"s_lshl_b32 {d}, {sX}, 5")
        e(f"s_add_u32 {d}, {d}, {sJ}")
        e(f"s_mul_i32 {d}, {d}, 1152")
        e(f"s_add_u32 {d}, {d}, {P4}")

    def attention(self, S, qidx, qlag, stop):
        e = self.e
        e.c("==== attention ====")
        S.step(stop=qidx)
        S.step(stop=qidx)
        e(f"s_lshl_b32 s9, {sX}, 11")
        e(f"s_lshr_b32 s10, {sJ}, 4")
        e(f"s_lshl_b32 s10, s10, 10")
        e(f"s_add_u32 s9, s9, s10")
        e(f"s_add_u32 s9, s9, {P3}")
        e(f"v_and_b32 v16, 8, {vL}")
        e(f"v_lshlrev_b32 v29, 2, v16")
        e(f"v_lshlrev_b32 v16, 6, v16")
        e(f"v_and_b32 v18, 3, {vL}")
        e(f"v_lshlrev_b32 v18, 7, v18")
        e(f"v_and_b32 v17, 0x30, {vL}")
        e(f"v_lshlrev_b32 v17, 1, v17")
        e(f"v_add3_u32 v28, v16, v17, v18")

        def issue():
            e(f"buffer_load_dwordx4 v[32:35], v28, {WS}, s9 offen sc1")
            e(f"buffer_load_dwordx4 v[36:39], v28, {WS}, s9 offen offset:16 sc1")
        e(f"s_lshl_b32 s8, {sW}, 2")
        e(f"v_add_u32 v30, s8, v29")
        e(f"v_and_b32 v16, 32, {vL}")
        e(f"v_lshlrev_b32 v16, 2, v16")
        e(f"v_and_b32 v17, 12, {vL}")
        e(f"v_lshlrev_b32 v17, 3, v17")
        e(f"v_and_b32 v18, 19, {vL}")
        e(f"v_add3_u32 v22, v16, v17, v18")
        e(f"s_mul_i32 s8, {sW}, 1152")
        e(f"s_add_u32 s10, s8, {L_ACCO}")
        e(f"v_lshl_add_u32 v22, v22, 2, s10")
        e(f"v_and_b32 v16, 8, {vL}")
        e(f"v_add_u32 v31, s8, v16")
        e(f"v_lshrrev_b32 v16, 3, {vL}")
        e(f"v_mul_u32_u24 v24, 1152, v16")
        e(f"v_and_b32 v17, 0x70, {vL16}")
        e(f"s_lshl_b32 s8, {sW}, 7")
        e(f"v_add3_u32 v23, v24, v17, s8")
        e(f"v_and_b32 v16, 0x30, {vL}")
        e(f"v_lshrrev_b32 v19, 2, v16")
        e(f"v_lshrrev_b32 v17, 2, v17")
        e(f"v_lshl_add_u32 v20, v16, 1, v17")
        self.off_p4("s12")
        e(f"s_add_u32 s13, s12, s8")
        S.run(qidx)
        cen = self.force is None
        if cen:
            e(f"s_lshl_b32 s10, {sX}, 9")
            e(f"s_add_u32 s10, s10, {CEN}")
            e(f"v_and_b32 v16, 0x1f0, {vL16}")
            e(f"buffer_load_dwordx4 v[40:43], v16, {WS}, s10 offen sc1")
            S.extra("cen")
        issue()
        S.extra("q0")
        S.extra("q")
        S.run(min(stop, qidx + qlag))
        S.wait_for("q")
        if cen:
            self.census_eval(40, sLOC)
        chk = self.g4(32) + self.g4(36)
        e(f"v_xor_b32 v21, {chk[0][0]}, {chk[0][1]}")
        for r, t in chk[1:]:
            e(f"v_bitop3_b32 v21, {r}, {t}, v21 bitop3:0xbe")
        e(f"v_and_b32 v21, {sM10}, v21")
        e(f"v_cmp_ne_u32 vcc, 0, v21")
        ok = self.lab("qok")
        e(f"s_cbranch_vccz {ok}")
        self.stamp(13)
        self.poll(issue, [(None, chk)])
        e.label(ok)
        self.stamp(5)

        def vstep():
            S.step(stop=stop)
        vstep()
        for k in range(4):
            e(f"v_perm_b32 {v(32+k)}, {v(33+2*k)}, {v(32+2*k)}, {sSEL}")
        for k in range(4):
            e(f"v_cndmask_b32 {v(36+k)}, {v(32+k)}, 0, {mT2}")
        for k in range(4):
            e(f"v_cndmask_b32 {v(32+k)}, 0, {v(32+k)}, {mT2}")
        for u in range(4):
            e(f"v_mfma_f32_16x16x32_bf16 {v(40+4*u,4)}, {v(RK+8*u,4)}, v[32:35], 0")
        for u in range(4):
            e(f"v_mfma_f32_16x16x32_bf16 {v(40+4*u,4)}, {v(RK+8*u+4,4)}, v[36:39], {v(40+4*u,4)}")
        for u in range(4):
            e(f"v_mov_b32_dpp {v(56+u)}, {v(40+4*u)} quad_perm:[0,0,0,0] {DPF}")
        for i in range(1, 4):
            for u in range(4):
                e(f"v_add_f32_dpp {v(56+u)}, {v(40+4*u+i)}, {v(56+u)} quad_perm:[{i},{i},{i},{i}] {DPF}")
        self.rb2("v56", "v57", "v60")
        self.rb2("v58", "v59", "v61")
        for u in range(4):
            e(f"v_mul_f32 {v(56+u)}, 0x3db504f3, {v(56+u)}")
        self.rb2("v56", "v57", "v60")
        self.rb2("v58", "v59", "v61")
        e("v_max3_f32 v60, v56, v57, v58")
        e("v_max_f32 v60, v60, v59")
        e(f"v_max_f32_dpp v60, v60, v60 row_half_mirror {DPF}")
        e("v_mov_b32 v61, v60")
        e("v_permlane16_swap_b32 v60, v61")
        e("v_max_f32 v60, v60, v61")
        e("v_mov_b32 v61, v60")
        e("v_permlane32_swap_b32 v60, v61")
        e("v_max_f32 v60, v60, v61")
        e("s_mov_b64 exec, 0x101")
        e(f"ds_write_b32 v30, v60 offset:{L_MX}")
        e("s_mov_b64 exec, -1")
        vstep()
        e("s_waitcnt lgkmcnt(0)")
        e("s_barrier")
        e(f"ds_read_b128 v[40:43], v29 offset:{L_MX}")
        e(f"ds_read_b128 v[44:47], v29 offset:{L_MX+16}")
        vstep()
        e("s_waitcnt lgkmcnt(0)")
        e("v_max3_f32 v60, v40, v41, v42")
        e("v_max3_f32 v61, v43, v44, v45")
        e("v_max3_f32 v60, v60, v46, v47")
        e("v_max_f32 v60, v60, v61")
        for u in range(4):
            e(f"v_sub_f32 {v(56+u)}, {v(56+u)}, v60")
        for u in range(4):
            e(f"v_mul_f32 {v(56+u)}, {sL2E}, {v(56+u)}")
        for u in range(4):
            e(f"v_exp_f32 {v(56+u)}, {v(56+u)}")
        for u in range(4):
            e(f"v_cvt_pk_bf16_f32 {v(56+u)}, {v(56+u)}, {v(56+u)}")
        dp = DPF + " bound_ctrl:0"
        for t in range(8):
            p = v(56 + (t >> 1))
            a = RK + 4 * t
            for k in range(4):
                need_shift = (k >= 2) if (t & 1) == 0 else (k < 2)
                if need_shift:
                    sh = "row_shr:4" if (t & 1) == 0 else "row_shl:4"
                    e(f"v_and_b32_dpp {v(a+k)}, {p}, {v(MK[k])} {sh} {dp}")
                else:
                    e(f"v_and_b32 {v(a+k)}, {p}, {v(MK[k])}")
            if t == 3:
                vstep()
        for u in range(4):
            e(f"v_and_b32 {v(44+u)}, {sHI}, {v(56+u)}")
        e("v_add_f32 v44, v44, v45")
        e("v_add_f32 v46, v46, v47")
        e("v_add_f32 v61, v44, v46")
        e(f"v_add_f32_dpp v61, v61, v61 row_half_mirror {DPF}")
        e("v_mov_b32 v44, v61")
        e("v_permlane16_swap_b32 v61, v44")
        e("v_add_f32 v61, v61, v44")
        e("v_mov_b32 v44, v61")
        e("v_permlane32_swap_b32 v61, v44")
        e("v_add_f32 v61, v61, v44")
        e(f"s_cmp_eq_u32 {sW}, 0")
        e("s_cselect_b32 s10, -1, 0")
        e("v_and_b32 v60, s10, v60")
        e("s_mov_b64 exec, 0x101")
        e(f"ds_write_b64 v31, v[60:61] offset:{L_ACCO+1024}")
        e("s_mov_b64 exec, -1")
        while not S.issued("V7"):
            vstep()
        self.stamp(6)
        for t in range(8):
            S.wait_for(f"V{t}")
            c = "0" if t == 0 else "v[40:43]"
            e(f"v_mfma_f32_16x16x32_bf16 v[40:43], {v(RK+4*t,4)}, {v(RV+4*t,4)}, {c}")
            if t < 7 and S.pos < min(stop, len(S.items)) and S.pos - 1 - S.index(f"V{t}") <= S.items[S.pos][2]:
                S.step(wait=False, stop=stop)
        self.stamp(7)
        e(f"ds_write2_b32 v22, v40, v41 offset0:0 offset1:4")
        e(f"ds_write2_b32 v22, v42, v43 offset0:8 offset1:12")
        e("s_waitcnt lgkmcnt(0)")
        e("s_barrier")
        e(f"ds_read_b128 v[40:43], v23 offset:{L_ACCO}")
        e(f"ds_read_b128 v[44:47], v24 offset:{L_ACCO+1024}")
        e("s_waitcnt lgkmcnt(1)")
        self.reduce4(40)
        e(f"v_add_f32_dpp v40, v40, v40 row_ror:8 {DPF}")
        e(f"v_bfi_b32 v40, {sM10}, {vTq}, v40")
        e(f"s_mov_b64 exec, {mJ8}")
        self.lstore(f"buffer_store_dword v40, v20, {WS}, s13 offen")
        S.extra("p4")
        e("s_mov_b64 exec, -1")
        sk = self.lab("p4")
        e(f"s_cmp_lg_u32 {sW}, 7")
        e(f"s_cbranch_scc1 {sk}")
        e("s_waitcnt lgkmcnt(0)")
        self.reduce4(44)
        e(f"v_add_f32_dpp v44, v44, v44 row_ror:8 {DPF}")
        e(f"v_bfi_b32 v44, {sM10}, {vTs}, v44")
        e("s_mov_b32 s10, 0x00010001"); e("s_mov_b32 s11, 0x00010001")
        e("s_mov_b64 exec, s[10:11]")
        self.lstore(f"buffer_store_dword v44, v19, {WS}, s12 offen offset:1024")
        e("s_mov_b64 exec, -1")
        e.label(sk)
        e("s_waitcnt lgkmcnt(0)")
        self.stamp(8)

    def build(self):
        e = self.e
        k0 = self.k0
        e("s_cmp_ge_u32 s2, 256")
        e("s_cbranch_scc1 L_end")
        e("s_load_dwordx16 s[16:31], s[0:1], 0")
        e("s_load_dwordx8 s[32:39], s[0:1], 64")
        e("s_load_dwordx4 s[40:43], s[0:1], 96")
        if self.stamps or self.hold:
            e("s_memrealtime s[98:99]")
        e("v_lshrrev_b32 v16, 6, v0")
        e("v_and_b32 v0, 63, v0")
        e(f"v_readfirstlane_b32 {sW}, v16")
        e(f"v_lshlrev_b32 {vL16}, 4, v0")
        e(f"s_and_b32 {sX}, s2, 7")
        e(f"s_lshr_b32 {sJ}, s2, 3")
        if self.prefetch:
            sk = self.lab("pf")
            e(f"s_cmp_lg_u32 {sW}, {self.pfw}")
            e(f"s_cbranch_scc1 {sk}")
            e("s_getpc_b64 s[8:9]")
            e.label("L_pc")
            e(f"v_lshlrev_b32 v16, 7, v0")
            e.raw("    .set CODE_LEFT, L_code_end - L_pc")
            for k in range(3):
                e(f"v_cmp_gt_u32 vcc, CODE_LEFT-4, v16")
                e("s_and_saveexec_b64 s[10:11], vcc")
                e(f"s_cbranch_execz L_pfx{k}")
                e(f"global_load_dword {vDUM}, v16, s[8:9]")
                e.label(f"L_pfx{k}")
                e("s_mov_b64 exec, -1")
                e("v_add_u32 v16, 0x2000, v16")
            e.label(sk)
        e(f"s_lshl_b32 s12, {sX}, 1")
        e(f"s_lshr_b32 s13, {sJ}, 4")
        e(f"s_add_u32 s12, s12, s13")
        e(f"s_lshl_b32 s12, s12, 24")
        e(f"s_add_u32 s12, s12, {61440*256}")
        e(f"s_and_b32 s13, {sJ}, 15")
        e(f"s_mul_i32 s94, s13, 0x22000")
        e("s_mov_b32 s50, 0x100000"); e("s_mov_b32 s51, 0x20000")
        e(f"s_lshl_b32 s95, {sW}, 10")
        e(f"v_and_b32 v16, 15, {vL}")
        e(f"v_lshlrev_b32 v16, 6, v16")
        e(f"v_and_b32 v17, 0x30, {vL}")
        e(f"v_add3_u32 {vKO}, v16, v17, s95")
        e(f"s_cmp_lt_u32 {sJ}, 18")
        e(f"s_cselect_b32 s15, {sW}, 1")
        e("s_cmp_lg_u32 s15, 0")
        e("s_cbranch_scc1 L_nomod")
        self.voff9(6912)
        e(f"v_lshlrev_b32 v18, 1, {vL}")
        e(f"v_lshrrev_b32 v19, 3, {vL}")
        e(f"v_lshlrev_b32 v19, 1, v19")
        e(f"s_mul_i32 s14, {sX}, {72*6912}")
        e(f"s_lshl_b32 s8, {sJ}, 7")
        e(f"s_add_u32 s14, s14, s8")
        e(f"s_mul_i32 s8, {sX}, 144")
        e("s_mov_b32 s66, 1152"); e("s_mov_b32 s67, 0x20000")
        e(f"s_mov_b32 s58, {576*6912}"); e("s_mov_b32 s59, 0x20000")
        e("s_waitcnt lgkmcnt(0)")
        e("s_mov_b32 s64, s34"); e("s_mov_b32 s65, s35")
        e("s_mov_b32 s56, s36"); e("s_mov_b32 s57, s37")
        e(f"buffer_load_ushort v30, v18, {SS1}, s8 offen")
        e(f"buffer_load_ushort v31, v19, {SS1}, s8 offen offset:128")
        self.wloads(RW1, SW1, "s14", 6912, 0, 9)
        e.label("L_nomod")
        e("s_waitcnt lgkmcnt(0)")
        e("s_add_u32 s48, s18, s12"); e("s_addc_u32 s49, s19, 0")
        if self.hold:
            e("v_mov_b32 v250, s98")
        e("s_load_dwordx2 s[26:27], s[42:43], 0")
        if self.tlbw:
            e.c("one wave starts the address translations of every buffer used later (values are ignored)")
            tw = self.lab("tw")
            e(f"s_cmp_lg_u32 {sW}, 2")
            e(f"s_cbranch_scc1 {tw}")
            e("s_add_u32 s8, s20, s12"); e("s_addc_u32 s9, s21, 0")
            e(f"v_lshlrev_b32 v16, 21, {vL}")
            e("s_mov_b64 exec, 1")
            for p in ("s[8:9]", "s[42:43]", "s[16:17]", "s[34:35]", "s[38:39]"):
                e(f"global_load_dword {vDUM}, v16, {p}")
            e("s_mov_b64 exec, 3")
            e(f"global_load_dword {vDUM}, v16, s[36:37]")
            e("s_mov_b64 exec, 7")
            for p in ("s[22:23]", "s[24:25]", "s[28:29]", "s[30:31]", "s[32:33]"):
                e(f"global_load_dword {vDUM}, v16, {p}")
            e("s_mov_b64 exec, -1")
            e.label(tw)
        if not self.kdelay:
            self.kvloads(RK, vKO, SK, 0, k0)
        if self.stamps:
            e(f"v_mov_b32 {vST}, 0")
            e(f"v_writelane_b32 {vST}, s98, 0")
        e(f"s_mov_b32 {sM10}, 0x3ff")
        e(f"s_mov_b32 {sHI}, 0xffff0000")
        e(f"s_mov_b32 {sLOC}, 0")
        e(f"v_add_u32 {vVO}, s95, {vL16}")
        self.srd(WS, "s42", "s43", WS_BYTES)
        e("s_add_u32 s52, s20, s12"); e("s_addc_u32 s53, s21, 0"); e("s_mov_b32 s54, 0x100000"); e("s_mov_b32 s55, 0x20000")
        self.consts(perm=True)
        if self.kdelay:
            self.kvloads(RK, vKO, SK, 0, k0)
        self.tags()
        e(f"s_cmp_ge_u32 {sJ}, 27")
        e("s_cbranch_scc1 L_MR")
        e(f"s_cmp_ge_u32 {sJ}, 18")
        e("s_cbranch_scc1 L_WD")
        self.role_gu()
        self.role_wd()
        self.role_mr()
        e.label("L_fin")
        if self.hold:
            e("v_readfirstlane_b32 s10, v250")
            e.label("L_hold")
            e("s_sleep 4")
            e("s_memrealtime s[8:9]")
            e("s_waitcnt lgkmcnt(0)")
            e("s_sub_u32 s8, s8, s10")
            e(f"s_cmp_lt_u32 s8, {self.hold}")
            e("s_cbranch_scc1 L_hold")
        if self.stamps:
            e(f"s_lshl_b32 s8, s2, 3")
            e(f"s_add_u32 s8, s8, {sW}")
            e(f"s_lshl_b32 s8, s8, 8")
            e(f"s_add_u32 s8, s8, {STAMP}")
            e(f"v_lshlrev_b32 v16, 2, {vL}")
            e(f"buffer_store_dword {vST}, v16, {WS}, s8 offen")
        e.label("L_end")
        return e

    def role_mr(self):
        e = self.e
        thr = self.thr_mr
        npre = self.mr_pre
        e.label("L_MR")
        e.c("================ MR ================")
        e(f"s_sub_u32 {sR}, {sJ}, 27")
        e(f"s_lshl_b32 {sR}, {sR}, 3")
        e(f"s_add_u32 {sR}, {sR}, {sX}")

        def off_x(base):
            def f(d):
                e(f"s_mul_i32 {d}, {sX}, 2304")
                e(f"s_add_u32 {d}, {d}, {base}")
            return f
        self.srd(SS1, "s34", "s35", 1152)
        self.srd(SW1, "s36", "s37", 576 * 6912)
        e(f"s_cmp_ge_u32 {sR}, 36")
        e(f"s_cselect_b32 s58, 0, s58")
        e(f"s_mul_i32 s8, {sW}, 144")
        self.c_loads("s8")
        self.voff9(6912)
        e(f"s_mul_i32 s14, {sW}, {72*6912}")
        e(f"s_lshl_b32 s8, {sR}, 7")
        e(f"s_add_u32 s14, s14, s8")
        e(f"s_add_u32 s14, s14, {18*128}")
        S = self.stream(self.it_w(RW1, SW1, "s14", 6912, 0, 9, thr) + self.it_kv("K", self.k0, 8, thr) + self.it_kv("V", 0, 8, thr))
        S.extra("c")
        S.run(self.k0 + thr + 1)
        S.wait_for("c")
        self.silu2(XS)
        self.touch([(self.off_p4, 9), (off_x(P9), 18), (off_x(P10), 18)])

        def gemv():
            S.wait_for("W8")
            self.core(XS, RW1, 9, 40, 32)
            self.acc_add(40, L_ACC1)
            sk = self.lab("mri")
            e(f"s_cmp_ge_u32 {sR}, 36")
            e(f"s_cbranch_scc1 {sk}")
            e(f"s_lshl_b32 s8, {sR}, 8")
            e(f"s_add_u32 s8, s8, {P6}")
            self.acc_publish(L_ACC1, "s8", False, True)
            e.label(sk)
            self.stamp(4)
        e("s_waitcnt lgkmcnt(0)")
        S.run(min(17, self.k0 + 9 + thr + 1))
        gemv()
        self.attention(S, 17 + self.qpos, thr, 25)
        e(f"s_cmp_eq_u32 {sJ}, 31")
        e("s_cbranch_scc1 L_LN")
        if self.l2pf:
            e.c("idle from here on: pull this slot's w_down rows into L2 (latest-needed rows first)")
            e("s_barrier")
            self.srd(SW2, "s32", "s33", 4608 * 1152)
            e(f"s_sub_u32 s8, {sJ}, 27")
            e(f"s_lshl_b32 s8, s8, 3")
            e(f"s_add_u32 s8, s8, {sW}")
            e(f"s_lshr_b32 s9, s8, 2")
            e(f"s_mul_i32 s9, s9, {72*1152}")
            e(f"s_and_b32 s10, s8, 3")
            e(f"s_mul_i32 s10, s10, {16*1152}")
            e(f"s_add_u32 s9, s9, s10")
            e(f"s_mul_i32 s10, {sX}, {576*1152}")
            e(f"s_add_u32 s9, s9, s10")
            e(f"v_lshlrev_b32 v16, 7, {vL}")
            e("s_mov_b32 exec_hi, 15")
            for k in range(self.l2pf):
                t0 = 4 if k < 2 else 0
                g = k & 1
                e(f"s_add_u32 s10, s9, {(8*g + t0)*1152}")
                e(f"buffer_load_dword {vDUM}, v16, {SW2}, s10 offen")
            e("s_mov_b64 exec, -1")
        e("s_branch L_fin")
        e.label("L_LN")
        e.c("================ LN ================")
        mB = "s[12:13]"
        e("s_mov_b32 s12, 0x00030003"); e("s_mov_b32 s13, 0x00030003")
        self.srd(SS2, "s16", "s17", 1152)
        e(f"s_lshl_b32 s8, {sW}, 8")
        e(f"s_lshl_b32 s9, {sW}, 5")
        e(f"s_add_u32 s9, s9, 2048")
        e(f"v_lshrrev_b32 v26, 1, {vCO}")
        e(f"s_lshr_b32 s10, s8, 1")
        e(f"s_lshr_b32 s11, s9, 1")
        e(f"v_lshlrev_b32 v25, 1, {vL}")
        e(f"buffer_load_ushort v62, v25, {SS2}, s10 offen")
        e(f"buffer_load_ushort v63, v26, {SS2}, s11 offen")
        e(f"s_add_u32 s10, s8, {P6}")
        e(f"s_add_u32 s11, s9, {P6}")
        e(f"s_add_u32 s14, s10, 4608")
        e(f"s_add_u32 s15, s11, 4608")

        def issue6():
            e(f"buffer_load_dword v56, {vL4}, {WS}, s10 offen sc1")
            e(f"buffer_load_dword v58, {vL4}, {WS}, s10 offen offset:2304 sc1")
            e(f"buffer_load_dword v60, {vL4}, {WS}, s14 offen sc1")
            e(f"s_mov_b64 exec, {mB}")
            e(f"buffer_load_dword v57, {vCO}, {WS}, s11 offen sc1")
            e(f"buffer_load_dword v59, {vCO}, {WS}, s11 offen offset:2304 sc1")
            e(f"buffer_load_dword v61, {vCO}, {WS}, s15 offen sc1")
            e("s_mov_b64 exec, -1")
        self.poll(issue6, [(None, [(v(r), vTq) for r in (56, 58, 60)]), (mB, [(v(r), vTs) for r in (57, 59, 61)])])
        for r in range(6):
            e(f"v_and_b32 {v(56+r)}, {sHI}, {v(56+r)}")
        e("v_add_f32 v60, 1.0, v60")
        e("v_add_f32 v61, 1.0, v61")
        self.rb2("v60", "v61", "v16")
        e(f"v_lshlrev_b32 v62, 16, v62")
        e(f"v_lshlrev_b32 v63, 16, v63")
        self.stamp(9)
        e(f"v_lshrrev_b32 v16, 4, {vL}")
        e(f"v_mul_u32_u24 v16, 2304, v16")
        e(f"v_and_b32 v17, 0xf0, {vL16}")
        e(f"v_add_u32 v27, v16, v17")
        e(f"s_add_u32 s10, s8, {P5}")
        e(f"s_add_u32 s11, s9, {P5}")
        e(f"s_add_u32 s14, s10, {4*2304}")
        e(f"s_add_u32 s15, s11, {4*2304}")
        e(f"v_lshrrev_b32 v31, 5, {vL}")
        e(f"v_lshlrev_b32 v31, 2, v31")
        e(f"s_lshl_b32 s64, {sW}, 3")
        e(f"v_add_u32 v31, s64, v31")
        e("s_mov_b32 s64, 1"); e("s_mov_b32 s65, 1")
        off_x(P9)("s66")
        e("s_add_u32 s8, s8, s66")
        e("s_add_u32 s9, s9, s66")
        e(f"s_add_u32 s66, s8, {P10-P9}")
        e(f"s_add_u32 s67, s9, {P10-P9}")
        e("v_mov_b32 v16, 0")
        l5 = [(f"buffer_load_dwordx4 {v(32+4*m,4)}, v27, {WS}, {so} offen sc1", self.g4(32+4*m), bm)
              for m, (so, bm) in enumerate([("s10", None), ("s14", None), ("s11", mB), ("s15", mB)])]
        self.mpoll(l5)
        self.stamp(10)
        e("v_pk_add_f32 v[32:33], v[32:33], v[36:37]")
        e("v_pk_add_f32 v[34:35], v[34:35], v[38:39]")
        e("v_pk_add_f32 v[40:41], v[40:41], v[44:45]")
        e("v_pk_add_f32 v[42:43], v[42:43], v[46:47]")
        for r in (32, 40):
            e(f"v_permlane32_swap_b32 {v(r)}, {v(r+2)}")
            e(f"v_permlane32_swap_b32 {v(r+1)}, {v(r+3)}")
        for r in (32, 40):
            e(f"v_pk_add_f32 {v(r,2)}, {v(r,2)}, {v(r+2,2)}")
        for r in (32, 40):
            e(f"v_permlane16_swap_b32 {v(r)}, {v(r+1)}")
        for r in (32, 40):
            e(f"v_add_f32 {v(r)}, {v(r)}, {v(r+1)}")
        e("v_fma_f32 v62, v32, v56, v62")
        e("v_fma_f32 v63, v40, v57, v63")
        e(f"v_cndmask_b32 v38, 0, v63, {mB}")
        e("v_mul_f32 v37, v62, v62")
        e("v_add_f32 v36, v62, v38")
        e("v_fmac_f32 v37, v38, v38")
        e("v_permlane32_swap_b32 v36, v37")
        e("v_add_f32 v36, v36, v37")
        e("v_mov_b32 v37, v36")
        e("v_permlane16_swap_b32 v36, v37")
        e("v_add_f32 v36, v36, v37")
        for r in (8, 4, 2, 1):
            e(f"v_add_f32_dpp v36, v36, v36 row_ror:{r} {DPF}")
        e("s_mov_b64 exec, s[64:65]")
        e(f"ds_write_b32 v31, v36 offset:{L_LNS}")
        e("s_mov_b64 exec, -1")
        e("s_waitcnt lgkmcnt(0)")
        e("s_barrier")
        for r in range(4):
            e(f"ds_read_b128 {v(36+4*r,4)}, v16 offset:{L_LNS+16*r}")
        e(f"v_bfi_b32 v54, {sM10}, {vTq}, v62")
        e(f"v_bfi_b32 v55, {sM10}, {vTs}, v63")
        e("s_waitcnt lgkmcnt(0)")
        e("v_pk_add_f32 v[36:37], v[36:37], v[38:39]")
        e("v_pk_add_f32 v[40:41], v[40:41], v[42:43]")
        e("v_pk_add_f32 v[44:45], v[44:45], v[46:47]")
        e("v_pk_add_f32 v[48:49], v[48:49], v[50:51]")
        e("v_pk_add_f32 v[36:37], v[36:37], v[40:41]")
        e("v_pk_add_f32 v[44:45], v[44:45], v[48:49]")
        e("v_pk_add_f32 v[36:37], v[36:37], v[44:45]")
        e("v_mul_f32 v36, 0x3ae38e39, v36")
        e("v_mul_f32 v37, 0x3ae38e39, v37")
        e("v_fma_f32 v37, -v36, v36, v37")
        e("v_max_f32 v37, 0, v37")
        e("v_add_f32 v37, 0x3727c5ac, v37")
        e("v_rsq_f32 v37, v37")
        e("v_sub_f32 v32, v62, v36")
        e("v_sub_f32 v33, v63, v36")
        e("v_mul_f32 v32, v32, v60")
        e("v_mul_f32 v33, v33, v61")
        e("v_fma_f32 v32, v32, v37, v58")
        e("v_fma_f32 v33, v33, v37, v59")
        e("v_cvt_pk_bf16_f32 v32, v32, v32")
        e("v_cvt_pk_bf16_f32 v33, v33, v33")
        e(f"v_bfi_b32 v32, {sM10}, {vTq}, v32")
        e(f"v_bfi_b32 v33, {sM10}, {vTs}, v33")
        self.lstore_multi([f"buffer_store_dword v32, {vL4}, {WS}, s8 offen",
                           f"s_mov_b64 exec, {mB}",
                           f"buffer_store_dword v33, {vCO}, {WS}, s9 offen",
                           f"buffer_store_dword v55, {vCO}, {WS}, s67 offen",
                           "s_mov_b64 exec, -1",
                           f"buffer_store_dword v54, {vL4}, {WS}, s66 offen"])
        self.stamp(11)

    def role_wd(self):
        e = self.e
        thr = self.thr
        e.label("L_WD")
        e.c("================ WD ================")
        e(f"s_sub_u32 {sR}, {sJ}, 18")
        self.srd(SW1, "s24", "s25", 4096 * 1152)
        self.srd(SW2, "s32", "s33", 4608 * 1152)
        e(f"v_and_b32 v16, 8, {vL}")
        e(f"v_lshlrev_b32 v16, 2, v16")
        e(f"v_lshrrev_b32 v17, 4, {vL}")
        e(f"v_add_u32 v16, v16, v17")
        e(f"v_mul_u32_u24 v16, 1152, v16")
        e(f"v_and_b32 v17, 0x70, {vL16}")
        e(f"v_add_u32 {vWA}, v16, v17")
        e(f"s_lshl_b32 s14, {sX}, 3")
        e(f"s_add_u32 s14, s14, {sW}")
        e(f"s_mul_i32 s15, s14, {72*1152}")
        e(f"s_mul_i32 s14, s14, {64*1152}")
        e(f"s_lshl_b32 s8, {sR}, 7")
        e(f"s_add_u32 s14, s14, s8")
        e(f"s_add_u32 s15, s15, s8")
        S = self.stream(self.it_w(RW1, SW1, "s14", 4 * 1152, 0, 8, thr) + self.it_kv("K", self.k0, 8, thr) + self.it_kv("V", 0, 8, thr))
        self.touch([(self.off_p4, 9)])
        self.attention(S, 16 + self.qpos_wd, thr, 24)
        S.run(24)
        self.voff9(1152)
        ne = self.n_early_wd
        self.wloads(RW2, SW2, "s15", 1152, 0, ne, self.thr_w)
        e.c("---- combine: gather P4 ----")
        e(f"s_lshl_b32 s8, {sX}, 5")
        e(f"s_lshr_b32 s9, {sW}, 2")
        e(f"s_lshl_b32 s9, s9, 4")
        e(f"s_add_u32 s8, s8, s9")
        e(f"s_mul_i32 s8, s8, 1152")
        e(f"s_add_u32 s8, s8, {P4}")
        e(f"s_and_b32 s9, {sW}, 3")
        e(f"s_lshl_b32 s9, s9, 8")
        e(f"s_add_u32 s9, s9, s8")
        e(f"v_lshrrev_b32 v16, 4, {vL}")
        e(f"v_mul_u32_u24 v17, {4*1152}, v16")
        e(f"v_and_b32 v18, 0xf0, {vL16}")
        e(f"v_add_u32 v26, v17, v18")
        e(f"v_lshl_add_u32 v17, v16, 2, {vL}")
        e(f"v_and_b32 v17, 15, v17")
        e(f"v_mul_u32_u24 v27, 1152, v17")
        e(f"s_mul_i32 s10, {sX}, 2304")
        e(f"s_lshl_b32 s11, {sR}, 8")
        e(f"s_add_u32 s13, s10, s11")
        e(f"s_add_u32 s12, s13, {P5}")
        na = self.lab("na")
        e(f"s_mov_b32 s64, s8")
        e(f"s_cmp_eq_u32 {sR}, 8")
        e(f"s_cbranch_scc1 {na}")
        self.acc_addr("T")
        e.label(na)
        e(f"s_mov_b32 s8, s64")
        e(f"s_bitcmp1_b32 {sW}, 1")
        e("s_cselect_b64 s[10:11], -1, 0")

        self.mpoll([(f"buffer_load_dwordx4 v[48:51], v27, {WS}, s8 offen offset:1024 sc1", self.g4(48), None)]
                   + [(f"buffer_load_dwordx4 {v(32+4*m,4)}, v26, {WS}, s9 offen offset:{1152*m} sc1", self.g4(32+4*m), None) for m in range(4)], pipe=self.pipe4)
        self.stamp(9)
        e("v_cndmask_b32 v28, v48, v50, s[10:11]")
        e("v_cndmask_b32 v29, v49, v51, s[10:11]")
        e(f"v_and_b32 v28, {sHI}, v28")
        e(f"v_max_f32_dpp v30, v28, v28 row_ror:8 {DPF}")
        for r in (4, 2, 1):
            e(f"v_max_f32_dpp v30, v30, v30 row_ror:{r} {DPF}")
        e("v_sub_f32 v28, v28, v30")
        e(f"v_mul_f32 v28, {sL2E}, v28")
        e("v_exp_f32 v28, v28")
        e("v_mul_f32 v29, v28, v29")
        seq = [(m, r) for m in range(4) for r in range(4)]
        rr = [8, 4, 2, 1]
        for n, (m, r) in enumerate(seq):
            if n % 4 == 0:
                e(f"v_add_f32_dpp v29, v29, v29 row_ror:{rr[n//4]} {DPF}")
            op = "v_mul_f32_dpp" if m == 0 else "v_fmac_f32_dpp"
            e(f"{op} {v(52+r)}, v28, {v(32+4*m+r)} row_newbcast:{m} {DPF}")
        e("v_rcp_f32 v29, v29")
        self.reduce4(52)
        e("v_mul_f32 v52, v52, v29")
        e("v_cvt_pk_bf16_f32 v52, v52, v52")
        self.swz(56, "v52")
        e("s_waitcnt vmcnt(0)")
        self.core(56, RW1, 8, 40, 32, lgkm=8)
        self.acc_add(40, L_ACC1)
        self.acc_publish(L_ACC1, "s12", False, False)
        self.stamp(10)
        e("s_barrier")
        self.wloads(RW2, SW2, "s15", 1152, ne, 9, self.thr_dn)
        e.c("---- gather P7, gelu ----")
        self.acc_addr("T")
        e(f"s_mul_i32 s8, {sX}, 9216")
        e(f"s_mul_i32 s9, {sW}, 576")
        e(f"s_add_u32 s8, s8, s9")
        e(f"s_add_u32 s8, s8, {P7}")
        e(f"s_add_u32 s9, s8, 4608")
        e(f"v_lshlrev_b32 v26, 3, {vL}")
        e(f"v_and_b32 v27, 0x38, {vL}")
        e(f"v_mov_b32 v38, 0x3d372713")
        e(f"s_add_u32 s12, s13, {P8}")
        nx = self.lab("nx")
        e(f"s_cmp_lg_u32 {sW}, 0")
        e(f"s_cbranch_scc1 {nx}")
        e(f"s_add_u32 s10, s13, {P10}")
        e(f"s_lshl_b32 s11, {sR}, 8")
        e(f"s_add_u32 s14, s11, {P8}")
        e(f"s_add_u32 s11, s11, {P6+3*2304}")
        self.srd(SS1, "s38", "s39", 1152)
        e(f"v_lshlrev_b32 v28, 1, {vL}")
        e(f"s_lshl_b32 s15, {sR}, 7")
        e(f"buffer_load_ushort {vDUM}, v28, {SS1}, s15 offen")
        e(f"v_lshrrev_b32 v16, 4, {vL}")
        e(f"v_mul_u32_u24 v16, 2304, v16")
        e(f"v_and_b32 v17, 0xf0, {vL16}")
        e(f"v_add_u32 v29, v16, v17")

        def issuex():
            e(f"buffer_load_dword v60, {vL4}, {WS}, s10 offen sc1")
            e(f"buffer_load_dword v61, {vL4}, {WS}, s11 offen sc1")
        self.poll(issuex, [(None, [("v60", vTq), ("v61", vTq)])])
        e(f"v_and_b32 v61, {sHI}, v61")
        e(f"s_add_u32 s11, s14, {4*2304}")
        e.label(nx)

        def issue2():
            e(f"buffer_load_dwordx2 v[64:65], v26, {WS}, s8 offen sc1")
            e(f"buffer_load_dwordx2 v[66:67], v27, {WS}, s8 offen offset:512 sc1")
            e(f"buffer_load_dwordx2 v[68:69], v26, {WS}, s9 offen sc1")
            e(f"buffer_load_dwordx2 v[70:71], v27, {WS}, s9 offen offset:512 sc1")
        self.poll(issue2, [(None, [(v(64 + r), vTq if (r >> 1) % 2 == 0 else vTg) for r in range(8)])], slp=self.slp)
        self.stamp(11)
        for r in range(4):
            e(f"v_add_f32 {v(32+r)}, {v(64+2*r)}, {v(65+2*r)}")
        pr = (("v32", "v36"), ("v33", "v37"))
        for a, t in pr:
            e(f"v_mul_f32 {t}, {a}, {a}")
        for a, t in pr:
            e(f"v_fma_f32 {t}, {t}, v38, 1.0")
        for a, t in pr:
            e(f"v_mul_f32 {t}, {t}, {a}")
        for a, t in pr:
            e(f"v_mul_f32 {t}, 0xc0135761, {t}")
        e("v_exp_f32 v36, v36"); e("v_exp_f32 v37, v37")
        e("v_mul_f32 v32, v32, v34"); e("v_mul_f32 v33, v33, v35")
        e("v_add_f32 v36, 1.0, v36"); e("v_add_f32 v37, 1.0, v37")
        e("v_rcp_f32 v36, v36"); e("v_rcp_f32 v37, v37")
        e("v_mul_f32 v32, v32, v36"); e("v_mul_f32 v33, v33, v37")
        e("v_cvt_pk_bf16_f32 v47, v32, v32")
        self.swz(48, "v47")
        e("v_cvt_pk_bf16_f32 v56, v33, v33")
        self.core(48, RW2, 9, 40, 32, lgkm=8, order=[8, 0, 1, 2, 3, 4, 5, 6, 7])
        self.acc_add(40, L_ACC2)
        self.acc_publish(L_ACC2, "s12", False, False)
        self.stamp(12)
        e.c("---- finalise: own partial is visible, then read all eight; whoever sees all of them writes the output ----")
        e(f"s_cmp_lg_u32 {sW}, 0")
        e("s_cbranch_scc1 L_fin")
        self.srd(SS1, "s38", "s39", 1152)
        e("s_waitcnt vmcnt(0)")
        e(f"buffer_load_dwordx4 v[32:35], v29, {WS}, s14 offen sc1")
        e(f"buffer_load_dwordx4 v[36:39], v29, {WS}, s11 offen sc1")
        e("s_waitcnt vmcnt(0)")
        chk = self.g4(32) + self.g4(36)
        e(f"v_xor_b32 v21, {chk[0][0]}, {chk[0][1]}")
        for r, t in chk[1:]:
            e(f"v_bitop3_b32 v21, {r}, {t}, v21 bitop3:0xbe")
        e("v_pk_add_f32 v[32:33], v[32:33], v[36:37]")
        e("v_pk_add_f32 v[34:35], v[34:35], v[38:39]")
        e(f"v_and_b32 v21, {sM10}, v21")
        e(f"v_cmp_ne_u32 vcc, 0, v21")
        e("s_cbranch_vccnz L_fin")
        self.reduce4(32)
        e("v_fma_f32 v32, v32, v61, v60")
        e("v_cvt_pk_bf16_f32 v32, v32, v32")
        e(f"buffer_store_short v32, v28, {SS1}, s15 offen")
        self.stamp(16)
        e(f"s_cmp_lg_u32 {sR}, 0")
        e("s_cbranch_scc1 L_fin")
        e("s_mov_b64 exec, 1")
        e(f"buffer_store_dwordx2 {v(vE0,2)}, off, {WS}, 0 sc1")
        e("s_mov_b64 exec, -1")
        e("s_branch L_fin")

    def role_gu(self):
        e = self.e
        thr = self.thr_gu
        e.c("================ GU ================")
        e(f"s_mov_b32 {sR}, {sJ}")
        self.srd(SW2, "s22", "s23", 576 * 8192)
        w1 = self.lab("w1")
        e(f"s_cmp_lg_u32 {sW}, 1")
        e(f"s_cbranch_scc1 {w1}")
        self.srd(SS2, "s16", "s17", 1152)
        e(f"buffer_load_dwordx4 v[32:35], {vL16}, {SS2}, 0 offen")
        e(f"buffer_load_dwordx4 v[36:39], {vL16}, {SS2}, 0 offen offset:1024")
        e(f"v_and_b32 v16, 7, {vL}")
        e(f"v_lshrrev_b32 v17, 4, {vL}")
        e(f"v_lshl_add_u32 v28, v16, 2, v17")
        e(f"v_lshlrev_b32 v16, 1, v28")
        e(f"s_lshl_b32 s8, {sR}, 6")
        e(f"buffer_load_ushort v40, v16, {SS2}, s8 offen")
        e.label(w1)
        n0 = self.lab("n0")
        e(f"s_cmp_lg_u32 {sW}, 0")
        e(f"s_cbranch_scc1 {n0}")
        e(f"s_waitcnt vmcnt({9+self.k0})")
        self.silu2(48)
        self.core(48, RW1, 9, 40, 32, vm_after=self.k0, lgkm=8)
        e(f"s_lshl_b32 s8, {sR}, 3")
        e(f"s_add_u32 s8, s8, {sX}")
        e(f"s_lshl_b32 s8, s8, 8")
        e(f"s_add_u32 s8, s8, {P1}")
        self.bsum_store(40, "s8", False)
        self.stamp(1)
        e.label(n0)
        e(f"v_lshrrev_b32 v16, 3, {vL}")
        e(f"v_lshlrev_b32 v16, 15, v16")
        e(f"v_and_b32 v17, 0x70, {vL16}")
        e(f"v_add_u32 {vWA}, v16, v17")
        e(f"s_lshl_b32 s14, {sR}, 18")
        e(f"s_lshl_b32 s8, {sX}, 10")
        e(f"s_add_u32 s14, s14, s8")
        e(f"s_lshl_b32 s8, {sW}, 7")
        e(f"s_add_u32 s14, s14, s8")

        def off_p2(d):
            e(f"s_mul_i32 {d}, {sX}, 18")
            e(f"s_add_u32 {d}, {d}, {sR}")
            e(f"s_lshl_b32 {d}, {d}, 11")
            e(f"s_add_u32 {d}, {d}, {P2}")

        def off_p3(d):
            e(f"s_lshl_b32 {d}, {sX}, 4")
            e(f"s_add_u32 {d}, {d}, {sR}")
            e(f"s_lshl_b32 {d}, {d}, 7")
            e(f"s_add_u32 {d}, {d}, {P3}")

        def off_p7(d):
            e(f"s_mul_i32 {d}, {sX}, 18")
            e(f"s_add_u32 {d}, {d}, {sR}")
            e(f"s_lshl_b32 {d}, {d}, 9")
            e(f"s_add_u32 {d}, {d}, {P7}")
        self.touch([(off_p2, 16), (off_p3, 1), (self.off_p4, 9), (off_p7, 4)])
        e(f"s_cmp_eq_u32 {sW}, 1")
        e(f"s_cbranch_scc1 L_GU_w1")
        e(f"s_waitcnt vmcnt({thr})")
        self.wloads(RW2, SW2, "s14", 8192, 0, 3, thr)
        self.wloads(RW2, SW2, "s14", 8192, 3, 4, thr if self.kpre > self.k0 else None)
        self.kvloads(RK, vKO, SK, self.k0, self.kpre, thr)
        e(f"s_branch L_GU_b1")
        e.label("L_GU_w1")
        self.wloads(RW2, SW2, "s14", 8192, 0, 4)
        e(f"s_waitcnt vmcnt(4)")
        e("v_mov_b32 v41, 0x3f803f80")
        e("v_mov_b32 v42, 0")
        e("v_mov_b32 v43, 0")
        for r in range(8):
            e(f"v_dot2_f32_bf16 v42, {v(32+r)}, v41, v42")
        for r in range(8):
            e(f"v_dot2_f32_bf16 v43, {v(32+r)}, {v(32+r)}, v43")
        e("v_permlane32_swap_b32 v42, v43")
        e("v_add_f32 v42, v42, v43")
        e("v_mov_b32 v43, v42")
        e("v_permlane16_swap_b32 v42, v43")
        e("v_add_f32 v42, v42, v43")
        for r in (8, 4, 2, 1):
            e(f"v_add_f32_dpp v42, v42, v42 row_ror:{r} {DPF}")
        e("v_mov_b32 v43, v42")
        e("v_permlane32_swap_b32 v42, v43")
        S1, S2, mb, rinv = "v42", "v43", "v44", "v45"
        e(f"v_mul_f32 {S1}, 0x3ae38e39, {S1}")
        e(f"v_mul_f32 {S2}, 0x3ae38e39, {S2}")
        e(f"v_fma_f32 {S2}, -{S1}, {S1}, {S2}")
        e(f"v_max_f32 {S2}, 0, {S2}")
        e(f"v_cvt_pk_bf16_f32 {rinv}, {S1}, {S2}")
        e(f"v_lshlrev_b32 {mb}, 16, {rinv}")
        e(f"v_and_b32 {S2}, {sHI}, {rinv}")
        e(f"v_add_f32 {S2}, 0x3727c5ac, {S2}")
        self.rb1(S2)
        e(f"v_sqrt_f32 {S2}, {S2}")
        self.rb1(S2)
        e(f"v_rcp_f32 {rinv}, {S2}")
        e("v_lshlrev_b32 v40, 16, v40")
        e("v_sub_f32 v40, v40, v44")
        self.rb1("v40")
        e("v_mul_f32 v40, v40, v45")
        self.rb1("v40")
        e("v_lshlrev_b32 v28, 2, v28")
        e(f"v_lshrrev_b32 v16, 3, {vL}")
        e(f"v_lshlrev_b32 v16, 8, v16")
        e(f"v_and_b32 v17, 0x70, {vL16}")
        e(f"v_add_u32 v26, v16, v17")
        e(f"s_lshr_b32 s8, {sR}, 1")
        e(f"s_lshl_b32 s8, s8, 11")
        e(f"s_and_b32 s9, {sR}, 1")
        e(f"s_lshl_b32 s9, s9, 7")
        e(f"s_add_u32 s8, s8, s9")
        e(f"s_add_u32 s8, s8, {P1}")
        e(f"s_add_u32 s9, s8, {9*2048}")
        cen = self.force is None
        self.kvloads(RK, vKO, SK, self.k0, self.kpre, thr)

        def issue():
            e(f"buffer_load_dwordx4 v[32:35], v26, {WS}, s8 offen sc1")
            e(f"buffer_load_dwordx4 v[36:39], v26, {WS}, s9 offen sc1")
        self.stamp(17)
        if self.p1wait:
            e("s_waitcnt vmcnt(0)")
            self.stamp(18)
        self.poll(issue, [(None, self.g4(32) + self.g4(36))])
        self.stamp(2)
        if self.stamps:
            e(f"v_writelane_b32 {vST}, {sSP}, 40")
        if cen:
            self.census_load(44)
        self.reduce4(32)
        self.reduce4(36)
        e(f"v_add_f32_dpp v32, v32, v32 row_ror:8 {DPF}")
        e(f"v_add_f32_dpp v36, v36, v36 row_ror:8 {DPF}")
        self.rb2("v32", "v36", "v33")
        e("v_add_f32 v36, 1.0, v36")
        self.rb1("v36")
        e("v_mul_f32 v36, v36, v40")
        self.rb1("v36")
        e("v_add_f32 v36, v36, v32")
        e("v_cvt_pk_bf16_f32 v36, v36, v36")
        e(f"ds_write_b32 v28, v36 offset:{L_H32}")
        if cen:
            e("s_waitcnt vmcnt(0)")
            self.census_eval(44, "s10")
            e("v_mov_b32 v44, s10")
            e("v_mov_b32 v45, 0")
            e(f"ds_write_b32 v45, v44 offset:{L_H32+128}")
        e.label("L_GU_b1")
        e(f"v_lshrrev_b32 v25, 3, {vL}")
        e(f"v_lshlrev_b32 v26, 4, v25")
        e("v_mov_b32 v27, 0")
        off_p2("s9")
        e(f"s_lshl_b32 s10, {sW}, 8")
        e(f"s_add_u32 s9, s9, s10")
        e("s_waitcnt lgkmcnt(0)")
        e("s_barrier")
        e(f"ds_read_b128 v[48:51], v26 offset:{L_H32}")
        if cen:
            e(f"ds_read_b32 v52, v27 offset:{L_H32+128}")
        e("s_waitcnt lgkmcnt(0)")
        if cen:
            e(f"v_readfirstlane_b32 {sLOC}, v52")
        e(f"s_waitcnt vmcnt({self.kpre - self.k0})")
        self.core(48, RW2, 4, 40, 32)
        self.bsum_store(40, "s9", True)
        self.stamp(3)
        e(f"s_cmp_lg_u32 {sW}, 0")
        e(f"s_cbranch_scc1 L_GU_b2")
        e(f"s_cmp_ge_u32 {sR}, 16")
        e(f"s_cbranch_scc1 L_GU_b2")
        e(f"s_mul_i32 s8, {sX}, {18*2048}")
        e(f"s_lshl_b32 s9, {sR}, 7")
        e(f"s_add_u32 s8, s8, s9")
        e(f"s_add_u32 s8, s8, {P2}")
        e(f"s_add_u32 s9, s8, {8*2048}")
        e(f"s_add_u32 s10, s8, {16*2048}")
        e(f"v_lshlrev_b32 v16, 11, v25")
        e(f"v_and_b32 v17, 0x70, {vL16}")
        e(f"v_add_u32 v26, v16, v17")
        e(f"v_lshrrev_b32 v16, 4, {vL}")
        e(f"v_lshl_add_u32 v27, v16, 2, v17")
        off_p3("s11")

        def issue3():
            e(f"buffer_load_dwordx4 v[32:35], v26, {WS}, s8 offen sc1")
            e(f"buffer_load_dwordx4 v[36:39], v26, {WS}, s9 offen sc1")
            e("s_mov_b64 exec, 0xffff")
            e(f"buffer_load_dwordx4 v[40:43], v26, {WS}, s10 offen sc1")
            e("s_mov_b64 exec, -1")
        self.poll(issue3, [(None, self.g4(32) + self.g4(36)), ("0xffff", self.g4(40))])
        e("v_pk_add_f32 v[32:33], v[32:33], v[36:37]")
        e("v_pk_add_f32 v[34:35], v[34:35], v[38:39]")
        e("s_mov_b64 exec, 0xffff")
        e("v_pk_add_f32 v[32:33], v[32:33], v[40:41]")
        e("v_pk_add_f32 v[34:35], v[34:35], v[42:43]")
        e("s_mov_b64 exec, -1")
        self.reduce4(32)
        e(f"v_add_f32_dpp v32, v32, v32 row_ror:8 {DPF}")
        e("v_cvt_pk_bf16_f32 v32, v32, v32")
        e(f"v_bfi_b32 v32, {sM10}, {vTs}, v32")
        e(f"s_mov_b64 exec, {mJ8}")
        self.lstore(f"buffer_store_dword v32, v27, {WS}, s11 offen")
        e("s_mov_b64 exec, -1")
        self.stamp(19)
        e.label("L_GU_b2")
        e(f"s_add_u32 s15, {sR}, 2")
        e(f"s_cmp_ge_u32 s15, 18")
        e(f"s_cselect_b32 s8, 18, 0")
        e(f"s_sub_u32 s15, s15, s8")
        e(f"s_cmp_ge_u32 {sW}, 4")
        e(f"s_cselect_b32 s9, s15, {sR}")
        e(f"s_cmp_ge_u32 s9, 9")
        e("s_cselect_b32 s60, s30, s28")
        e("s_cselect_b32 s61, s31, s29")
        e("s_cselect_b32 s8, 9, 0")
        e(f"s_mov_b32 s62, {576*9216}")
        e(f"s_sub_u32 s8, s9, s8")
        e(f"s_lshl_b32 s8, s8, 7")
        e(f"s_mul_i32 s14, {sX}, 1152")
        e(f"s_add_u32 s14, s14, s8")
        e(f"s_mul_i32 s8, {sW}, {72*9216}")
        e(f"s_add_u32 s14, s14, s8")
        self.voff9(9216)
        if not self.resume:
            e("s_barrier")

        t2 = self.thr_gu2
        S = Stream(e, self.it_kv("K", self.kpre, 8, t2) + self.it_kv("V", 0, 8, t2)
                   + self.it_w(RW2, SW2, "s14", 9216, 0, self.n_early_gu, t2)
                   + self.it_w(RW2, SW2, "s14", 9216, self.n_early_gu, 9, self.thr_post))
        nk = 8 - self.kpre
        self.attention(S, nk + self.qpos_gu, t2, nk + 8 + self.n_early_gu)
        if self.gate_n:
            e.c("hold the FFN weight stream until most attention partials of this slot are out")
            gd, gt = self.lab("gd"), self.lab("gt")
            e(f"s_cmp_lg_u32 {sW}, 0")
            e(f"s_cbranch_scc1 {gd}")
            e(f"s_mul_i32 s8, {sX}, {32*1152}")
            e(f"s_add_u32 s8, s8, {P4}")
            e(f"v_mul_u32_u24 v26, 1152, {vL}")
            e(f"s_mov_b32 {sSP}, 0")
            e("s_mov_b32 exec_hi, 0")
            e.label(gt)
            e(f"s_add_u32 {sSP}, {sSP}, 1")
            e(f"s_cmp_gt_u32 {sSP}, {SPIN}")
            e("s_cbranch_scc1 L_end")
            e(f"buffer_load_dword v32, v26, {WS}, s8 offen offset:1024 sc1")
            e("s_waitcnt vmcnt(0)")
            e(f"v_and_b32 v32, {sM10}, v32")
            e(f"v_cmp_eq_u32 vcc, v32, {v(TG[0])}")
            e("s_bcnt1_i32_b64 s9, vcc")
            e(f"s_cmp_lt_u32 s9, {self.gate_n}")
            e(f"s_cbranch_scc1 {gt}")
            e("s_mov_b64 exec, -1")
            e.label(gd)
        e("s_barrier")
        self.stamp(18)
        S.run(99)
        e.c("---- gather P9 (h2) in A layout ----")
        e(f"s_mul_i32 s8, {sX}, 2304")
        e(f"s_mul_i32 s9, {sW}, 288")
        e(f"s_add_u32 s8, s8, s9")
        e(f"s_add_u32 s8, s8, {P9}")
        e(f"v_lshrrev_b32 v16, 3, {vL}")
        e(f"v_lshlrev_b32 v26, 5, v16")
        e(f"v_lshlrev_b32 v27, 2, v16")
        off_p7("s12")
        e(f"s_sub_u32 s13, s15, {sR}")
        e(f"s_lshl_b32 s13, s13, 9")
        e(f"s_add_u32 s13, s13, s12")
        e(f"s_add_u32 s13, s13, 4")
        e(f"s_cmp_eq_u32 {sW}, 1")
        e(f"s_cselect_b32 s12, s13, s12")
        e(f"s_cselect_b32 s13, {4*ACCS}, 0")
        e(f"v_add_u32 v25, s13, {vAR}")
        e(f"v_lshlrev_b32 v24, 3, {vL}")

        def issue9():
            e(f"buffer_load_dwordx4 v[48:51], v26, {WS}, s8 offen sc1")
            e(f"buffer_load_dwordx4 v[52:55], v26, {WS}, s8 offen offset:16 sc1")
            e(f"buffer_load_dword v56, v27, {WS}, s8 offen offset:256 sc1")
        self.poll(issue9, [(None, self.g4(48) + self.g4(52) + [("v56", vTg)])], pipe=3 if self.pipe79 else 0, slp=self.slp)
        self.stamp(10)
        self.core(48, RW2, 9, 40, 32, perm=True)
        self.acc_add(40, L_ACC1)
        e(f"s_cmp_gt_u32 {sW}, 1")
        e(f"s_cbranch_scc1 L_fin")
        e(f"ds_read_b128 v[16:19], v25 offset:{L_ACC1}")
        e("s_waitcnt lgkmcnt(0)")
        self.reduce4(16)
        e(f"v_bfi_b32 v16, {sM10}, {vTq}, v16")
        self.lstore(f"buffer_store_dword v16, v24, {WS}, s12 offen")
        self.stamp(11)
        e("s_branch L_fin")


def generate(fn, **kw):
    g = Gen(**kw)
    e = g.build()
    body = e.text()
    nv = max(e.maxv + 1, 136)
    txt = wrap(body, 256, 512, lds=LDS_BYTES, vgpr=nv, sgpr=max(e.maxs + 1, 96))
    txt = txt.replace("\ns_endpgm\n", "\n    s_endpgm\nL_code_end:\n")
    open(fn, "w").write(txt)
    return e


if __name__ == "__main__":
    import itertools
    names = []
    for spec in sys.argv[1:]:
        nm, _, kv = spec.partition(":")
        kw = {}
        for p in kv.split(","):
            if p:
                k, _, val = p.partition("=")
                kw[k] = eval(val)
        e = generate(nm, **kw)
        names.append(nm)
    print(" ".join(names))
```

```python
import sys
from emit import Em
from asmgen import wrap, NAME

P1 = 0x1000
P2 = 0x10000
P3 = 0x60000
P4 = 0x70000
P5 = 0xC0000
P6 = 0x1C0000
P7 = 0x180000
P8 = 0xE0000
P9 = 0xE8000
P10 = 0xEE000
P11 = 0x1A0000
CEN = 0xF8000
STAMP = 0x100000
WS_BYTES = 0x200000
XS = 224

L_ACC1 = 0x0000
L_ACC2 = 0x0900
L_LNS = 0x1200
L_MX = 0x1280
L_H32 = 0x1300
L_ACCO = 0x1400
L_Q = 0x3800
LDS_BYTES = 0x3A00
ACCS = 272

sX, sJ, sW, sR, sSP = "s3", "s4", "s5", "s6", "s7"
WS, SK, SV, SW1, SW2, SS1, SS2 = "s[44:47]", "s[48:51]", "s[52:55]", "s[56:59]", "s[60:63]", "s[64:67]", "s[68:71]"
sM10, sHI, sLOC, sSEL, sL2E, sKV = "s72", "s73", "s74", "s75", "s76", "s77"
m36, mJ8, mT2, mODD, mHI = "s[82:83]", "s[84:85]", "s[86:87]", "s[88:89]", "s[90:91]"
vL, vL16 = "v0", "v1"
MK = [2, 3, 4, 5]
TG = [6, 7, 8, 9]
vTa0, vTa1 = "v10", "v11"
vWA, vWB = "v12", "v13"
vKO, vVO = "v14", "v210"
vST = "v15"
RK, RV, RW1, RW2 = 64, 96, 128, 164
vTb0, vTb1, vTs, vBO, vAA = "v200", "v201", "v202", "v203", "v204"
vDUM = "v205"
vE0, vE1 = 206, 207
vAR, vCO = "v208", "v209"
PS = [212, 213, 214, 215]
vA0, vA1, vL4 = "v204", "v211", "v234"
vTq, vTg = "v216", "v217"
KVO = ["s18", "s19", "s20", "s21", "s40", "s41", "s94", "s95"]
SPIN = 400000
DPF = "row_mask:0xf bank_mask:0xf"


def v(n, k=1):
    return f"v{n}" if k == 1 else f"v[{n}:{n+k-1}]"


class Stream:
    def __init__(self, e, items):
        self.e, self.items, self.pos, self.log = e, items, 0, []

    def step(self, wait=True, stop=None):
        if self.pos >= len(self.items) or (stop is not None and self.pos >= stop):
            return False
        name, fn, thr = self.items[self.pos]
        bulk = [i for i, (n, b) in enumerate(self.log) if b]
        if wait and thr is not None and len(bulk) > thr:
            self.e(f"s_waitcnt vmcnt({len(self.log) - 1 - bulk[-(thr + 1)]})")
        fn()
        self.log.append((name, True))
        self.pos += 1
        return True

    def run(self, stop):
        while self.step(stop=stop):
            pass

    def extra(self, name):
        self.log.append((name, False))

    def issued(self, name):
        return any(n == name for n, _ in self.log)

    def wait_for(self, name):
        idx = max(i for i, (n, _) in enumerate(self.log) if n == name)
        self.e(f"s_waitcnt vmcnt({len(self.log) - 1 - idx})")

    def index(self, name):
        return [n for n, _, _ in self.items].index(name)


class Gen:
    def __init__(self, stamps=False, force=None, thr=3, thr_gu=3, n_early_gu=1, n_early_wd=0, prefetch=True,
                 pretouch=True, kpre=4, thr_gu2=4, kvf='nt', wf='nt', qpos=2, qpos_gu=0, resume=False, mr_pre=3, late_first=True, thr_mr=3, thr_post=None, p1wait=False, thr_w=1, wd_pre=6, qpos_wd=3, gate_n=0, mod_on_gu=False, pipe4=False, pipe79=False, thr_dn=None, l2pf=0, kvmap='contig', pair=True, rotc=3, slp=0, k0=2, pfw=1, kdelay=False, tlbw=False, hold=0, holdg=False, rm=45, joint=False, dn_late=False, merge=False, ad_n=0, ad_steps=2, ad_per=2):
        self.e = Em()
        self.stamps = stamps
        self.force = force
        self.thr = thr
        self.thr_gu = thr_gu
        self.n_early_gu = n_early_gu
        self.n_early_wd = n_early_wd
        self.prefetch = prefetch
        self.pretouch = pretouch
        self.kpre = kpre
        self.kvf = kvf
        self.qpos = qpos
        self.pv_steps = 0
        self.thr_w = thr_w
        self.pipe4 = pipe4
        self.kvmap = 'rot'
        self.k0 = k0
        self.pfw = pfw
        self.hold = hold
        self.rm = rm
        self.ad_n, self.ad_steps, self.ad_per = ad_n, ad_steps, ad_per
        self.merge = merge
        self.dn_late = dn_late
        self.joint = joint
        self.holdg = holdg
        self.tlbw = tlbw
        self.kdelay = kdelay
        self.rotc = rotc
        self.slp = slp
        self.pair = pair
        self.l2pf = l2pf
        self.pipe79 = pipe79
        self.thr_dn = thr_dn
        self.gate_n = gate_n
        self.mod_on_gu = mod_on_gu
        self.qpos_wd = qpos_wd
        self.wd_pre = wd_pre
        self.p1wait = p1wait
        self.thr_post = thr_post
        self.qpos_gu = qpos_gu
        self.resume = resume
        self.mr_pre = mr_pre
        self.late_first = late_first
        self.thr_mr = thr if thr_mr is None else thr_mr
        self.wf = wf
        self.thr_gu2 = thr_gu2
        self.uid = 0

    def lab(self, p):
        self.uid += 1
        return f"L_{p}{self.uid}"

    def stamp(self, k):
        if self.stamps:
            e = self.e
            e("s_memrealtime s[92:93]")
            e("s_waitcnt lgkmcnt(0)")
            e(f"v_writelane_b32 {vST}, s92, {k}")

    def srd(self, srd, lo, hi, nbytes):
        b = int(srd[2:].split(":")[0])
        e = self.e
        e(f"s_mov_b32 s{b}, {lo}")
        e(f"s_mov_b32 s{b+1}, {hi}")
        e(f"s_mov_b32 s{b+2}, {nbytes}")
        e(f"s_mov_b32 s{b+3}, 0x20000")

    def lstore(self, text):
        e = self.e
        if self.force is not None:
            e(f"{text} {self.force}")
            return
        a, b = self.lab("ls"), self.lab("le")
        e(f"s_cmp_eq_u32 {sLOC}, 0")
        e(f"s_cbranch_scc1 {a}")
        e(text)
        e(f"s_branch {b}")
        e.label(a)
        e(f"{text} sc1")
        e.label(b)

    def lstore_multi(self, lines):
        e = self.e

        def emit(flag):
            for t in lines:
                e(f"{t} {flag}" if t.startswith("buffer_store") else t)
        if self.force is not None:
            emit(self.force)
            return
        a, b = self.lab("ls"), self.lab("le")
        e(f"s_cmp_eq_u32 {sLOC}, 0")
        e(f"s_cbranch_scc1 {a}")
        emit("")
        e(f"s_branch {b}")
        e.label(a)
        emit("sc1")
        e.label(b)

    def voff9(self, stride):
        e = self.e
        e(f"v_lshrrev_b32 v16, 3, {vL}")
        e(f"v_and_b32 v17, 0x70, {vL16}")
        e(f"v_mul_u32_u24 v16, {stride}, v16")
        e(f"v_lshl_add_u32 {vWA}, v16, 3, v17")
        e(f"v_add_u32 v16, {56*stride}, v16")
        e(f"v_add_u32 {vWB}, v16, v17")

    def wloads(self, base, srd, soff, step, t0, t1, thr=None):
        e = self.e
        for t in range(t0, t1):
            vo = vWB if t == 8 else vWA
            e(f"buffer_load_dwordx4 {v(base+4*t,4)}, {vo}, {srd}, {soff} offen {self.wf}")
            e(f"s_add_u32 {soff}, {soff}, {step}")
            if thr is not None:
                e(f"s_waitcnt vmcnt({thr})")

    def kvloads(self, base, vo, srd, t0, t1, thr=None):
        e = self.e
        for t in range(t0, t1):
            if self.kvmap == "rot2":
                e(f"buffer_load_dwordx4 {v(base+4*t,4)}, {vo}, {srd}, {KVO[t]} offen {self.kvf}")
                if thr is not None:
                    e(f"s_waitcnt vmcnt({thr})")
                continue
            if self.kvmap == "contig":
                e(f"s_mov_b32 {sKV}, {t*8192}")
            else:
                e(f"s_add_u32 {sKV}, s94, {t*(self.rm*0x2000 if self.rm else 0x20000)}")
                e(f"s_and_b32 {sKV}, {sKV}, 0xfffff")
            e(f"buffer_load_dwordx4 {v(base+4*t,4)}, {vo}, {srd}, {sKV} offen {self.kvf}")
            if thr is not None:
                e(f"s_waitcnt vmcnt({thr})")

    def stream(self, items):
        S = Stream(self.e, self.it_kv("K", 0, self.k0, None) + items)
        S.pos = self.k0
        S.log = [(f"K{t}", True) for t in range(self.k0)]
        return S

    def it_kv(self, kind, t0, t1, thr):
        base, vo, srd = (RK, vKO, SK) if kind == "K" else (RV, vVO, SV)
        return [(f"{kind}{t}", (lambda t=t: self.kvloads(base, vo, srd, t, t + 1)), thr) for t in range(t0, t1)]

    def it_w(self, base, srd, soff, step, t0, t1, thr):
        return [(f"W{t}", (lambda t=t: self.wloads(base, srd, soff, step, t, t + 1)), thr) for t in range(t0, t1)]

    def rb2(self, a, b, t):
        e = self.e
        e(f"v_cvt_pk_bf16_f32 {t}, {a}, {b}")
        e(f"v_lshlrev_b32 {a}, 16, {t}")
        e(f"v_and_b32 {b}, {sHI}, {t}")

    def rb1(self, a):
        e = self.e
        e(f"v_cvt_pk_bf16_f32 {a}, {a}, {a}")
        e(f"v_and_b32 {a}, {sHI}, {a}")

    def swz(self, X, src, n=8):
        for t in range(n):
            self.e(f"ds_swizzle_b32 {v(X+t)}, {src} offset:{(t << 5) | 0x18}")

    def core(self, X, W, T, D, A, vm_after=None, lgkm=None, perm=False, order=None):
        e = self.e
        seq = list(order or range(T))

        def prep(n):
            t = seq[n]
            a = A + 4 * (n & 1)
            if lgkm is not None and t < lgkm:
                e(f"s_waitcnt lgkmcnt({lgkm-1-t})")
            for k in range(4):
                if perm:
                    e(f"v_perm_b32 {v(a+k)}, {v(X+t)}, {v(X+t)}, {v(PS[k])}")
                else:
                    e(f"v_and_b32 {v(a+k)}, {v(X+t)}, {v(MK[k])}")
        prep(0)
        for n, t in enumerate(seq):
            a = A + 4 * (n & 1)
            if n == 0 and len(seq) > 1:
                prep(1)
            if vm_after is not None:
                e(f"s_waitcnt vmcnt({T-1-t+vm_after})")
            c = "0" if n == 0 else v(D, 4)
            e(f"v_mfma_f32_16x16x32_bf16 {v(D,4)}, {v(a,4)}, {v(W+4*t,4)}, {c}")
            if n + 2 < len(seq):
                prep(n + 2)

    def bsum(self, D):
        e = self.e
        e(f"v_permlane32_swap_b32 {v(D)}, {v(D+2)}")
        e(f"v_permlane32_swap_b32 {v(D+1)}, {v(D+3)}")
        e(f"v_add_f32_dpp {v(D)}, {v(D+2)}, {v(D)} row_ror:8 {DPF}")
        e(f"v_add_f32_dpp {v(D+1)}, {v(D+3)}, {v(D+1)} row_ror:8 {DPF}")

    def bsum_store(self, D, soff, local, lin=False):
        e = self.e
        self.bsum(D)
        e(f"v_bfi_b32 {v(D)}, {sM10}, {vTa0 if lin else vTb0}, {v(D)}")
        e(f"v_bfi_b32 {v(D+1)}, {sM10}, {vTa1 if lin else vTb1}, {v(D+1)}")
        e(f"s_mov_b64 exec, {mJ8}")
        t = f"buffer_store_dwordx2 {v(D,2)}, {lin or vBO}, {WS}, {soff} offen"
        if local:
            self.lstore(t)
        else:
            e(t + " sc1")
        e("s_mov_b64 exec, -1")

    def acc_addr(self, mode):
        e = self.e
        e(f"s_mul_i32 s8, {sW}, {ACCS}")
        if mode == "N":
            e(f"v_and_b32 v16, 1, {vL}")
            e(f"v_lshlrev_b32 v16, 5, v16")
            e(f"v_and_b32 v17, 16, {vL}")
            e(f"v_lshrrev_b32 v18, 5, {vL}")
            e(f"v_lshlrev_b32 v18, 3, v18")
            e(f"v_add3_u32 v16, v16, v17, v18")
            e(f"v_bfe_u32 v17, {vL}, 1, 2")
            e(f"v_add_lshl_u32 v16, v16, v17, 2")
            e(f"v_add_u32 {vA0}, s8, v16")
            e(f"v_add_u32 {vA1}, 16, {vA0}")
        else:
            e(f"v_and_b32 v16, 32, {vL}")
            e(f"v_and_b32 v17, 7, {vL}")
            e(f"v_lshl_add_u32 v16, v17, 1, v16")
            e(f"v_bfe_u32 v17, {vL}, 4, 1")
            e(f"v_add_lshl_u32 v16, v16, v17, 2")
            e(f"v_add_u32 {vA0}, s8, v16")
            e(f"v_add_u32 {vA1}, 64, {vA0}")

    def acc_add(self, D, acc):
        e = self.e
        self.bsum(D)
        e(f"s_mov_b64 exec, {mJ8}")
        e(f"ds_write_b32 {vA0}, {v(D)} offset:{acc}")
        e(f"ds_write_b32 {vA1}, {v(D+1)} offset:{acc}")
        e("s_mov_b64 exec, -1")
        e("s_waitcnt lgkmcnt(0)")
        e("s_barrier")

    def acc_publish(self, acc, soff, local, round_bf16, D=16):
        e = self.e
        skip = self.lab("ap")
        e(f"s_cmp_lg_u32 {sW}, 0")
        e(f"s_cbranch_scc1 {skip}")
        e(f"ds_read_b128 {v(D,4)}, {vAR} offset:{acc}")
        e(f"ds_read_b128 {v(D+4,4)}, {vAR} offset:{acc+4*ACCS}")
        e("s_waitcnt lgkmcnt(0)")
        self.sumrows([D])
        if round_bf16:
            e(f"v_cvt_pk_bf16_f32 {v(D)}, {v(D)}, {v(D)}")
        e(f"v_bfi_b32 {v(D)}, {sM10}, {vTq}, {v(D)}")
        t = f"buffer_store_dword {v(D)}, {vL4}, {WS}, {soff} offen"
        if local:
            self.lstore(t)
        else:
            e(t + " sc1")
        e.label(skip)

    def poll(self, issue, checks, acc="v21", pipe=0, slp=0):
        e = self.e
        top = self.lab("poll")
        e(f"s_mov_b32 {sSP}, 0")
        if pipe:
            issue()
        e.label(top)
        if slp:
            e(f"s_sleep {slp}")
        issue()
        e(f"s_add_u32 {sSP}, {sSP}, 1")
        e(f"s_cmp_gt_u32 {sSP}, {SPIN}")
        e("s_cbranch_scc1 L_end")
        if len(checks) == 1 and checks[0][0] is None:
            e(f"s_waitcnt vmcnt({pipe})")
            self.tagcheck(checks[0][1], acc)
            e(f"v_cmp_ne_u32 vcc, 0, {acc}")
            e(f"s_cbranch_vccnz {top}")
            return
        first = checks[0][0] is None
        if not first:
            e(f"v_mov_b32 {acc}, 0")
        e(f"s_waitcnt vmcnt({pipe})")
        for mask, lst in checks:
            if mask:
                e(f"s_mov_b64 exec, {mask}")
            for r, t in lst:
                if first:
                    e(f"v_xor_b32 {acc}, {r}, {t}")
                    first = False
                else:
                    e(f"v_bitop3_b32 {acc}, {r}, {t}, {acc} bitop3:0xbe")
            if mask:
                e("s_mov_b64 exec, -1")
        e(f"v_and_b32 {acc}, {sM10}, {acc}")
        e(f"v_cmp_ne_u32 vcc, 0, {acc}")
        e(f"s_cbranch_vccnz {top}")

    def tagcheck(self, lst, dst):
        e = self.e
        by = {}
        for r, t in lst:
            by.setdefault(t, []).append(r)
        tmp, rest, n = [], [], 0
        for t, rs in by.items():
            while len(rs) >= 2:
                a, b = rs.pop(), rs.pop()
                d = f"v{236+n}"
                n += 1
                e(f"v_bitop3_b32 {d}, {a}, {b}, {t} bitop3:0x7e")
                tmp.append(d)
            rest += [(r, t) for r in rs]
        if not tmp:
            r, t = rest.pop()
            e(f"v_xor_b32 v236, {r}, {t}")
            tmp = ["v236"]
        for k, (r, t) in enumerate(rest):
            d = tmp[k % len(tmp)]
            e(f"v_bitop3_b32 {d}, {r}, {t}, {d} bitop3:0xbe")
        while len(tmp) > 2:
            e(f"v_or3_b32 {tmp[0]}, {tmp[0]}, {tmp[1]}, {tmp[2]}")
            tmp = tmp[3:] + tmp[:1]
        if len(tmp) == 2:
            e(f"v_bitop3_b32 {dst}, {tmp[0]}, {tmp[1]}, {sM10} bitop3:0xa8")
        else:
            e(f"v_and_b32 {dst}, {sM10}, {tmp[0]}")

    def mpoll1(self, groups):
        e = self.e
        regs = ["s[96:97]", "s[98:99]"]
        top = self.lab("mq")
        for m, (bm, _, _) in enumerate(groups):
            e(f"s_mov_b64 {regs[m]}, {bm or -1}")
        e(f"s_mov_b32 {sSP}, 0")
        e.label(top)
        for m, (_, lds, _) in enumerate(groups):
            e(f"s_mov_b64 exec, {regs[m]}")
            if len(groups) > 1:
                sk = self.lab("ms")
                e(f"s_cbranch_execz {sk}")
            for t in lds:
                e(t)
            if len(groups) > 1:
                e.label(sk)
        e(f"s_add_u32 {sSP}, {sSP}, 1")
        e(f"s_cmp_gt_u32 {sSP}, {SPIN}")
        e("s_cbranch_scc1 L_end")
        if len(groups) > 1:
            e("s_mov_b64 exec, -1")
        e("s_waitcnt vmcnt(0)")
        for m, (_, _, lst) in enumerate(groups):
            self.tagcheck(lst, f"v{244+m}")
        if len(groups) == 1:
            e(f"v_cmp_ne_u32 vcc, 0, v244")
            e(f"s_mov_b64 {regs[0]}, vcc")
            e(f"s_cbranch_vccnz {top}")
            e("s_mov_b64 exec, -1")
        else:
            for m, (bm, _, _) in enumerate(groups):
                if bm:
                    e(f"s_mov_b64 exec, {bm}")
                e(f"v_cmp_ne_u32 {regs[m]}, 0, v{244+m}")
            e(f"s_or_b64 vcc, {regs[0]}, {regs[1]}")
            e("s_mov_b64 exec, -1")
            e(f"s_cbranch_scc1 {top}")

    def mpoll(self, loads, sb=96, pipe=False):
        if self.merge and all("dwordx4" in l[0] for l in loads):
            g = {}
            for txt, lst, bm in loads:
                ent = g.setdefault(bm, ([], []))
                ent[0].append(txt)
                ent[1].extend(lst)
            return self.mpoll1([(bm, a, b) for bm, (a, b) in g.items()])
        e = self.e
        regs = [f"s[{sb+2*m}:{sb+2*m+1}]" for m in range(3)] + ["s[78:79]", "s[80:81]", "s[82:83]"]
        top = self.lab("mp")
        for m, (_, _, bm) in enumerate(loads):
            e(f"s_mov_b64 {regs[m]}, {bm or -1}")
        e(f"s_mov_b32 {sSP}, 0")
        if pipe:
            for m, (txt, _, _) in enumerate(loads):
                e(f"s_mov_b64 exec, {regs[m]}")
                e(txt)
        e.label(top)
        for m, (txt, _, _) in enumerate(loads):
            e(f"s_mov_b64 exec, {regs[m]}")
            if pipe:
                e(txt)
            else:
                sk = self.lab("ms")
                e(f"s_cbranch_execz {sk}")
                e(txt)
                e.label(sk)
        e(f"s_mov_b64 exec, -1")
        e(f"s_add_u32 {sSP}, {sSP}, 1")
        e(f"s_cmp_gt_u32 {sSP}, {SPIN}")
        e("s_cbranch_scc1 L_end")
        e(f"s_waitcnt vmcnt({len(loads) if pipe else 0})")
        for m, (_, lst, _) in enumerate(loads):
            a = f"v{236+m}"
            e(f"v_xor_b32 {a}, {lst[0][0]}, {lst[0][1]}")
            for r, t in lst[1:]:
                e(f"v_bitop3_b32 {a}, {r}, {t}, {a} bitop3:0xbe")
        for m in range(len(loads)):
            e(f"v_and_b32 v{236+m}, {sM10}, v{236+m}")
        cur = None
        for m, (_, _, bm) in enumerate(loads):
            if bm != cur:
                e(f"s_mov_b64 exec, {bm or -1}")
                cur = bm
            e(f"v_cmp_ne_u32 {regs[m]}, 0, v{236+m}")
        for m, (txt, _, bm) in enumerate(loads):
            if "dwordx4" not in txt:
                e(f"s_cmp_lg_u64 {regs[m]}, 0")
                e(f"s_cselect_b64 {regs[m]}, {bm or -1}, 0")
        e(f"s_or_b64 vcc, {regs[0]}, {regs[1]}")
        for m in range(2, len(loads)):
            e(f"s_or_b64 vcc, vcc, {regs[m]}")
        if cur is not None:
            e("s_mov_b64 exec, -1")
        e(f"s_cbranch_scc1 {top}")

    def g4(self, base):
        return [(v(base + r), v(TG[r])) for r in range(4)]

    def reduce4(self, r):
        e = self.e
        e(f"v_permlane32_swap_b32 {v(r)}, {v(r+2)}")
        e(f"v_permlane32_swap_b32 {v(r+1)}, {v(r+3)}")
        e(f"v_add_f32 {v(r)}, {v(r)}, {v(r+2)}")
        e(f"v_add_f32 {v(r+1)}, {v(r+1)}, {v(r+3)}")
        e(f"v_permlane16_swap_b32 {v(r)}, {v(r+1)}")
        e(f"v_add_f32 {v(r)}, {v(r)}, {v(r+1)}")

    def c_loads(self, soff):
        e = self.e
        e(f"v_lshlrev_b32 v18, 1, {vL}")
        e(f"v_lshrrev_b32 v19, 3, {vL}")
        e(f"v_lshlrev_b32 v19, 1, v19")
        e(f"buffer_load_ushort v30, v18, {SS1}, {soff} offen")
        e(f"buffer_load_ushort v31, v19, {SS1}, {soff} offen offset:128")

    def silu1(self, a):
        e = self.e
        e(f"v_lshlrev_b32 {a}, 16, {a}")
        e(f"v_mul_f32 v33, 0xbfb8aa3b, {a}")
        e("v_exp_f32 v33, v33")
        e("v_add_f32 v33, 1.0, v33")
        e("v_rcp_f32 v33, v33")
        e(f"v_mul_f32 {a}, {a}, v33")
        e(f"v_cvt_pk_bf16_f32 {a}, {a}, {a}")

    def silu2(self, X):
        e = self.e
        e(f"v_lshlrev_b32 v30, 16, v30")
        e(f"v_lshlrev_b32 v31, 16, v31")
        e(f"v_mul_f32 v33, 0xbfb8aa3b, v30")
        e(f"v_mul_f32 v34, 0xbfb8aa3b, v31")
        e("v_exp_f32 v33, v33")
        e("v_exp_f32 v34, v34")
        e("v_add_f32 v33, 1.0, v33")
        e("v_add_f32 v34, 1.0, v34")
        e("v_rcp_f32 v33, v33")
        e("v_rcp_f32 v34, v34")
        e("v_mul_f32 v30, v30, v33")
        e("v_mul_f32 v31, v31, v34")
        e("v_cvt_pk_bf16_f32 v30, v30, v30")
        e(f"v_cvt_pk_bf16_f32 {v(X+8)}, v31, v31")
        self.swz(X, "v30")

    def consts(self, perm=False):
        e = self.e
        e.c("constants")
        e(f"s_mov_b32 {sSEL}, 0x07060302")
        e(f"s_mov_b32 {sL2E}, 0x3fb8aa3b")
        e("s_mov_b32 s82, -1"); e("s_mov_b32 s83, 15")
        e("s_mov_b32 s84, 0x00ff00ff"); e("s_mov_b32 s85, 0x00ff00ff")
        e("s_mov_b32 s86, 0x0f0f0f0f"); e("s_mov_b32 s87, 0x0f0f0f0f")
        e("s_mov_b32 s88, 0xaaaaaaaa"); e("s_mov_b32 s89, 0xaaaaaaaa")
        e("s_mov_b32 s90, 0"); e("s_mov_b32 s91, -1")
        e(f"v_mov_b32 v16, 0xffff")
        e(f"v_mov_b32 v17, {sHI}")
        e(f"v_cndmask_b32 v16, v16, v17, {mODD}")
        e(f"v_bfe_u32 v17, {vL}, 1, 2")
        if perm:
            e(f"v_mov_b32 v18, 0x0c0c0302")
            e(f"v_mov_b32 v19, 0x03020c0c")
            e(f"v_cndmask_b32 v18, v18, v19, {mODD}")
            e(f"v_mov_b32 v19, 0x0c0c0c0c")
        for k in range(4):
            e(f"v_cmp_eq_u32 vcc, {k}, v17")
            e(f"v_cndmask_b32 {v(MK[k])}, 0, v16, vcc")
            if perm:
                e(f"v_cndmask_b32 {v(PS[k])}, v19, v18, vcc")
        e(f"v_and_b32 v16, 15, {vL}")
        e(f"v_lshlrev_b32 v16, 5, v16")
        e(f"v_and_b32 v17, 16, {vL}")
        e(f"v_lshrrev_b32 v18, 5, {vL}")
        e(f"v_lshlrev_b32 v18, 3, v18")
        e(f"v_add3_u32 {vBO}, v16, v17, v18")
        e(f"v_lshlrev_b32 {vL4}, 2, {vL}")
        e(f"v_lshrrev_b32 v16, 4, {vL}")
        e(f"v_mul_u32_u24 v17, {ACCS}, v16")
        e(f"v_and_b32 v18, 0xf0, {vL16}")
        e(f"v_add_u32 {vAR}, v17, v18")
        e(f"v_lshl_add_u32 {vCO}, v16, 2, v18")
        self.acc_addr("N")

    def tags(self, touch=()):
        e = self.e
        e.c("tags from epoch+1")
        e("s_waitcnt lgkmcnt(0)")
        self.stamp(15)
        e("s_add_u32 s26, s26, 0x40100401")
        e("s_addc_u32 s27, s27, 0")
        e(f"v_mov_b32 {v(vE0)}, s26")
        e(f"v_mov_b32 {v(vE1)}, s27")
        e(f"v_and_b32 {v(TG[0])}, {sM10}, {v(vE0)}")
        e(f"v_bfe_u32 {v(TG[1])}, {v(vE0)}, 10, 10")
        e(f"v_bfe_u32 {v(TG[2])}, {v(vE0)}, 20, 10")
        e(f"v_alignbit_b32 {v(TG[3])}, {v(vE1)}, {v(vE0)}, 30")
        e(f"v_and_b32 {v(TG[3])}, {sM10}, {v(TG[3])}")
        e(f"v_cndmask_b32 {vTa0}, {v(TG[0])}, {v(TG[2])}, {mODD}")
        e(f"v_cndmask_b32 {vTa1}, {v(TG[1])}, {v(TG[3])}, {mODD}")
        e(f"v_cndmask_b32 {vTb0}, {v(TG[0])}, {v(TG[2])}, {mHI}")
        e(f"v_cndmask_b32 {vTb1}, {v(TG[1])}, {v(TG[3])}, {mHI}")
        e(f"v_and_b32 v16, 16, {vL}")
        e(f"v_cmp_ne_u32 vcc, 0, v16")
        e(f"v_cndmask_b32 {vTs}, {vTb0}, {vTb1}, vcc")
        e(f"v_and_b32 v16, 3, {vL}")
        e(f"v_mul_u32_u24 v16, 10, v16")
        e(f"v_lshrrev_b64 v[18:19], v16, {v(vE0,2)}")
        e(f"v_and_b32 {vTq}, {sM10}, v18")
        e(f"v_bfe_u32 v16, {vL}, 3, 2")
        e(f"v_mul_u32_u24 v16, 10, v16")
        e(f"v_lshrrev_b64 v[18:19], v16, {v(vE0,2)}")
        e(f"v_and_b32 {vTg}, {sM10}, v18")
        if self.force is None:
            sk = self.lab("cen")
            e(f"s_cmp_lg_u32 {sW}, 2")
            e(f"s_cbranch_scc1 {sk}")
            e("s_getreg_b32 s8, hwreg(HW_REG_XCC_ID)")
            e("s_and_b32 s8, s8, 0xff")
            e("s_lshl_b32 s8, s8, 16")
            e(f"v_or_b32 v16, s8, {vTq}")
            e(f"s_lshl_b32 s8, {sX}, 5")
            e(f"s_add_u32 s8, s8, {sJ}")
            e(f"s_lshl_b32 s8, s8, 4")
            e(f"s_add_u32 s8, s8, {CEN}")
            e(f"v_lshlrev_b32 v17, 2, {vL}")
            e("s_mov_b64 exec, 15")
            e(f"buffer_store_dword v16, v17, {WS}, s8 offen")
            e("s_mov_b64 exec, -1")
            e.label(sk)

    def touch(self, items):
        if not self.pretouch:
            return
        e = self.e
        sk = self.lab("tch")
        e(f"s_cmp_lg_u32 {sW}, 3")
        e(f"s_cbranch_scc1 {sk}")
        e(f"v_lshlrev_b32 v17, 7, {vL}")
        for fn, n in items:
            fn("s8")
            e(f"s_mov_b32 exec_lo, {min((1 << n) - 1, 0xffffffff)}")
            e(f"s_mov_b32 exec_hi, {((1 << n) - 1) >> 32}")
            e(f"buffer_load_dword {vDUM}, v17, {WS}, s8 offen sc1")
        e("s_mov_b64 exec, -1")
        e.label(sk)

    def census_load(self, r):
        e = self.e
        e(f"s_lshl_b32 s10, {sX}, 9")
        e(f"s_add_u32 s10, s10, {CEN}")
        e(f"v_and_b32 v16, 0x1f0, {vL16}")
        e(f"buffer_load_dwordx4 {v(r,4)}, v16, {WS}, s10 offen sc1")

    def sumrows(self, regs):
        e = self.e
        for r in regs:
            e(f"v_pk_add_f32 {v(r,2)}, {v(r,2)}, {v(r+4,2)}")
            e(f"v_pk_add_f32 {v(r+2,2)}, {v(r+2,2)}, {v(r+6,2)}")
        for r in regs:
            e(f"v_permlane32_swap_b32 {v(r)}, {v(r+2)}")
            e(f"v_permlane32_swap_b32 {v(r+1)}, {v(r+3)}")
        for r in regs:
            e(f"v_pk_add_f32 {v(r,2)}, {v(r,2)}, {v(r+2,2)}")
        for r in regs:
            e(f"v_permlane16_swap_b32 {v(r)}, {v(r+1)}")
        for r in regs:
            e(f"v_add_f32 {v(r)}, {v(r)}, {v(r+1)}")

    def census_eval(self, r, dst):
        e = self.e
        e(f"v_readfirstlane_b32 s10, {v(r)}")
        e(f"v_xor_b32 v17, {v(r)}, {v(TG[0])}")
        for k in range(1, 4):
            e(f"v_bitop3_b32 v17, {v(r+k)}, {v(TG[k])}, v17 bitop3:0xbe")
        e(f"v_and_b32 v17, {sM10}, v17")
        e(f"v_xor_b32 v18, s10, {v(r)}")
        e(f"v_or_b32 v17, v17, v18")
        e(f"v_cmp_ne_u32 vcc, 0, v17")
        e("s_cmp_eq_u64 vcc, 0")
        e(f"s_cselect_b32 {dst}, 1, 0")

    def off_p4(self, d):
        e = self.e
        e(f"s_lshl_b32 {d}, {sX}, 5")
        e(f"s_add_u32 {d}, {d}, {sJ}")
        e(f"s_mul_i32 {d}, {d}, 1152")
        e(f"s_add_u32 {d}, {d}, {P4}")

    def attention(self, S, qidx, qlag, stop):
        e = self.e
        e.c("==== attention ====")
        S.step(stop=qidx)
        S.step(stop=qidx)
        e(f"s_mul_i32 s9, {sX}, {18*2048}")
        e(f"s_lshr_b32 s10, {sJ}, 4")
        e(f"s_lshl_b32 s10, s10, 10")
        e(f"s_add_u32 s9, s9, s10")
        e(f"s_lshl_b32 s10, {sW}, 7")
        e(f"s_add_u32 s9, s9, s10")
        e(f"s_add_u32 s9, s9, {P2}")
        e(f"s_add_u32 s11, s9, {8*2048}")
        e(f"s_add_u32 s64, s9, {16*2048}")
        e(f"v_lshrrev_b32 v16, 3, {vL}")
        e(f"v_lshlrev_b32 v16, 11, v16")
        e(f"v_and_b32 v17, 0x70, {vL16}")
        e(f"v_add_u32 v28, v16, v17")
        e(f"v_and_b32 v16, 3, {vL}")
        e(f"v_lshlrev_b32 v16, 4, v16")
        e(f"v_and_b32 v17, 4, {vL}")
        e(f"v_lshrrev_b32 v18, 5, {vL}")
        e(f"v_lshlrev_b32 v18, 3, v18")
        e(f"v_add3_u32 v16, v16, v17, v18")
        e(f"v_bfe_u32 v17, {vL}, 4, 1")
        e(f"s_lshr_b32 s10, {sW}, 1")
        e(f"s_lshl_b32 s10, s10, 6")
        e(f"s_and_b32 s8, {sW}, 1")
        e(f"s_lshl_b32 s8, s8, 1")
        e(f"s_add_u32 s10, s10, s8")
        e(f"v_add3_u32 v16, v16, v17, s10")
        e(f"v_lshlrev_b32 v26, 1, v16")
        e(f"v_and_b32 v16, 8, {vL}")
        e(f"v_lshlrev_b32 v29, 2, v16")
        e(f"v_lshlrev_b32 v16, 5, v16")
        e(f"v_and_b32 v18, 3, {vL}")
        e(f"v_lshlrev_b32 v18, 6, v18")
        e(f"v_and_b32 v17, 0x30, {vL}")
        e(f"v_add3_u32 v27, v16, v17, v18")

        def issue():
            e(f"buffer_load_dwordx4 v[32:35], v28, {WS}, s9 offen sc1")
            e(f"buffer_load_dwordx4 v[36:39], v28, {WS}, s11 offen sc1")
            e("s_mov_b64 exec, 0xffff")
            e(f"buffer_load_dwordx4 v[44:47], v28, {WS}, s64 offen sc1")
            e("s_mov_b64 exec, -1")
        e(f"s_lshl_b32 s8, {sW}, 2")
        e(f"v_add_u32 v30, s8, v29")
        e(f"v_and_b32 v16, 32, {vL}")
        e(f"v_lshlrev_b32 v16, 2, v16")
        e(f"v_and_b32 v17, 12, {vL}")
        e(f"v_lshlrev_b32 v17, 3, v17")
        e(f"v_and_b32 v18, 19, {vL}")
        e(f"v_add3_u32 v22, v16, v17, v18")
        e(f"s_mul_i32 s8, {sW}, 1152")
        e(f"s_add_u32 s10, s8, {L_ACCO}")
        e(f"v_lshl_add_u32 v22, v22, 2, s10")
        e(f"v_and_b32 v16, 8, {vL}")
        e(f"v_add_u32 v31, s8, v16")
        e(f"v_lshrrev_b32 v16, 3, {vL}")
        e(f"v_mul_u32_u24 v24, 1152, v16")
        e(f"v_and_b32 v17, 0x70, {vL16}")
        e(f"s_lshl_b32 s8, {sW}, 7")
        e(f"v_add3_u32 v23, v24, v17, s8")
        e(f"v_and_b32 v16, 0x30, {vL}")
        e(f"v_lshrrev_b32 v19, 2, v16")
        e(f"v_lshrrev_b32 v17, 2, v17")
        e(f"v_lshl_add_u32 v20, v16, 1, v17")
        self.off_p4("s12")
        e(f"s_add_u32 s13, s12, s8")
        S.run(qidx)
        cen = self.force is None
        if cen:
            e(f"s_lshl_b32 s10, {sX}, 9")
            e(f"s_add_u32 s10, s10, {CEN}")
            e(f"v_and_b32 v16, 0x1f0, {vL16}")
            e(f"buffer_load_dwordx4 v[40:43], v16, {WS}, s10 offen sc1")
            S.extra("cen")
        for r in range(4):
            e(f"v_mov_b32 {v(44+r)}, {v(TG[r])}")
        issue()
        S.extra("q0")
        S.extra("q1")
        S.extra("q")
        S.run(min(stop, qidx + qlag))
        S.wait_for("q")
        if cen:
            self.census_eval(40, sLOC)
        chk = self.g4(32) + self.g4(36) + self.g4(44)
        e(f"v_xor_b32 v21, {chk[0][0]}, {chk[0][1]}")
        for r, t in chk[1:]:
            e(f"v_bitop3_b32 v21, {r}, {t}, v21 bitop3:0xbe")
        e(f"v_and_b32 v21, {sM10}, v21")
        e(f"v_cmp_ne_u32 vcc, 0, v21")
        ok = self.lab("qok")
        e(f"s_cbranch_vccz {ok}")
        self.stamp(13)
        self.poll(issue, [(None, chk)])
        e.label(ok)
        self.stamp(5)

        def vstep():
            S.step(stop=stop)
        vstep()
        e("v_pk_add_f32 v[32:33], v[32:33], v[44:45]")
        e("v_pk_add_f32 v[34:35], v[34:35], v[46:47]")
        self.sumrows([32])
        e(f"v_add_f32_dpp v32, v32, v32 row_ror:8 {DPF}")
        e("v_cvt_pk_bf16_f32 v32, v32, v32")
        e(f"ds_write_b16 v26, v32 offset:{L_Q}")
        e("s_waitcnt lgkmcnt(0)")
        e("s_barrier")
        e(f"ds_read_b128 v[32:35], v27 offset:{L_Q}")
        vstep()
        e("s_waitcnt lgkmcnt(0)")
        for k in range(4):
            e(f"v_cndmask_b32 {v(36+k)}, {v(32+k)}, 0, {mT2}")
        for k in range(4):
            e(f"v_cndmask_b32 {v(32+k)}, 0, {v(32+k)}, {mT2}")
        for u in range(4):
            e(f"v_mfma_f32_16x16x32_bf16 {v(40+4*u,4)}, {v(RK+8*u,4)}, v[32:35], 0")
        for u in range(4):
            e(f"v_mfma_f32_16x16x32_bf16 {v(40+4*u,4)}, {v(RK+8*u+4,4)}, v[36:39], {v(40+4*u,4)}")
        for u in range(4):
            e(f"v_mov_b32_dpp {v(56+u)}, {v(40+4*u)} quad_perm:[0,0,0,0] {DPF}")
        for i in range(1, 4):
            for u in range(4):
                e(f"v_add_f32_dpp {v(56+u)}, {v(40+4*u+i)}, {v(56+u)} quad_perm:[{i},{i},{i},{i}] {DPF}")
        self.rb2("v56", "v57", "v60")
        self.rb2("v58", "v59", "v61")
        for u in range(4):
            e(f"v_mul_f32 {v(56+u)}, 0x3db504f3, {v(56+u)}")
        self.rb2("v56", "v57", "v60")
        self.rb2("v58", "v59", "v61")
        e("v_max3_f32 v60, v56, v57, v58")
        e("v_max_f32 v60, v60, v59")
        e(f"v_max_f32_dpp v60, v60, v60 row_half_mirror {DPF}")
        e("v_mov_b32 v61, v60")
        e("v_permlane16_swap_b32 v60, v61")
        e("v_max_f32 v60, v60, v61")
        e("v_mov_b32 v61, v60")
        e("v_permlane32_swap_b32 v60, v61")
        e("v_max_f32 v60, v60, v61")
        e("s_mov_b64 exec, 0x101")
        e(f"ds_write_b32 v30, v60 offset:{L_MX}")
        e("s_mov_b64 exec, -1")
        vstep()
        e("s_waitcnt lgkmcnt(0)")
        e("s_barrier")
        e(f"ds_read_b128 v[40:43], v29 offset:{L_MX}")
        e(f"ds_read_b128 v[44:47], v29 offset:{L_MX+16}")
        vstep()
        e("s_waitcnt lgkmcnt(0)")
        e("v_max3_f32 v60, v40, v41, v42")
        e("v_max3_f32 v61, v43, v44, v45")
        e("v_max3_f32 v60, v60, v46, v47")
        e("v_max_f32 v60, v60, v61")
        for u in range(4):
            e(f"v_sub_f32 {v(56+u)}, {v(56+u)}, v60")
        for u in range(4):
            e(f"v_mul_f32 {v(56+u)}, {sL2E}, {v(56+u)}")
        for u in range(4):
            e(f"v_exp_f32 {v(56+u)}, {v(56+u)}")
        for u in range(4):
            e(f"v_cvt_pk_bf16_f32 {v(56+u)}, {v(56+u)}, {v(56+u)}")
        dp = DPF + " bound_ctrl:0"
        for t in range(8):
            p = v(56 + (t >> 1))
            a = RK + 4 * t
            for k in range(4):
                need_shift = (k >= 2) if (t & 1) == 0 else (k < 2)
                if need_shift:
                    sh = "row_shr:4" if (t & 1) == 0 else "row_shl:4"
                    e(f"v_and_b32_dpp {v(a+k)}, {p}, {v(MK[k])} {sh} {dp}")
                else:
                    e(f"v_and_b32 {v(a+k)}, {p}, {v(MK[k])}")
            if t == 3:
                vstep()
        for u in range(4):
            e(f"v_and_b32 {v(44+u)}, {sHI}, {v(56+u)}")
        e("v_add_f32 v44, v44, v45")
        e("v_add_f32 v46, v46, v47")
        e("v_add_f32 v61, v44, v46")
        e(f"v_add_f32_dpp v61, v61, v61 row_half_mirror {DPF}")
        e("v_mov_b32 v44, v61")
        e("v_permlane16_swap_b32 v61, v44")
        e("v_add_f32 v61, v61, v44")
        e("v_mov_b32 v44, v61")
        e("v_permlane32_swap_b32 v61, v44")
        e("v_add_f32 v61, v61, v44")
        e(f"s_cmp_eq_u32 {sW}, 0")
        e("s_cselect_b32 s10, -1, 0")
        e("v_and_b32 v60, s10, v60")
        e("s_mov_b64 exec, 0x101")
        e(f"ds_write_b64 v31, v[60:61] offset:{L_ACCO+1024}")
        e("s_mov_b64 exec, -1")
        while not S.issued("V7"):
            vstep()
        self.stamp(6)
        for t in range(8):
            S.wait_for(f"V{t}")
            c = "0" if t == 0 else "v[40:43]"
            e(f"v_mfma_f32_16x16x32_bf16 v[40:43], {v(RK+4*t,4)}, {v(RV+4*t,4)}, {c}")
            if t < 7 and S.pos < min(stop, len(S.items)) and S.pos - 1 - S.index(f"V{t}") <= S.items[S.pos][2]:
                S.step(wait=False, stop=stop)
        self.stamp(7)
        e(f"ds_write2_b32 v22, v40, v41 offset0:0 offset1:4")
        e(f"ds_write2_b32 v22, v42, v43 offset0:8 offset1:12")
        e("s_waitcnt lgkmcnt(0)")
        e("s_barrier")
        e(f"ds_read_b128 v[40:43], v23 offset:{L_ACCO}")
        e(f"ds_read_b128 v[44:47], v24 offset:{L_ACCO+1024}")
        e("s_waitcnt lgkmcnt(1)")
        self.reduce4(40)
        e(f"v_add_f32_dpp v40, v40, v40 row_ror:8 {DPF}")
        e(f"v_bfi_b32 v40, {sM10}, {vTq}, v40")
        e(f"s_mov_b64 exec, {mJ8}")
        self.lstore(f"buffer_store_dword v40, v20, {WS}, s13 offen")
        S.extra("p4")
        e("s_mov_b64 exec, -1")
        sk = self.lab("p4")
        e(f"s_cmp_lg_u32 {sW}, 7")
        e(f"s_cbranch_scc1 {sk}")
        e("s_waitcnt lgkmcnt(0)")
        self.reduce4(44)
        e(f"v_add_f32_dpp v44, v44, v44 row_ror:8 {DPF}")
        e(f"v_bfi_b32 v44, {sM10}, {vTs}, v44")
        e("s_mov_b32 s10, 0x00010001"); e("s_mov_b32 s11, 0x00010001")
        e("s_mov_b64 exec, s[10:11]")
        self.lstore(f"buffer_store_dword v44, v19, {WS}, s12 offen offset:1024")
        e("s_mov_b64 exec, -1")
        e.label(sk)
        e("s_waitcnt lgkmcnt(0)")
        self.stamp(8)

    def build(self):
        e = self.e
        k0 = self.k0
        e("s_cmp_ge_u32 s2, 256")
        e("s_cbranch_scc1 L_end")
        e("s_load_dwordx16 s[16:31], s[0:1], 0")
        e("s_load_dwordx8 s[32:39], s[0:1], 64")
        e("s_load_dwordx4 s[40:43], s[0:1], 96")
        if self.stamps or self.hold:
            e("s_memrealtime s[98:99]")
        e("v_lshrrev_b32 v16, 6, v0")
        e("v_and_b32 v0, 63, v0")
        e(f"v_readfirstlane_b32 {sW}, v16")
        e(f"v_lshlrev_b32 {vL16}, 4, v0")
        e(f"s_and_b32 {sX}, s2, 7")
        e(f"s_lshr_b32 {sJ}, s2, 3")
        if self.prefetch:
            sk = self.lab("pf")
            e(f"s_cmp_lg_u32 {sW}, {self.pfw}")
            e(f"s_cbranch_scc1 {sk}")
            e("s_getpc_b64 s[8:9]")
            e.label("L_pc")
            e(f"v_lshlrev_b32 v16, 7, v0")
            e.raw("    .set CODE_LEFT, L_code_end - L_pc")
            for k in range(3):
                e(f"v_cmp_gt_u32 vcc, CODE_LEFT-4, v16")
                e("s_and_saveexec_b64 s[10:11], vcc")
                e(f"s_cbranch_execz L_pfx{k}")
                e(f"global_load_dword {vDUM}, v16, s[8:9]")
                e.label(f"L_pfx{k}")
                e("s_mov_b64 exec, -1")
                e("v_add_u32 v16, 0x2000, v16")
            e.label(sk)
        e(f"s_lshl_b32 s12, {sX}, 1")
        e(f"s_lshr_b32 s13, {sJ}, 4")
        e(f"s_add_u32 s12, s12, s13")
        e(f"s_lshl_b32 s12, s12, 24")
        e(f"s_add_u32 s12, s12, {61440*256}")
        e(f"s_and_b32 s13, {sJ}, 15")
        e(f"s_mul_i32 s94, s13, {((8*self.rm) % 128)*0x2000 if self.rm else 0x22000}")
        e("s_mov_b32 s50, 0x100000"); e("s_mov_b32 s51, 0x20000")
        e(f"s_lshl_b32 s95, {sW}, 10")
        e(f"v_and_b32 v16, 15, {vL}")
        e(f"v_lshlrev_b32 v16, 6, v16")
        e(f"v_and_b32 v17, 0x30, {vL}")
        e(f"v_add3_u32 {vKO}, v16, v17, s95")
        e(f"s_cmp_lt_u32 {sJ}, 18")
        e(f"s_cselect_b32 s15, {sW}, 1")
        e("s_cmp_lg_u32 s15, 0")
        e("s_cbranch_scc1 L_nomod")
        self.voff9(6912)
        e(f"v_lshlrev_b32 v18, 1, {vL}")
        e(f"v_lshrrev_b32 v19, 3, {vL}")
        e(f"v_lshlrev_b32 v19, 1, v19")
        e(f"s_mul_i32 s14, {sX}, {72*6912}")
        e(f"s_lshl_b32 s8, {sJ}, 7")
        e(f"s_add_u32 s14, s14, s8")
        e(f"s_mul_i32 s8, {sX}, 144")
        e("s_mov_b32 s66, 1152"); e("s_mov_b32 s67, 0x20000")
        e(f"s_mov_b32 s58, {576*6912}"); e("s_mov_b32 s59, 0x20000")
        e("s_waitcnt lgkmcnt(0)")
        e("s_mov_b32 s64, s34"); e("s_mov_b32 s65, s35")
        e("s_mov_b32 s56, s36"); e("s_mov_b32 s57, s37")
        e(f"buffer_load_ushort v30, v18, {SS1}, s8 offen")
        e(f"buffer_load_ushort v31, v19, {SS1}, s8 offen offset:128")
        self.wloads(RW1, SW1, "s14", 6912, 0, 9)
        e.label("L_nomod")
        e("s_waitcnt lgkmcnt(0)")
        e("s_add_u32 s48, s18, s12"); e("s_addc_u32 s49, s19, 0")
        if self.hold:
            e("v_mov_b32 v250, s98")
        if self.holdg:
            e("s_and_b32 s8, s98, 0x7fffffff")
            e("s_not_b32 s8, s8")
            e("v_mov_b32 v251, s8")
            e("v_mov_b32 v252, 0")
            e("s_mov_b32 s96, s40"); e("s_mov_b32 s97, s41")
            hg = self.lab("hg")
            e(f"s_cmp_lg_u32 {sW}, 0")
            e(f"s_cbranch_scc1 {hg}")
            e("s_mov_b64 exec, 1")
            e("global_atomic_umax v252, v251, s[40:41] sc1")
            e("s_mov_b64 exec, -1")
            e.label(hg)
        e("s_load_dwordx2 s[26:27], s[42:43], 0")
        if self.tlbw:
            e.c("one wave starts the address translations of every buffer used later (values are ignored)")
            tw = self.lab("tw")
            e(f"s_cmp_lg_u32 {sW}, 2")
            e(f"s_cbranch_scc1 {tw}")
            e("s_add_u32 s8, s20, s12"); e("s_addc_u32 s9, s21, 0")
            e(f"v_lshlrev_b32 v16, 21, {vL}")
            e("s_mov_b64 exec, 1")
            for p in ("s[8:9]", "s[42:43]", "s[16:17]", "s[34:35]", "s[38:39]"):
                e(f"global_load_dword {vDUM}, v16, {p}")
            e("s_mov_b64 exec, 3")
            e(f"global_load_dword {vDUM}, v16, s[36:37]")
            e("s_mov_b64 exec, 7")
            for p in ("s[22:23]", "s[24:25]", "s[28:29]", "s[30:31]", "s[32:33]"):
                e(f"global_load_dword {vDUM}, v16, {p}")
            e("s_mov_b64 exec, -1")
            e.label(tw)
        if not self.kdelay:
            self.kvloads(RK, vKO, SK, 0, k0)
        if self.stamps:
            e(f"v_mov_b32 {vST}, 0")
            e(f"v_writelane_b32 {vST}, s98, 0")
        e(f"s_mov_b32 {sM10}, 0x3ff")
        e(f"s_mov_b32 {sHI}, 0xffff0000")
        e(f"s_mov_b32 {sLOC}, 0")
        e(f"v_add_u32 {vVO}, s95, {vL16}")
        self.srd(WS, "s42", "s43", WS_BYTES)
        e("s_add_u32 s52, s20, s12"); e("s_addc_u32 s53, s21, 0"); e("s_mov_b32 s54, 0x100000"); e("s_mov_b32 s55, 0x20000")
        self.consts()
        if self.kdelay:
            self.kvloads(RK, vKO, SK, 0, k0)
        self.tags()
        e(f"s_cmp_ge_u32 {sJ}, 27")
        e("s_cbranch_scc1 L_MR")
        e(f"s_cmp_ge_u32 {sJ}, 18")
        e("s_cbranch_scc1 L_WD")
        self.role_gu()
        self.role_wd()
        self.role_mr()
        e.label("L_fin")
        if self.hold:
            if self.holdg:
                e.label("L_hold")
                e("s_sleep 32")
                e("global_load_dword v250, v252, s[40:41] sc1")
                e("s_waitcnt vmcnt(0)")
                e("v_readfirstlane_b32 s10, v250")
                e("s_memrealtime s[8:9]")
                e("s_not_b32 s10, s10")
                e("s_waitcnt lgkmcnt(0)")
                e("s_and_b32 s8, s8, 0x7fffffff")
                e("s_sub_u32 s8, s8, s10")
                e(f"s_cmp_lt_u32 s8, {self.hold - 300}")
                e("s_cbranch_scc1 L_hold")
                e.label("L_hold2")
                e("s_sleep 4")
                e("s_memrealtime s[8:9]")
                e("s_waitcnt lgkmcnt(0)")
                e("s_and_b32 s8, s8, 0x7fffffff")
                e("s_sub_u32 s8, s8, s10")
                e(f"s_cmp_lt_u32 s8, {self.hold}")
                e("s_cbranch_scc1 L_hold2")
                e("s_branch L_end")
            e("v_readfirstlane_b32 s10, v250")
            e.label("L_hold" if not self.holdg else "L_holdx")
            e("s_sleep 4")
            e("s_memrealtime s[8:9]")
            e("s_waitcnt lgkmcnt(0)")
            e("s_sub_u32 s8, s8, s10")
            e(f"s_cmp_lt_u32 s8, {self.hold}")
            e("s_cbranch_scc1 L_hold")
        if self.stamps:
            e(f"s_lshl_b32 s8, s2, 3")
            e(f"s_add_u32 s8, s8, {sW}")
            e(f"s_lshl_b32 s8, s8, 8")
            e(f"s_add_u32 s8, s8, {STAMP}")
            e(f"v_lshlrev_b32 v16, 2, {vL}")
            e(f"buffer_store_dword {vST}, v16, {WS}, s8 offen")
        e.label("L_end")
        return e

    def role_mr(self):
        e = self.e
        thr = self.thr_mr
        npre = self.mr_pre
        e.label("L_MR")
        e.c("================ MR ================")
        e(f"s_sub_u32 {sR}, {sJ}, 27")
        e(f"s_lshl_b32 {sR}, {sR}, 3")
        e(f"s_add_u32 {sR}, {sR}, {sX}")

        def off_x(base):
            def f(d):
                e(f"s_mul_i32 {d}, {sX}, 2304")
                e(f"s_add_u32 {d}, {d}, {base}")
            return f
        self.srd(SS1, "s34", "s35", 1152)
        self.srd(SW1, "s36", "s37", 576 * 6912)
        e(f"s_cmp_ge_u32 {sR}, 36")
        e(f"s_cselect_b32 s58, 0, s58")
        e(f"v_lshrrev_b32 v16, 3, {vL}")
        e(f"v_mul_u32_u24 v17, 10, v16")
        e(f"v_and_b32 v18, 7, {vL}")
        e(f"v_lshl_add_u32 v17, v18, 1, v17")
        e(f"s_mul_i32 s8, {sW}, 80")
        e(f"buffer_load_ushort v30, v17, {SS1}, s8 offen")
        e(f"v_mul_u32_u24 v16, {5*6912}, v16")
        e(f"v_lshl_add_u32 {vWA}, v18, 4, v16")
        e(f"s_mul_i32 s14, {sW}, {40*6912}")
        e(f"s_lshl_b32 s8, {sR}, 7")
        e(f"s_add_u32 s14, s14, s8")
        e(f"s_add_u32 s14, s14, {18*128}")
        S = self.stream(self.it_w(RW1, SW1, "s14", 6912, 0, 5, thr) + self.it_kv("K", self.k0, 8, thr) + self.it_kv("V", 0, 8, thr))
        S.extra("c")
        S.run(self.k0 + thr + 1)
        S.wait_for("c")
        self.silu1("v30")
        self.swz(48, "v30", 5)

        def off_p11(d):
            e(f"s_mul_i32 {d}, {sX}, {3*2304}")
            e(f"s_add_u32 {d}, {d}, {P11}")
        self.touch([(self.off_p4, 9), (off_x(P9), 18), (off_x(P10), 18), (off_p11, 45)])
        e("s_waitcnt lgkmcnt(0)")
        S.run(self.k0 + 5 + thr + 1)
        S.wait_for("W4")
        self.core(48, RW1, 5, 40, 32)
        self.acc_add(40, L_ACC1)
        sk = self.lab("mri")
        e(f"s_cmp_ge_u32 {sR}, 36")
        e(f"s_cbranch_scc1 {sk}")
        e(f"s_lshl_b32 s8, {sR}, 8")
        e(f"s_add_u32 s8, s8, {P6}")
        self.acc_publish(L_ACC1, "s8", False, False)
        e.label(sk)
        self.stamp(4)
        self.attention(S, 13 + self.qpos, thr, 21)
        e.c("================ reducers: one wave per 64-column slice ================")
        e(f"s_sub_u32 s8, {sJ}, 27")
        e(f"s_lshl_b32 s8, s8, 1")
        e(f"s_add_u32 s8, s8, {sW}")
        e(f"s_cmp_gt_u32 {sW}, 1")
        e("s_cbranch_scc1 L_fin")
        e("s_cmp_gt_u32 s8, 8")
        e("s_cbranch_scc1 L_fin")
        self.srd(SS2, "s16", "s17", 1152)
        e("s_lshl_b32 s9, s8, 7")
        e(f"v_lshlrev_b32 v25, 1, {vL}")
        e(f"buffer_load_ushort v62, v25, {SS2}, s9 offen")
        e(f"s_mul_i32 s12, {sX}, {3*2304}")
        e(f"s_add_u32 s12, s12, {P11}")
        e(f"s_add_u32 s13, s12, s9")
        e(f"s_add_u32 s13, s13, 4608")
        e("s_lshl_b32 s8, s8, 8")
        e("s_add_u32 s12, s12, s8")
        e(f"s_add_u32 s10, s8, {P6}")
        e(f"s_add_u32 s11, s10, 4608")
        e(f"v_lshrrev_b32 v16, 4, {vL}")
        e(f"v_lshlrev_b32 v26, 2, v16")
        e(f"v_mul_u32_u24 v16, 2304, v16")
        e(f"v_and_b32 v17, 0xf0, {vL16}")
        e(f"v_add_u32 v27, v16, v17")
        e(f"s_add_u32 s14, s8, {P5}")
        e(f"s_add_u32 s15, s14, {4*2304}")
        off_x(P9)("s64")
        e("s_add_u32 s64, s64, s8")
        e(f"s_add_u32 s65, s64, {P10-P9}")
        e("s_mov_b32 s66, 0x00010001"); e("s_mov_b32 s67, 0x00010001")
        e("s_movk_i32 s68, 9216")
        l5 = [(f"buffer_load_dwordx4 {v(32+4*m,4)}, v27, {WS}, {so} offen sc1", self.g4(32+4*m), None) for m, so in enumerate(("s14", "s15"))]
        e(f"v_lshrrev_b32 v16, 4, {vL}")
        e(f"v_mul_u32_u24 v16, 9216, v16")
        e(f"v_add3_u32 v24, v16, v17, s68")

        def issue6():
            for k, (so, off) in enumerate((("s10", 0), ("s10", 2304), ("s11", 0))):
                e(f"buffer_load_dword {v(56+2*k)}, {vL4}, {WS}, {so} offen offset:{off} sc1")
                e(f"buffer_load_dwordx4 {v(40+4*k,4)}, v24, {WS}, {so} offen offset:{off} sc1")
        self.poll(issue6, [(None, [(v(r), vTq) for r in (56, 58, 60)] + self.g4(40) + self.g4(44) + self.g4(48))])
        for k in range(3):
            self.reduce4(40 + 4 * k)
            e(f"v_add_f32 {v(56+2*k)}, {v(56+2*k)}, {v(40+4*k)}")
            self.rb1(v(56 + 2 * k))
        e("v_add_f32 v60, 1.0, v60")
        self.rb1("v60")
        e(f"v_or_b32 v61, v60, {vTq}")
        e(f"v_or_b32 v58, v58, {vTq}")
        e("v_lshlrev_b32 v62, 16, v62")
        self.lstore_multi([f"buffer_store_dword v61, {vL4}, {WS}, s12 offen",
                           f"buffer_store_dword v58, {vL4}, {WS}, s12 offen offset:2304"])
        self.stamp(9)
        self.mpoll(l5)
        self.stamp(10)
        self.sumrows([32])
        e("v_fma_f32 v62, v32, v56, v62")
        e("v_mul_f32 v33, v62, v60")
        e("v_mov_b32 v36, v62")
        e("v_mul_f32 v37, v62, v62")
        e(f"v_bfi_b32 v33, {sM10}, {vTq}, v33")
        self.lstore(f"buffer_store_dword v33, {vL4}, {WS}, s64 offen")
        e("v_permlane32_swap_b32 v36, v37")
        e("v_add_f32 v36, v36, v37")
        for r in (8, 4, 2, 1):
            e(f"v_add_f32_dpp v36, v36, v36 row_ror:{r} {DPF}")
        e(f"v_bfi_b32 v36, {sM10}, {vTs}, v36")
        e(f"v_bfi_b32 v62, {sM10}, {vTq}, v62")
        self.lstore_multi(["s_mov_b64 exec, s[66:67]",
                           f"buffer_store_dword v36, v26, {WS}, s13 offen",
                           "s_mov_b64 exec, -1",
                           f"buffer_store_dword v62, {vL4}, {WS}, s65 offen"])
        self.stamp(11)

    def role_wd(self):
        e = self.e
        thr = self.thr
        e.label("L_WD")
        e.c("================ WD ================")
        e(f"s_sub_u32 {sR}, {sJ}, 18")
        self.srd(SW1, "s24", "s25", 4096 * 1152)
        self.srd(SW2, "s32", "s33", 4608 * 1152)
        e(f"v_and_b32 v16, 8, {vL}")
        e(f"v_lshlrev_b32 v16, 2, v16")
        e(f"v_lshrrev_b32 v17, 4, {vL}")
        e(f"v_add_u32 v16, v16, v17")
        e(f"v_mul_u32_u24 v16, 1152, v16")
        e(f"v_and_b32 v17, 0x70, {vL16}")
        e(f"v_add_u32 {vWA}, v16, v17")
        e(f"s_lshl_b32 s14, {sX}, 3")
        e(f"s_add_u32 s14, s14, {sW}")
        e(f"s_mul_i32 s15, s14, {72*1152}")
        e(f"s_mul_i32 s14, s14, {64*1152}")
        e(f"s_lshl_b32 s8, {sR}, 7")
        e(f"s_add_u32 s14, s14, s8")
        e(f"s_add_u32 s15, s15, s8")
        wp = self.wd_pre
        S = self.stream(self.it_w(RW1, SW1, "s14", 4 * 1152, 0, wp, thr) + self.it_kv("K", self.k0, 8, thr) + self.it_kv("V", 0, 8, thr)
                        + self.it_w(RW1, SW1, "s14", 4 * 1152, wp, 8, thr))
        self.touch([(self.off_p4, 9)])
        self.attention(S, wp + 8 + self.qpos_wd, thr, 24)
        S.run(24)
        self.voff9(1152)
        ne = self.n_early_wd
        self.wloads(RW2, SW2, "s15", 1152, 0, ne, self.thr_w)
        e.c("---- combine: gather P4 ----")
        e(f"s_lshl_b32 s8, {sX}, 5")
        e(f"s_lshr_b32 s9, {sW}, 2")
        e(f"s_lshl_b32 s9, s9, 4")
        e(f"s_add_u32 s8, s8, s9")
        e(f"s_mul_i32 s8, s8, 1152")
        e(f"s_add_u32 s8, s8, {P4}")
        e(f"s_and_b32 s9, {sW}, 3")
        e(f"s_lshl_b32 s9, s9, 8")
        e(f"s_add_u32 s9, s9, s8")
        e(f"v_lshrrev_b32 v16, 4, {vL}")
        e(f"v_mul_u32_u24 v17, {4*1152}, v16")
        e(f"v_and_b32 v18, 0xf0, {vL16}")
        e(f"v_add_u32 v26, v17, v18")
        e(f"v_lshl_add_u32 v17, v16, 2, {vL}")
        e(f"v_and_b32 v17, 15, v17")
        e(f"v_mul_u32_u24 v27, 1152, v17")
        e(f"s_mul_i32 s10, {sX}, 2304")
        e(f"s_lshl_b32 s11, {sR}, 8")
        e(f"s_add_u32 s13, s10, s11")
        e(f"s_add_u32 s12, s13, {P5}")
        e(f"s_mov_b32 s64, s8")
        self.acc_addr("T")
        e(f"s_mov_b32 s8, s64")
        e(f"s_bitcmp1_b32 {sW}, 1")
        e("s_cselect_b64 s[10:11], -1, 0")

        if self.ad_n:
            e.c("while few partials are out, use the wait to fetch w_down rows")
            e("s_mov_b32 s69, 0")
            done = self.lab("ad")
            for st in range(self.ad_steps):
                e("s_mov_b64 exec, 0xffff")
                e(f"buffer_load_dword v48, v27, {WS}, s8 offen offset:1024 sc1")
                e("s_waitcnt vmcnt(0)")
                e(f"v_and_b32 v48, {sM10}, v48")
                e(f"v_cmp_eq_u32 vcc, v48, {v(TG[0])}")
                e("s_mov_b64 exec, -1")
                e("s_bcnt1_i32_b64 s68, vcc")
                e(f"s_cmp_ge_u32 s68, {self.ad_n}")
                e(f"s_cbranch_scc1 {done}")
                self.wloads(RW2, SW2, "s15", 1152, st * self.ad_per, (st + 1) * self.ad_per)
                e(f"s_mov_b32 s69, {st+1}")
            e.label(done)
        self.mpoll([(f"buffer_load_dwordx4 v[48:51], v27, {WS}, s8 offen offset:1024 sc1", self.g4(48), None)]
                   + [(f"buffer_load_dwordx4 {v(32+4*m,4)}, v26, {WS}, s9 offen offset:{1152*m} sc1", self.g4(32+4*m), None) for m in range(4)], pipe=self.pipe4)
        self.stamp(9)
        e("v_cndmask_b32 v28, v48, v50, s[10:11]")
        e("v_cndmask_b32 v29, v49, v51, s[10:11]")
        e(f"v_and_b32 v28, {sHI}, v28")
        e(f"v_max_f32_dpp v30, v28, v28 row_ror:8 {DPF}")
        for r in (4, 2, 1):
            e(f"v_max_f32_dpp v30, v30, v30 row_ror:{r} {DPF}")
        e("v_sub_f32 v28, v28, v30")
        e(f"v_mul_f32 v28, {sL2E}, v28")
        e("v_exp_f32 v28, v28")
        e("v_mul_f32 v29, v28, v29")
        seq = [(m, r) for m in range(4) for r in range(4)]
        rr = [8, 4, 2, 1]
        for n, (m, r) in enumerate(seq):
            if n % 4 == 0:
                e(f"v_add_f32_dpp v29, v29, v29 row_ror:{rr[n//4]} {DPF}")
            op = "v_mul_f32_dpp" if m == 0 else "v_fmac_f32_dpp"
            e(f"{op} {v(52+r)}, v28, {v(32+4*m+r)} row_newbcast:{m} {DPF}")
        e("v_rcp_f32 v29, v29")
        self.reduce4(52)
        e("v_mul_f32 v52, v52, v29")
        e("v_cvt_pk_bf16_f32 v52, v52, v52")
        self.swz(56, "v52")
        e("s_waitcnt vmcnt(0)")
        self.core(56, RW1, 8, 40, 32, lgkm=8)
        self.acc_add(40, L_ACC1)
        self.acc_publish(L_ACC1, "s12", False, False)
        self.stamp(10)
        if not self.dn_late:
            e("s_barrier")
            if self.ad_n:
                for st in range(self.ad_steps):
                    sk = self.lab("as")
                    e(f"s_cmp_gt_u32 s69, {st}")
                    e(f"s_cbranch_scc1 {sk}")
                    self.wloads(RW2, SW2, "s15", 1152, st * self.ad_per, (st + 1) * self.ad_per)
                    e.label(sk)
                ne = self.ad_steps * self.ad_per
            self.wloads(RW2, SW2, "s15", 1152, ne, 9, self.thr_dn)
        else:
            e("s_mov_b32 s68, s15")
        e.c("---- gather P7, gelu ----")
        e(f"s_mul_i32 s8, {sX}, 9216")
        e(f"s_mul_i32 s9, {sW}, 576")
        e(f"s_add_u32 s8, s8, s9")
        e(f"s_add_u32 s8, s8, {P7}")
        e(f"s_add_u32 s9, s8, 4608")
        e(f"v_lshlrev_b32 v26, 3, {vL}")
        e(f"v_and_b32 v27, 0x38, {vL}")
        e(f"v_mov_b32 v38, 0x3d372713")
        e(f"s_add_u32 s12, s13, {P8}")
        nx = self.lab("nx")
        e(f"s_cmp_lg_u32 {sW}, 0")
        e(f"s_cbranch_scc1 {nx}")
        e(f"s_add_u32 s10, s13, {P10}")
        e(f"s_lshl_b32 s11, {sR}, 8")
        e(f"s_add_u32 s14, s11, {P8}")
        e(f"s_add_u32 s11, s11, {P6+3*2304}")
        self.srd(SS1, "s38", "s39", 1152)
        e(f"v_lshlrev_b32 v28, 1, {vL}")
        e(f"s_lshl_b32 s15, {sR}, 7")
        e(f"buffer_load_ushort {vDUM}, v28, {SS1}, s15 offen")
        e(f"v_lshrrev_b32 v16, 4, {vL}")
        e(f"v_mul_u32_u24 v16, 2304, v16")
        e(f"v_and_b32 v17, 0xf0, {vL16}")
        e(f"v_add_u32 v29, v16, v17")

        e(f"v_lshlrev_b32 v16, 2, v16")
        e(f"v_add_u32 v16, 9216, v16")
        e(f"v_add_u32 v25, v16, v17")

        def issueg():
            e(f"buffer_load_dword v61, {vL4}, {WS}, s11 offen sc1")
            e(f"buffer_load_dwordx4 v[56:59], v25, {WS}, s11 offen sc1")
        self.poll(issueg, [(None, [("v61", vTq)] + self.g4(56))])
        self.reduce4(56)
        e("v_add_f32 v61, v61, v56")
        self.rb1("v61")

        def issuex():
            e(f"buffer_load_dword v60, {vL4}, {WS}, s10 offen sc1")
        self.poll(issuex, [(None, [("v60", vTq)])])
        e(f"s_add_u32 s11, s14, {4*2304}")
        e.label(nx)
        if self.dn_late:
            e("s_barrier")
            self.wloads(RW2, SW2, "s68", 1152, ne, 9, self.thr_dn)

        def issue2():
            e(f"buffer_load_dwordx2 v[64:65], v26, {WS}, s8 offen sc1")
            e(f"buffer_load_dwordx2 v[66:67], v27, {WS}, s8 offen offset:512 sc1")
            e(f"buffer_load_dwordx2 v[68:69], v26, {WS}, s9 offen sc1")
            e(f"buffer_load_dwordx2 v[70:71], v27, {WS}, s9 offen offset:512 sc1")
        self.poll(issue2, [(None, [(v(64 + r), vTq if (r >> 1) % 2 == 0 else vTg) for r in range(8)])], slp=self.slp)
        self.stamp(11)
        for r in range(4):
            e(f"v_add_f32 {v(32+r)}, {v(64+2*r)}, {v(65+2*r)}")
        pr = (("v32", "v36"), ("v33", "v37"))
        for a, t in pr:
            e(f"v_mul_f32 {t}, {a}, {a}")
        for a, t in pr:
            e(f"v_fma_f32 {t}, {t}, v38, 1.0")
        for a, t in pr:
            e(f"v_mul_f32 {t}, {t}, {a}")
        for a, t in pr:
            e(f"v_mul_f32 {t}, 0xc0135761, {t}")
        e("v_exp_f32 v36, v36"); e("v_exp_f32 v37, v37")
        e("v_mul_f32 v32, v32, v34"); e("v_mul_f32 v33, v33, v35")
        e("v_add_f32 v36, 1.0, v36"); e("v_add_f32 v37, 1.0, v37")
        e("v_rcp_f32 v36, v36"); e("v_rcp_f32 v37, v37")
        e("v_mul_f32 v32, v32, v36"); e("v_mul_f32 v33, v33, v37")
        e("v_cvt_pk_bf16_f32 v47, v32, v32")
        self.swz(48, "v47")
        e("v_cvt_pk_bf16_f32 v56, v33, v33")
        self.core(48, RW2, 9, 40, 32, lgkm=8, order=[8, 0, 1, 2, 3, 4, 5, 6, 7])
        self.acc_add(40, L_ACC2)
        self.acc_publish(L_ACC2, "s12", False, False)
        self.stamp(12)
        e.c("---- finalise: own partial is visible, then read all eight; whoever sees all of them writes the output ----")
        e(f"s_cmp_lg_u32 {sW}, 0")
        e("s_cbranch_scc1 L_fin")
        self.srd(SS1, "s38", "s39", 1152)
        e("s_waitcnt vmcnt(0)")
        e(f"buffer_load_dwordx4 v[32:35], v29, {WS}, s14 offen sc1")
        e(f"buffer_load_dwordx4 v[36:39], v29, {WS}, s11 offen sc1")
        e("s_waitcnt vmcnt(0)")
        self.tagcheck(self.g4(32) + self.g4(36), "v21")
        e(f"v_cmp_ne_u32 vcc, 0, v21")
        e("v_pk_add_f32 v[32:33], v[32:33], v[36:37]")
        e("v_pk_add_f32 v[34:35], v[34:35], v[38:39]")
        e("s_cbranch_vccnz L_fin")
        self.reduce4(32)
        e("v_fma_f32 v32, v32, v61, v60")
        e("v_cvt_pk_bf16_f32 v32, v32, v32")
        e(f"buffer_store_short v32, v28, {SS1}, s15 offen")
        self.stamp(16)
        e(f"s_cmp_lg_u32 {sR}, 0")
        e("s_cbranch_scc1 L_fin")
        e("s_mov_b64 exec, 1")
        e(f"buffer_store_dwordx2 {v(vE0,2)}, off, {WS}, 0 sc1")
        e("s_mov_b64 exec, -1")
        e("s_branch L_fin")

    def role_gu(self):
        e = self.e
        thr = self.thr_gu
        e.c("================ GU ================")
        e(f"s_mov_b32 {sR}, {sJ}")
        self.srd(SW2, "s22", "s23", 576 * 8192)
        w1 = self.lab("w1")
        e(f"s_cmp_lg_u32 {sW}, 1")
        e(f"s_cbranch_scc1 {w1}")
        self.srd(SS2, "s16", "s17", 1152)
        e(f"buffer_load_dwordx4 v[32:35], {vL16}, {SS2}, 0 offen")
        e(f"buffer_load_dwordx4 v[36:39], {vL16}, {SS2}, 0 offen offset:1024")
        e(f"v_and_b32 v16, 7, {vL}")
        e(f"v_lshrrev_b32 v17, 4, {vL}")
        e(f"v_lshl_add_u32 v28, v16, 2, v17")
        e(f"v_lshlrev_b32 v16, 1, v28")
        e(f"s_lshl_b32 s8, {sR}, 6")
        e(f"buffer_load_ushort v40, v16, {SS2}, s8 offen")
        e.label(w1)
        n0 = self.lab("n0")
        e(f"s_cmp_lg_u32 {sW}, 0")
        e(f"s_cbranch_scc1 {n0}")
        e(f"s_waitcnt vmcnt({9+self.k0})")
        self.silu2(48)
        self.core(48, RW1, 9, 40, 32, vm_after=self.k0, lgkm=8)
        e(f"s_lshl_b32 s8, {sR}, 3")
        e(f"s_add_u32 s8, s8, {sX}")
        e(f"s_lshl_b32 s8, s8, 8")
        e(f"s_add_u32 s8, s8, {P1}")
        self.bsum_store(40, "s8", False)
        self.stamp(1)
        e.label(n0)
        self.srd(SS1, "s34", "s35", 1152)
        self.srd(SW1, "s36", "s37", 576 * 6912)
        e(f"s_mul_i32 s12, {sX}, 18")
        e(f"s_add_u32 s12, s12, {sR}")
        e(f"s_and_b32 s13, s12, 3")
        e(f"s_lshr_b32 s12, s12, 2")
        e(f"s_lshl_b32 s8, s13, 3")
        e(f"s_add_u32 s8, s8, {sW}")
        e(f"s_add_u32 s8, s8, 40")
        e(f"s_lshl_b32 s9, s8, 4")
        e(f"v_lshrrev_b32 v16, 3, {vL}")
        e(f"v_lshlrev_b32 v17, 1, v16")
        e(f"buffer_load_ushort v62, v17, {SS1}, s9 offen")
        e(f"s_mul_i32 s8, s8, {8*6912}")
        e(f"s_lshl_b32 s9, s12, 7")
        e(f"s_add_u32 s8, s8, s9")
        e(f"s_add_u32 s8, s8, {18*128}")
        e(f"v_mul_u32_u24 v16, 6912, v16")
        e(f"v_and_b32 v17, 0x70, {vL16}")
        e(f"v_add_u32 v16, v16, v17")
        e(f"buffer_load_dwordx4 {v(RW1,4)}, v16, {SW1}, s8 offen {self.wf}")
        e(f"s_add_u32 s13, s13, 1")
        e(f"s_mul_i32 s13, s13, 9216")
        e(f"s_lshl_b32 s12, s12, 8")
        e(f"s_add_u32 s13, s13, s12")
        e(f"s_add_u32 s13, s13, {P6}")
        self.acc_addr("T")
        e(f"v_lshrrev_b32 v16, 3, {vL}")
        e(f"v_lshlrev_b32 v16, 15, v16")
        e(f"v_and_b32 v17, 0x70, {vL16}")
        e(f"v_add_u32 {vWA}, v16, v17")
        e(f"s_lshl_b32 s14, {sR}, 18")
        e(f"s_lshl_b32 s8, {sX}, 10")
        e(f"s_add_u32 s14, s14, s8")
        e(f"s_lshl_b32 s8, {sW}, 7")
        e(f"s_add_u32 s14, s14, s8")

        def off_p2(d):
            e(f"s_mul_i32 {d}, {sX}, 18")
            e(f"s_add_u32 {d}, {d}, {sR}")
            e(f"s_lshl_b32 {d}, {d}, 11")
            e(f"s_add_u32 {d}, {d}, {P2}")

        def off_p3(d):
            e(f"s_lshl_b32 {d}, {sX}, 4")
            e(f"s_add_u32 {d}, {d}, {sR}")
            e(f"s_lshl_b32 {d}, {d}, 7")
            e(f"s_add_u32 {d}, {d}, {P3}")

        def off_p7(d):
            e(f"s_mul_i32 {d}, {sX}, 18")
            e(f"s_add_u32 {d}, {d}, {sR}")
            e(f"s_lshl_b32 {d}, {d}, 9")
            e(f"s_add_u32 {d}, {d}, {P7}")
        self.touch([(off_p2, 16), (self.off_p4, 9), (off_p7, 4)])
        e(f"s_cmp_eq_u32 {sW}, 1")
        e(f"s_cbranch_scc1 L_GU_w1")
        e(f"s_waitcnt vmcnt({thr})")
        self.wloads(RW2, SW2, "s14", 8192, 0, 3, thr)
        self.wloads(RW2, SW2, "s14", 8192, 3, 4, thr if self.kpre > self.k0 else None)
        e("s_waitcnt vmcnt(4)")
        self.silu1("v62")
        self.core(62, RW1, 1, 56, 52)
        self.bsum(56)
        e(f"s_mov_b64 exec, {mJ8}")
        e(f"ds_write_b32 {vA0}, v56 offset:{L_ACC2}")
        e(f"ds_write_b32 {vA1}, v57 offset:{L_ACC2}")
        e("s_mov_b64 exec, -1")
        self.kvloads(RK, vKO, SK, self.k0, self.kpre, thr)
        if self.force is None:
            e(f"s_cmp_lg_u32 {sW}, 2")
            e(f"s_cbranch_scc1 L_GU_b1")
            self.census_load(44)
            e("s_waitcnt vmcnt(0)")
            self.census_eval(44, "s10")
            e("v_mov_b32 v44, s10")
            e("v_mov_b32 v45, 0")
            e(f"ds_write_b32 v45, v44 offset:{L_H32+128}")
        e(f"s_branch L_GU_b1")
        e.label("L_GU_w1")
        self.wloads(RW2, SW2, "s14", 8192, 0, 4)
        e(f"s_waitcnt vmcnt(4)")
        e("v_mov_b32 v41, 0x3f803f80")
        e("v_mov_b32 v42, 0")
        e("v_mov_b32 v43, 0")
        for r in range(8):
            e(f"v_dot2_f32_bf16 v42, {v(32+r)}, v41, v42")
        for r in range(8):
            e(f"v_dot2_f32_bf16 v43, {v(32+r)}, {v(32+r)}, v43")
        e("v_permlane32_swap_b32 v42, v43")
        e("v_add_f32 v42, v42, v43")
        e("v_mov_b32 v43, v42")
        e("v_permlane16_swap_b32 v42, v43")
        e("v_add_f32 v42, v42, v43")
        for r in (8, 4, 2, 1):
            e(f"v_add_f32_dpp v42, v42, v42 row_ror:{r} {DPF}")
        e("v_mov_b32 v43, v42")
        e("v_permlane32_swap_b32 v42, v43")
        S1, S2, mb, rinv = "v42", "v43", "v44", "v45"
        e(f"v_mul_f32 {S1}, 0x3ae38e39, {S1}")
        e(f"v_mul_f32 {S2}, 0x3ae38e39, {S2}")
        e(f"v_fma_f32 {S2}, -{S1}, {S1}, {S2}")
        e(f"v_max_f32 {S2}, 0, {S2}")
        e(f"v_cvt_pk_bf16_f32 {rinv}, {S1}, {S2}")
        e(f"v_lshlrev_b32 {mb}, 16, {rinv}")
        e(f"v_and_b32 {S2}, {sHI}, {rinv}")
        e(f"v_add_f32 {S2}, 0x3727c5ac, {S2}")
        self.rb1(S2)
        e(f"v_sqrt_f32 {S2}, {S2}")
        self.rb1(S2)
        e(f"v_rcp_f32 {rinv}, {S2}")
        e("v_lshlrev_b32 v40, 16, v40")
        e("v_sub_f32 v40, v40, v44")
        self.rb1("v40")
        e("v_mul_f32 v40, v40, v45")
        self.rb1("v40")
        e("v_lshlrev_b32 v28, 2, v28")
        self.silu1("v62")
        self.core(62, RW1, 1, 56, 52)
        self.bsum(56)
        e(f"s_mov_b64 exec, {mJ8}")
        e(f"ds_write_b32 {vA0}, v56 offset:{L_ACC2}")
        e(f"ds_write_b32 {vA1}, v57 offset:{L_ACC2}")
        e("s_mov_b64 exec, -1")
        e(f"v_lshrrev_b32 v16, 3, {vL}")
        e(f"v_lshlrev_b32 v16, 8, v16")
        e(f"v_and_b32 v17, 0x70, {vL16}")
        e(f"v_add_u32 v26, v16, v17")
        e(f"s_lshr_b32 s8, {sR}, 1")
        e(f"s_lshl_b32 s8, s8, 11")
        e(f"s_and_b32 s9, {sR}, 1")
        e(f"s_lshl_b32 s9, s9, 7")
        e(f"s_add_u32 s8, s8, s9")
        e(f"s_add_u32 s8, s8, {P1}")
        e(f"s_add_u32 s9, s8, {9*2048}")
        cen = self.force is None
        self.kvloads(RK, vKO, SK, self.k0, self.kpre, thr)

        def issue():
            e(f"buffer_load_dwordx4 v[32:35], v26, {WS}, s8 offen sc1")
            e(f"buffer_load_dwordx4 v[36:39], v26, {WS}, s9 offen sc1")
        self.stamp(17)
        if self.p1wait:
            e("s_waitcnt vmcnt(0)")
            self.stamp(18)
        self.poll(issue, [(None, self.g4(32) + self.g4(36))])
        self.stamp(2)
        if self.stamps:
            e(f"v_writelane_b32 {vST}, {sSP}, 40")
        self.reduce4(32)
        self.reduce4(36)
        e(f"v_add_f32_dpp v32, v32, v32 row_ror:8 {DPF}")
        e(f"v_add_f32_dpp v36, v36, v36 row_ror:8 {DPF}")
        self.rb2("v32", "v36", "v33")
        e("v_add_f32 v36, 1.0, v36")
        self.rb1("v36")
        e("v_mul_f32 v36, v36, v40")
        self.rb1("v36")
        e("v_add_f32 v36, v36, v32")
        e("v_cvt_pk_bf16_f32 v36, v36, v36")
        e(f"ds_write_b32 v28, v36 offset:{L_H32}")
        e.label("L_GU_b1")
        e(f"v_lshrrev_b32 v25, 3, {vL}")
        e(f"v_lshlrev_b32 v26, 4, v25")
        e("v_mov_b32 v27, 0")
        e(f"v_and_b32 v16, 7, {vL}")
        e(f"v_and_b32 v17, 0x30, {vL}")
        e(f"v_lshrrev_b32 v17, 1, v17")
        e(f"v_add_lshl_u32 v24, v16, v17, 3")
        off_p2("s9")
        e(f"s_lshl_b32 s10, {sW}, 8")
        e(f"s_add_u32 s9, s9, s10")
        e("s_waitcnt lgkmcnt(0)")
        e("s_barrier")
        e(f"ds_read_b128 v[48:51], v26 offset:{L_H32}")
        if cen:
            e(f"ds_read_b32 v52, v27 offset:{L_H32+128}")
        e("s_waitcnt lgkmcnt(0)")
        if cen:
            e(f"v_readfirstlane_b32 {sLOC}, v52")
        e(f"s_waitcnt vmcnt({self.kpre - self.k0})")
        self.core(48, RW2, 4, 40, 32)
        self.bsum_store(40, "s9", True, lin="v24")
        self.stamp(3)
        self.acc_publish(L_ACC2, "s13", False, False)
        e.label("L_GU_b2")
        if not self.resume:
            e("s_barrier")

        t2 = self.thr_gu2
        S = Stream(e, self.it_kv("K", self.kpre, 8, t2) + self.it_kv("V", 0, 8, t2)
                   + self.it_w(RW2, SW2, "s14", 9216, 0, self.n_early_gu, t2)
                   + self.it_w(RW2, SW2, "s14", 9216, self.n_early_gu, 9, self.thr_post))
        nk = 8 - self.kpre
        S.run(min(nk, t2 + 1))
        self.acc_addr("N")
        e(f"s_add_u32 s15, {sR}, 2")
        e(f"s_cmp_ge_u32 s15, 18")
        e(f"s_cselect_b32 s8, 18, 0")
        e(f"s_sub_u32 s15, s15, s8")
        e(f"s_cmp_ge_u32 {sW}, 4")
        e(f"s_cselect_b32 s9, s15, {sR}")
        e(f"s_cmp_ge_u32 s9, 9")
        e("s_cselect_b32 s60, s30, s28")
        e("s_cselect_b32 s61, s31, s29")
        e("s_cselect_b32 s8, 9, 0")
        e(f"s_mov_b32 s62, {576*9216}")
        e(f"s_sub_u32 s8, s9, s8")
        e(f"s_lshl_b32 s8, s8, 7")
        e(f"s_mul_i32 s14, {sX}, 1152")
        e(f"s_add_u32 s14, s14, s8")
        e(f"s_mul_i32 s8, {sW}, {72*9216}")
        e(f"s_add_u32 s14, s14, s8")
        self.voff9(9216)
        self.attention(S, nk + self.qpos_gu, t2, nk + 8 + self.n_early_gu)
        if self.gate_n:
            e.c("hold the FFN weight stream until most attention partials of this slot are out")
            gd, gt = self.lab("gd"), self.lab("gt")
            e(f"s_cmp_lg_u32 {sW}, 0")
            e(f"s_cbranch_scc1 {gd}")
            e(f"s_mul_i32 s8, {sX}, {32*1152}")
            e(f"s_add_u32 s8, s8, {P4}")
            e(f"v_mul_u32_u24 v26, 1152, {vL}")
            e(f"s_mov_b32 {sSP}, 0")
            e("s_mov_b32 exec_hi, 0")
            e.label(gt)
            e(f"s_add_u32 {sSP}, {sSP}, 1")
            e(f"s_cmp_gt_u32 {sSP}, {SPIN}")
            e("s_cbranch_scc1 L_end")
            e(f"buffer_load_dword v32, v26, {WS}, s8 offen offset:1024 sc1")
            e("s_waitcnt vmcnt(0)")
            e(f"v_and_b32 v32, {sM10}, v32")
            e(f"v_cmp_eq_u32 vcc, v32, {v(TG[0])}")
            e("s_bcnt1_i32_b64 s9, vcc")
            e(f"s_cmp_lt_u32 s9, {self.gate_n}")
            e(f"s_cbranch_scc1 {gt}")
            e("s_mov_b64 exec, -1")
            e.label(gd)
        e("s_barrier")
        self.stamp(18)
        S.run(99)
        e.c("---- gather u = x1*(1+cb), stats, finish the LayerNorm ----")
        e(f"s_mul_i32 s8, {sX}, 2304")
        e(f"s_mul_i32 s9, {sW}, 288")
        e(f"s_add_u32 s8, s8, s9")
        e(f"s_add_u32 s8, s8, {P9}")
        e(f"s_mul_i32 s10, {sX}, {3*2304}")
        e(f"s_add_u32 s10, s10, {P11}")
        e(f"s_add_u32 s11, s10, 4608")
        e(f"s_add_u32 s10, s10, s9")
        e(f"v_lshrrev_b32 v16, 3, {vL}")
        e(f"v_lshlrev_b32 v27, 2, v16")
        e(f"v_and_b32 v16, 15, {vL}")
        e(f"v_min_u32 v17, 8, v16")
        e(f"v_lshlrev_b32 v26, 7, v17")
        e(f"v_cmp_gt_u32 vcc, 9, v16")
        e(f"v_mov_b32 v16, 0x3ae38e39")
        e(f"v_cndmask_b32 v28, 0, v16, vcc")
        off_p7("s12")
        e(f"s_sub_u32 s13, s15, {sR}")
        e(f"s_lshl_b32 s13, s13, 9")
        e(f"s_add_u32 s13, s13, s12")
        e(f"s_add_u32 s13, s13, 4")
        e(f"s_cmp_eq_u32 {sW}, 1")
        e(f"s_cselect_b32 s12, s13, s12")
        e(f"s_cselect_b32 s13, {4*ACCS}, 0")
        e(f"v_add_u32 v25, s13, {vAR}")
        e(f"v_lshlrev_b32 v24, 3, {vL}")

        def issue11():
            e(f"buffer_load_dword v58, {vL4}, {WS}, s10 offen sc1")
            e(f"buffer_load_dword v59, v27, {WS}, s10 offen offset:256 sc1")
            e(f"buffer_load_dword v60, {vL4}, {WS}, s10 offen offset:2304 sc1")
            e(f"buffer_load_dword v61, v27, {WS}, s10 offen offset:2560 sc1")

        def issue9():
            e(f"buffer_load_dwordx4 v[44:47], v26, {WS}, s11 offen sc1")
            e(f"buffer_load_dword v62, {vL4}, {WS}, s8 offen sc1")
            e(f"buffer_load_dword v63, v27, {WS}, s8 offen offset:256 sc1")
        c11 = [("v58", vTq), ("v59", vTg), ("v60", vTq), ("v61", vTg)]
        c9 = self.g4(44) + [("v62", vTq), ("v63", vTg)]
        if self.joint:
            self.poll(lambda: (issue9(), issue11()), [(None, c9 + c11)])
        else:
            self.poll(issue11, [(None, c11)])
        for r in range(4):
            e(f"v_and_b32 {v(58+r)}, {sHI}, {v(58+r)}")
        if not self.joint:
            self.poll(issue9, [(None, c9)])
        self.stamp(10)
        e("v_add_f32 v44, v44, v45")
        e("v_add_f32 v46, v46, v47")
        e("v_mul_f32 v44, v44, v28")
        e("v_mul_f32 v46, v46, v28")
        for r in (8, 4, 2, 1):
            e(f"v_add_f32_dpp v44, v44, v44 row_ror:{r} {DPF}")
            e(f"v_add_f32_dpp v46, v46, v46 row_ror:{r} {DPF}")
        e("v_fma_f32 v46, -v44, v44, v46")
        e("v_fma_f32 v62, -v44, v58, v62")
        e("v_max_f32 v46, 0, v46")
        e("v_fma_f32 v63, -v44, v59, v63")
        e("v_add_f32 v46, 0x3727c5ac, v46")
        e("v_rsq_f32 v46, v46")
        e("v_fma_f32 v62, v62, v46, v60")
        e("v_fma_f32 v63, v63, v46, v61")
        e("v_cvt_pk_bf16_f32 v47, v62, v62")
        self.swz(48, "v47")
        e("v_cvt_pk_bf16_f32 v56, v63, v63")
        self.core(48, RW2, 9, 40, 32, lgkm=8, order=[8, 0, 1, 2, 3, 4, 5, 6, 7])
        self.acc_add(40, L_ACC1)
        e(f"s_cmp_gt_u32 {sW}, 1")
        e(f"s_cbranch_scc1 L_fin")
        e(f"ds_read_b128 v[16:19], v25 offset:{L_ACC1}")
        e("s_waitcnt lgkmcnt(0)")
        self.reduce4(16)
        e(f"v_bfi_b32 v16, {sM10}, {vTq}, v16")
        self.lstore(f"buffer_store_dword v16, v24, {WS}, s12 offen")
        self.stamp(11)
        e("s_branch L_fin")


def generate(fn, **kw):
    g = Gen(**kw)
    e = g.build()
    body = e.text()
    nv = max(e.maxv + 1, 136)
    txt = wrap(body, 256, 512, lds=LDS_BYTES, vgpr=nv, sgpr=max(e.maxs + 1, 96))
    txt = txt.replace("\ns_endpgm\n", "\n    s_endpgm\nL_code_end:\n")
    open(fn, "w").write(txt)
    return e


if __name__ == "__main__":
    import itertools
    names = []
    for spec in sys.argv[1:]:
        nm, _, kv = spec.partition(":")
        kw = {}
        for p in kv.split(","):
            if p:
                k, _, val = p.partition("=")
                kw[k] = eval(val)
        e = generate(nm, **kw)
        names.append(nm)
    print(" ".join(names))
```

```python
import sys
from emit import Em
from asmgen import wrap, NAME

P1 = 0x1D0000
P2 = 0x10000
P3 = 0x60000
P4 = 0x70000
P5 = 0xC0000
P6 = 0x1C0000
P7 = 0x180000
P8 = 0xE0000
P9 = 0xE8000
P10 = 0xEE000
P11 = 0x1A0000
P4S = 0xFA000
CEN = 0xF8000
STAMP = 0x100000
WS_BYTES = 0x200000
XS = 224

L_ACC1 = 0x0000
L_ACC2 = 0x0900
L_LNS = 0x1200
L_MX = 0x1280
L_H32 = 0x1300
L_ACCO = 0x1400
L_Q = 0x3800
LDS_BYTES = 0x3A00
ACCS = 272

sX, sJ, sW, sR, sSP = "s3", "s4", "s5", "s6", "s7"
WS, SK, SV, SW1, SW2, SS1, SS2 = "s[44:47]", "s[48:51]", "s[52:55]", "s[56:59]", "s[60:63]", "s[64:67]", "s[68:71]"
sM10, sHI, sLOC, sSEL, sL2E, sKV = "s72", "s73", "s74", "s75", "s76", "s77"
m36, mJ8, mT2, mODD, mHI = "s[82:83]", "s[84:85]", "s[86:87]", "s[88:89]", "s[90:91]"
vL, vL16 = "v0", "v1"
MK = [2, 3, 4, 5]
TG = [6, 7, 8, 9]
vTa0, vTa1 = "v10", "v11"
vWA, vWB = "v12", "v13"
vKO, vVO = "v14", "v210"
vST = "v15"
RK, RV, RW1, RW2 = 64, 96, 128, 164
vTb0, vTb1, vTs, vBO, vAA = "v200", "v201", "v202", "v203", "v204"
vDUM = "v205"
vE0, vE1 = 206, 207
vAR, vCO = "v208", "v209"
PS = [212, 213, 214, 215]
vA0, vA1, vL4 = "v204", "v211", "v234"
vTq, vTg = "v216", "v217"
KVO = ["s18", "s19", "s20", "s21", "s40", "s41", "s94", "s95"]
SPIN = 400000
DPF = "row_mask:0xf bank_mask:0xf"


def v(n, k=1):
    return f"v{n}" if k == 1 else f"v[{n}:{n+k-1}]"


class Stream:
    def __init__(self, e, items):
        self.e, self.items, self.pos, self.log = e, items, 0, []

    def step(self, wait=True, stop=None):
        if self.pos >= len(self.items) or (stop is not None and self.pos >= stop):
            return False
        name, fn, thr = self.items[self.pos]
        bulk = [i for i, (n, b) in enumerate(self.log) if b]
        if wait and thr is not None and len(bulk) > thr:
            self.e(f"s_waitcnt vmcnt({len(self.log) - 1 - bulk[-(thr + 1)]})")
        fn()
        self.log.append((name, True))
        self.pos += 1
        return True

    def run(self, stop):
        while self.step(stop=stop):
            pass

    def extra(self, name):
        self.log.append((name, False))

    def issued(self, name):
        return any(n == name for n, _ in self.log)

    def wait_for(self, name):
        idx = max(i for i, (n, _) in enumerate(self.log) if n == name)
        self.e(f"s_waitcnt vmcnt({len(self.log) - 1 - idx})")

    def index(self, name):
        return [n for n, _, _ in self.items].index(name)


class Gen:
    def __init__(self, stamps=False, force=None, thr=3, thr_gu=3, n_early_gu=2, n_early_wd=0, prefetch=True,
                 pretouch=True, kpre=4, thr_gu2=4, kvf='nt', wf='nt', qpos=2, qpos_gu=0, resume=False, mr_pre=3, late_first=True, thr_mr=3, thr_post=None, p1wait=False, thr_w=1, wd_pre=6, qpos_wd=3, gate_n=0, mod_on_gu=False, pipe4=False, pipe79=False, thr_dn=None, l2pf=0, kvmap='contig', pair=False, rotc=3, slp=0, k0=2, pfw=1, kdelay=False, tlbw=False, hold=0, holdg=False, rm=45, joint=False, dn_late=False, merge=False, ad_n=0, ad_steps=2, ad_per=2, cskip=True, estat=True, nobsum=True, slowpf=0, cstat=True):
        self.e = Em()
        self.stamps = stamps
        self.force = force
        self.thr = thr
        self.thr_gu = thr_gu
        self.n_early_gu = n_early_gu
        self.n_early_wd = n_early_wd
        self.prefetch = prefetch
        self.pretouch = pretouch
        self.kpre = kpre
        self.kvf = kvf
        self.qpos = qpos
        self.pv_steps = 0
        self.thr_w = thr_w
        self.pipe4 = pipe4
        self.kvmap = 'rot'
        self.k0 = k0
        self.pfw = pfw
        self.hold = hold
        self.rm = rm
        self.cstat = cstat
        self.slowpf = slowpf
        self.estat = estat
        self.nobsum = nobsum
        self.cskip = cskip
        self.ad_n, self.ad_steps, self.ad_per = ad_n, ad_steps, ad_per
        self.merge = merge
        self.dn_late = dn_late
        self.joint = joint
        self.holdg = holdg
        self.tlbw = tlbw
        self.kdelay = kdelay
        self.rotc = rotc
        self.slp = slp
        self.pair = pair
        self.l2pf = l2pf
        self.pipe79 = pipe79
        self.thr_dn = thr_dn
        self.gate_n = gate_n
        self.mod_on_gu = mod_on_gu
        self.qpos_wd = qpos_wd
        self.wd_pre = wd_pre
        self.p1wait = p1wait
        self.thr_post = thr_post
        self.qpos_gu = qpos_gu
        self.resume = resume
        self.mr_pre = mr_pre
        self.late_first = late_first
        self.thr_mr = thr if thr_mr is None else thr_mr
        self.wf = wf
        self.thr_gu2 = thr_gu2
        self.uid = 0

    def lab(self, p):
        self.uid += 1
        return f"L_{p}{self.uid}"

    def stamp(self, k):
        if self.stamps:
            e = self.e
            e("s_memrealtime s[92:93]")
            e("s_waitcnt lgkmcnt(0)")
            e(f"v_writelane_b32 {vST}, s92, {k}")

    def srd(self, srd, lo, hi, nbytes):
        b = int(srd[2:].split(":")[0])
        e = self.e
        e(f"s_mov_b32 s{b}, {lo}")
        e(f"s_mov_b32 s{b+1}, {hi}")
        e(f"s_mov_b32 s{b+2}, {nbytes}")
        e(f"s_mov_b32 s{b+3}, 0x20000")

    def lstore(self, text):
        e = self.e
        if self.force is not None:
            e(f"{text} {self.force}")
            return
        a, b = self.lab("ls"), self.lab("le")
        e(f"s_cmp_eq_u32 {sLOC}, 0")
        e(f"s_cbranch_scc1 {a}")
        e(text)
        e(f"s_branch {b}")
        e.label(a)
        e(f"{text} sc1")
        e.label(b)

    def lstore_multi(self, lines):
        e = self.e

        def emit(flag):
            for t in lines:
                e(f"{t} {flag}" if t.startswith("buffer_store") else t)
        if self.force is not None:
            emit(self.force)
            return
        a, b = self.lab("ls"), self.lab("le")
        e(f"s_cmp_eq_u32 {sLOC}, 0")
        e(f"s_cbranch_scc1 {a}")
        emit("")
        e(f"s_branch {b}")
        e.label(a)
        emit("sc1")
        e.label(b)

    def voff9(self, stride):
        e = self.e
        e(f"v_lshrrev_b32 v16, 3, {vL}")
        e(f"v_and_b32 v17, 0x70, {vL16}")
        e(f"v_mul_u32_u24 v16, {stride}, v16")
        e(f"v_lshl_add_u32 {vWA}, v16, 3, v17")
        e(f"v_add_u32 v16, {56*stride}, v16")
        e(f"v_add_u32 {vWB}, v16, v17")

    def wloads(self, base, srd, soff, step, t0, t1, thr=None):
        e = self.e
        for t in range(t0, t1):
            vo = vWB if t == 8 else vWA
            e(f"buffer_load_dwordx4 {v(base+4*t,4)}, {vo}, {srd}, {soff} offen {self.wf}")
            e(f"s_add_u32 {soff}, {soff}, {step}")
            if thr is not None:
                e(f"s_waitcnt vmcnt({thr})")

    def kvloads(self, base, vo, srd, t0, t1, thr=None):
        e = self.e
        for t in range(t0, t1):
            if self.kvmap == "rot2":
                e(f"buffer_load_dwordx4 {v(base+4*t,4)}, {vo}, {srd}, {KVO[t]} offen {self.kvf}")
                if thr is not None:
                    e(f"s_waitcnt vmcnt({thr})")
                continue
            if self.kvmap == "contig":
                e(f"s_mov_b32 {sKV}, {t*8192}")
            else:
                e(f"s_add_u32 {sKV}, s94, {t*(self.rm*0x2000 if self.rm else 0x20000)}")
                e(f"s_and_b32 {sKV}, {sKV}, 0xfffff")
            e(f"buffer_load_dwordx4 {v(base+4*t,4)}, {vo}, {srd}, {sKV} offen {self.kvf}")
            if thr is not None:
                e(f"s_waitcnt vmcnt({thr})")

    def stream(self, items):
        S = Stream(self.e, self.it_kv("K", 0, self.k0, None) + items)
        S.pos = self.k0
        S.log = [(f"K{t}", True) for t in range(self.k0)]
        return S

    def it_kv(self, kind, t0, t1, thr):
        base, vo, srd = (RK, vKO, SK) if kind == "K" else (RV, vVO, SV)
        return [(f"{kind}{t}", (lambda t=t: self.kvloads(base, vo, srd, t, t + 1)), thr) for t in range(t0, t1)]

    def it_w(self, base, srd, soff, step, t0, t1, thr):
        return [(f"W{t}", (lambda t=t: self.wloads(base, srd, soff, step, t, t + 1)), thr) for t in range(t0, t1)]

    def rb2(self, a, b, t):
        e = self.e
        e(f"v_cvt_pk_bf16_f32 {t}, {a}, {b}")
        e(f"v_lshlrev_b32 {a}, 16, {t}")
        e(f"v_and_b32 {b}, {sHI}, {t}")

    def rb1(self, a):
        e = self.e
        e(f"v_cvt_pk_bf16_f32 {a}, {a}, {a}")
        e(f"v_and_b32 {a}, {sHI}, {a}")

    def swz(self, X, src, n=8):
        for t in range(n):
            self.e(f"ds_swizzle_b32 {v(X+t)}, {src} offset:{(t << 5) | 0x18}")

    def core(self, X, W, T, D, A, vm_after=None, lgkm=None, perm=False, order=None):
        e = self.e
        seq = list(order or range(T))

        def prep(n):
            t = seq[n]
            a = A + 4 * (n & 1)
            if lgkm is not None and t < lgkm:
                e(f"s_waitcnt lgkmcnt({lgkm-1-t})")
            for k in range(4):
                if perm:
                    e(f"v_perm_b32 {v(a+k)}, {v(X+t)}, {v(X+t)}, {v(PS[k])}")
                else:
                    e(f"v_and_b32 {v(a+k)}, {v(X+t)}, {v(MK[k])}")
        prep(0)
        for n, t in enumerate(seq):
            a = A + 4 * (n & 1)
            if n == 0 and len(seq) > 1:
                prep(1)
            if vm_after is not None:
                e(f"s_waitcnt vmcnt({T-1-t+vm_after})")
            c = "0" if n == 0 else v(D, 4)
            e(f"v_mfma_f32_16x16x32_bf16 {v(D,4)}, {v(a,4)}, {v(W+4*t,4)}, {c}")
            if n + 2 < len(seq):
                prep(n + 2)

    def bsum(self, D):
        e = self.e
        e(f"v_permlane32_swap_b32 {v(D)}, {v(D+2)}")
        e(f"v_permlane32_swap_b32 {v(D+1)}, {v(D+3)}")
        e(f"v_add_f32_dpp {v(D)}, {v(D+2)}, {v(D)} row_ror:8 {DPF}")
        e(f"v_add_f32_dpp {v(D+1)}, {v(D+3)}, {v(D+1)} row_ror:8 {DPF}")

    def bsum_store(self, D, soff, local, lin=False):
        e = self.e
        self.bsum(D)
        e(f"v_add_u32 {v(D)}, 0x200, {v(D)}")
        e(f"v_add_u32 {v(D+1)}, 0x200, {v(D+1)}")
        e(f"v_bfi_b32 {v(D)}, {sM10}, {vTa0 if lin else vTb0}, {v(D)}")
        e(f"v_bfi_b32 {v(D+1)}, {sM10}, {vTa1 if lin else vTb1}, {v(D+1)}")
        e(f"s_mov_b64 exec, {mJ8}")
        t = f"buffer_store_dwordx2 {v(D,2)}, {lin or vBO}, {WS}, {soff} offen"
        if local:
            self.lstore(t)
        else:
            e(t + " sc1")
        e("s_mov_b64 exec, -1")

    def acc_addr(self, mode):
        e = self.e
        e(f"s_mul_i32 s8, {sW}, {ACCS}")
        if mode == "N":
            e(f"v_and_b32 v16, 1, {vL}")
            e(f"v_lshlrev_b32 v16, 5, v16")
            e(f"v_and_b32 v17, 16, {vL}")
            e(f"v_lshrrev_b32 v18, 5, {vL}")
            e(f"v_lshlrev_b32 v18, 3, v18")
            e(f"v_add3_u32 v16, v16, v17, v18")
            e(f"v_bfe_u32 v17, {vL}, 1, 2")
            e(f"v_add_lshl_u32 v16, v16, v17, 2")
            e(f"v_add_u32 {vA0}, s8, v16")
            e(f"v_add_u32 {vA1}, 16, {vA0}")
        else:
            e(f"v_and_b32 v16, 32, {vL}")
            e(f"v_and_b32 v17, 7, {vL}")
            e(f"v_lshl_add_u32 v16, v17, 1, v16")
            e(f"v_bfe_u32 v17, {vL}, 4, 1")
            e(f"v_add_lshl_u32 v16, v16, v17, 2")
            e(f"v_add_u32 {vA0}, s8, v16")
            e(f"v_add_u32 {vA1}, 64, {vA0}")

    def acc_add(self, D, acc):
        e = self.e
        self.bsum(D)
        e(f"s_mov_b64 exec, {mJ8}")
        e(f"ds_write_b32 {vA0}, {v(D)} offset:{acc}")
        e(f"ds_write_b32 {vA1}, {v(D+1)} offset:{acc}")
        e("s_mov_b64 exec, -1")
        e("s_waitcnt lgkmcnt(0)")
        e("s_barrier")

    def acc_publish(self, acc, soff, local, round_bf16, D=16):
        e = self.e
        skip = self.lab("ap")
        e(f"s_cmp_lg_u32 {sW}, 0")
        e(f"s_cbranch_scc1 {skip}")
        e(f"ds_read_b128 {v(D,4)}, {vAR} offset:{acc}")
        e(f"ds_read_b128 {v(D+4,4)}, {vAR} offset:{acc+4*ACCS}")
        e("s_waitcnt lgkmcnt(0)")
        self.sumrows([D])
        if round_bf16:
            e(f"v_cvt_pk_bf16_f32 {v(D)}, {v(D)}, {v(D)}")
        e(f"v_bfi_b32 {v(D)}, {sM10}, {vTq}, {v(D)}")
        t = f"buffer_store_dword {v(D)}, {vL4}, {WS}, {soff} offen"
        if local:
            self.lstore(t)
        else:
            e(t + " sc1")
        e.label(skip)

    def poll(self, issue, lst, clean=True):
        e = self.e
        top = self.lab("poll")
        e(f"s_mov_b32 {sSP}, 0")
        e.label(top)
        issue()
        e(f"s_add_u32 {sSP}, {sSP}, 1")
        e(f"s_cmp_gt_u32 {sSP}, {SPIN}")
        e("s_cbranch_scc1 L_end")
        e("s_waitcnt vmcnt(0)")
        self.tagcheck(lst, "v21", clean)
        e("v_cmp_ne_u32 vcc, 0, v21")
        e(f"s_cbranch_vccnz {top}")

    def tagcheck(self, lst, dst, clean=True):
        e = self.e
        tmp, n = [], 0
        if clean:
            for r, t in lst:
                e(f"v_xor_b32 {r}, {r}, {t}")
            src = [r for r, _ in lst]
            while len(src) > 2:
                d = f"v{236+n}"
                n = (n + 1) % 8
                e(f"v_or3_b32 {d}, {src[0]}, {src[1]}, {src[2]}")
                src = src[3:] + [d]
            tmp = src
        else:
            by, rest = {}, []
            for r, t in lst:
                by.setdefault(t, []).append(r)
            for t, rs in by.items():
                while len(rs) >= 2:
                    a, b = rs.pop(), rs.pop()
                    d = f"v{236+n}"
                    n += 1
                    e(f"v_bitop3_b32 {d}, {a}, {b}, {t} bitop3:0x7e")
                    tmp.append(d)
                rest += [(r, t) for r in rs]
            if not tmp:
                r, t = rest.pop()
                e(f"v_xor_b32 v236, {r}, {t}")
                tmp = ["v236"]
            for k, (r, t) in enumerate(rest):
                d = tmp[k % len(tmp)]
                e(f"v_bitop3_b32 {d}, {r}, {t}, {d} bitop3:0xbe")
            while len(tmp) > 2:
                e(f"v_or3_b32 {tmp[0]}, {tmp[0]}, {tmp[1]}, {tmp[2]}")
                tmp = tmp[3:] + tmp[:1]
        if len(tmp) == 2:
            e(f"v_bitop3_b32 {dst}, {tmp[0]}, {tmp[1]}, {sM10} bitop3:0xa8")
        else:
            e(f"v_and_b32 {dst}, {sM10}, {tmp[0]}")

    def mpoll(self, loads, until=None, init=True):
        e = self.e
        regs = ["s[96:97]", "s[98:99]", "s[100:101]", "s[78:79]", "s[80:81]"]
        top = self.lab("mp")
        done = self.lab("md")
        if init:
            for m in range(len(loads)):
                e(f"s_mov_b64 {regs[m]}, -1")
        else:
            e(f"s_or_b64 vcc, {regs[0]}, {regs[1]}")
            for m in range(2, len(loads)):
                e(f"s_or_b64 vcc, vcc, {regs[m]}")
            e(f"s_cbranch_scc0 {done}")
        e(f"s_mov_b32 {sSP}, 0")
        e.label(top)
        for m, (txt, _) in enumerate(loads):
            sk = self.lab("ms")
            e(f"s_mov_b64 exec, {regs[m]}")
            e(f"s_cbranch_execz {sk}")
            e(txt)
            e.label(sk)
        e(f"s_add_u32 {sSP}, {sSP}, 1")
        e(f"s_cmp_gt_u32 {sSP}, {SPIN}")
        e("s_cbranch_scc1 L_end")
        e("s_waitcnt vmcnt(0)")
        for m, (_, r) in enumerate(loads):
            sk = self.lab("mc")
            e(f"s_mov_b64 exec, {regs[m]}")
            if self.cskip:
                e(f"s_cbranch_execz {sk}")
            self.tagcheck(self.g4(r), "v21")
            e(f"v_cmp_ne_u32 {regs[m]}, 0, v21")
            if self.cskip:
                e.label(sk)
        if until is not None:
            e(f"s_cmp_lg_u64 {regs[until]}, 0")
        else:
            e(f"s_or_b64 vcc, {regs[0]}, {regs[1]}")
            for m in range(2, len(loads)):
                e(f"s_or_b64 vcc, vcc, {regs[m]}")
        e("s_mov_b64 exec, -1")
        e(f"s_cbranch_scc1 {top}")
        e.label(done)

    def g4(self, base):
        return [(v(base + r), v(TG[r])) for r in range(4)]

    def reduce4(self, r):
        e = self.e
        e(f"v_permlane32_swap_b32 {v(r)}, {v(r+2)}")
        e(f"v_permlane32_swap_b32 {v(r+1)}, {v(r+3)}")
        e(f"v_add_f32 {v(r)}, {v(r)}, {v(r+2)}")
        e(f"v_add_f32 {v(r+1)}, {v(r+1)}, {v(r+3)}")
        e(f"v_permlane16_swap_b32 {v(r)}, {v(r+1)}")
        e(f"v_add_f32 {v(r)}, {v(r)}, {v(r+1)}")

    def c_loads(self, soff):
        e = self.e
        e(f"v_lshlrev_b32 v18, 1, {vL}")
        e(f"v_lshrrev_b32 v19, 3, {vL}")
        e(f"v_lshlrev_b32 v19, 1, v19")
        e(f"buffer_load_ushort v30, v18, {SS1}, {soff} offen")
        e(f"buffer_load_ushort v31, v19, {SS1}, {soff} offen offset:128")

    def div(self, dst, n, d, t1, t2):
        e = self.e
        e(f"v_min_f32 {d}, 0x7e800000, {d}")
        e(f"v_rcp_f32 {t1}, {d}")
        e(f"v_mul_f32 {t2}, {n}, {t1}")
        e(f"v_fma_f32 {d}, -{d}, {t2}, {n}")
        e(f"v_fma_f32 {dst}, {d}, {t1}, {t2}")

    def silu1(self, a):
        e = self.e
        e(f"v_lshlrev_b32 {a}, 16, {a}")
        e(f"v_mul_f32 v33, 0xbfb8aa3b, {a}")
        e("v_exp_f32 v33, v33")
        e("v_add_f32 v33, 1.0, v33")
        self.div(a, a, "v33", "v34", "v35")
        e(f"v_cvt_pk_bf16_f32 {a}, {a}, {a}")

    def silu2(self, X):
        e = self.e
        e(f"v_lshlrev_b32 v30, 16, v30")
        e(f"v_lshlrev_b32 v31, 16, v31")
        e(f"v_mul_f32 v33, 0xbfb8aa3b, v30")
        e(f"v_mul_f32 v34, 0xbfb8aa3b, v31")
        e("v_exp_f32 v33, v33")
        e("v_exp_f32 v34, v34")
        e("v_add_f32 v33, 1.0, v33")
        e("v_add_f32 v34, 1.0, v34")
        self.div("v30", "v30", "v33", "v35", "v36")
        self.div("v31", "v31", "v34", "v35", "v36")
        e("v_cvt_pk_bf16_f32 v30, v30, v30")
        e(f"v_cvt_pk_bf16_f32 {v(X+8)}, v31, v31")
        self.swz(X, "v30")

    def consts(self, perm=False):
        e = self.e
        e.c("constants")
        e(f"s_mov_b32 {sSEL}, 0x07060302")
        e(f"s_mov_b32 {sL2E}, 0x3fb8aa3b")
        e("s_mov_b32 s82, -1"); e("s_mov_b32 s83, 15")
        e("s_mov_b32 s84, 0x00ff00ff"); e("s_mov_b32 s85, 0x00ff00ff")
        e("s_mov_b32 s86, 0x0f0f0f0f"); e("s_mov_b32 s87, 0x0f0f0f0f")
        e("s_mov_b32 s88, 0xaaaaaaaa"); e("s_mov_b32 s89, 0xaaaaaaaa")
        e("s_mov_b32 s90, 0"); e("s_mov_b32 s91, -1")
        e(f"v_mov_b32 v16, 0xffff")
        e(f"v_mov_b32 v17, {sHI}")
        e(f"v_cndmask_b32 v16, v16, v17, {mODD}")
        e(f"v_bfe_u32 v17, {vL}, 1, 2")
        if perm:
            e(f"v_mov_b32 v18, 0x0c0c0302")
            e(f"v_mov_b32 v19, 0x03020c0c")
            e(f"v_cndmask_b32 v18, v18, v19, {mODD}")
            e(f"v_mov_b32 v19, 0x0c0c0c0c")
        for k in range(4):
            e(f"v_cmp_eq_u32 vcc, {k}, v17")
            e(f"v_cndmask_b32 {v(MK[k])}, 0, v16, vcc")
            if perm:
                e(f"v_cndmask_b32 {v(PS[k])}, v19, v18, vcc")
        e(f"v_and_b32 v16, 15, {vL}")
        e(f"v_lshlrev_b32 v16, 5, v16")
        e(f"v_and_b32 v17, 16, {vL}")
        e(f"v_lshrrev_b32 v18, 5, {vL}")
        e(f"v_lshlrev_b32 v18, 3, v18")
        e(f"v_add3_u32 {vBO}, v16, v17, v18")
        e(f"v_lshlrev_b32 {vL4}, 2, {vL}")
        e(f"v_lshrrev_b32 v16, 4, {vL}")
        e(f"v_mul_u32_u24 v17, {ACCS}, v16")
        e(f"v_and_b32 v18, 0xf0, {vL16}")
        e(f"v_add_u32 {vAR}, v17, v18")
        e(f"v_lshl_add_u32 {vCO}, v16, 2, v18")
        self.acc_addr("N")

    def tags(self, touch=()):
        e = self.e
        e.c("tags from epoch+1")
        e("s_waitcnt lgkmcnt(0)")
        self.stamp(15)
        e("s_add_u32 s26, s26, 0x40100401")
        e("s_addc_u32 s27, s27, 0")
        e(f"v_mov_b32 {v(vE0)}, s26")
        e(f"v_mov_b32 {v(vE1)}, s27")
        e(f"v_and_b32 {v(TG[0])}, {sM10}, {v(vE0)}")
        e(f"v_bfe_u32 {v(TG[1])}, {v(vE0)}, 10, 10")
        e(f"v_bfe_u32 {v(TG[2])}, {v(vE0)}, 20, 10")
        e(f"v_alignbit_b32 {v(TG[3])}, {v(vE1)}, {v(vE0)}, 30")
        e(f"v_and_b32 {v(TG[3])}, {sM10}, {v(TG[3])}")
        e(f"v_cndmask_b32 {vTa0}, {v(TG[0])}, {v(TG[2])}, {mODD}")
        e(f"v_cndmask_b32 {vTa1}, {v(TG[1])}, {v(TG[3])}, {mODD}")
        e(f"v_cndmask_b32 {vTb0}, {v(TG[0])}, {v(TG[2])}, {mHI}")
        e(f"v_cndmask_b32 {vTb1}, {v(TG[1])}, {v(TG[3])}, {mHI}")
        e(f"v_and_b32 v16, 16, {vL}")
        e(f"v_cmp_ne_u32 vcc, 0, v16")
        e(f"v_cndmask_b32 {vTs}, {vTb0}, {vTb1}, vcc")
        e(f"v_and_b32 v16, 3, {vL}")
        e(f"v_mul_u32_u24 v16, 10, v16")
        e(f"v_lshrrev_b64 v[18:19], v16, {v(vE0,2)}")
        e(f"v_and_b32 {vTq}, {sM10}, v18")
        e(f"v_bfe_u32 v16, {vL}, 3, 2")
        e(f"v_mul_u32_u24 v16, 10, v16")
        e(f"v_lshrrev_b64 v[18:19], v16, {v(vE0,2)}")
        e(f"v_and_b32 {vTg}, {sM10}, v18")
        if self.force is None:
            sk = self.lab("cen")
            e(f"s_cmp_lg_u32 {sW}, 2")
            e(f"s_cbranch_scc1 {sk}")
            e("s_getreg_b32 s8, hwreg(HW_REG_XCC_ID)")
            e("s_and_b32 s8, s8, 0xff")
            e("s_lshl_b32 s8, s8, 16")
            e(f"v_or_b32 v16, s8, {vTq}")
            e(f"s_lshl_b32 s8, {sX}, 5")
            e(f"s_add_u32 s8, s8, {sJ}")
            e(f"s_lshl_b32 s8, s8, 4")
            e(f"s_add_u32 s8, s8, {CEN}")
            e(f"v_lshlrev_b32 v17, 2, {vL}")
            e("s_mov_b64 exec, 15")
            e(f"buffer_store_dword v16, v17, {WS}, s8 offen")
            e("s_mov_b64 exec, -1")
            e.label(sk)

    def touch(self, items):
        if not self.pretouch:
            return
        e = self.e
        sk = self.lab("tch")
        e(f"s_cmp_lg_u32 {sW}, 3")
        e(f"s_cbranch_scc1 {sk}")
        e(f"v_lshlrev_b32 v17, 7, {vL}")
        for fn, n in items:
            fn("s8")
            e(f"s_mov_b32 exec_lo, {min((1 << n) - 1, 0xffffffff)}")
            e(f"s_mov_b32 exec_hi, {((1 << n) - 1) >> 32}")
            e(f"buffer_load_dword {vDUM}, v17, {WS}, s8 offen sc1")
        e("s_mov_b64 exec, -1")
        e.label(sk)

    def census_load(self, r):
        e = self.e
        e(f"s_lshl_b32 s10, {sX}, 9")
        e(f"s_add_u32 s10, s10, {CEN}")
        e(f"v_and_b32 v16, 0x1f0, {vL16}")
        e(f"buffer_load_dwordx4 {v(r,4)}, v16, {WS}, s10 offen sc1")

    def sumrows(self, regs):
        e = self.e
        for r in regs:
            e(f"v_pk_add_f32 {v(r,2)}, {v(r,2)}, {v(r+4,2)}")
            e(f"v_pk_add_f32 {v(r+2,2)}, {v(r+2,2)}, {v(r+6,2)}")
        for r in regs:
            e(f"v_permlane32_swap_b32 {v(r)}, {v(r+2)}")
            e(f"v_permlane32_swap_b32 {v(r+1)}, {v(r+3)}")
        for r in regs:
            e(f"v_pk_add_f32 {v(r,2)}, {v(r,2)}, {v(r+2,2)}")
        for r in regs:
            e(f"v_permlane16_swap_b32 {v(r)}, {v(r+1)}")
        for r in regs:
            e(f"v_add_f32 {v(r)}, {v(r)}, {v(r+1)}")

    def census_eval(self, r, dst):
        e = self.e
        e(f"v_readfirstlane_b32 s10, {v(r)}")
        e(f"v_xor_b32 v17, {v(r)}, {v(TG[0])}")
        for k in range(1, 4):
            e(f"v_bitop3_b32 v17, {v(r+k)}, {v(TG[k])}, v17 bitop3:0xbe")
        e(f"v_and_b32 v17, {sM10}, v17")
        e(f"v_xor_b32 v18, s10, {v(r)}")
        e(f"v_or_b32 v17, v17, v18")
        e(f"v_cmp_ne_u32 vcc, 0, v17")
        e("s_cmp_eq_u64 vcc, 0")
        e(f"s_cselect_b32 {dst}, 1, 0")

    def off_p4(self, d):
        e = self.e
        e(f"s_lshl_b32 {d}, {sX}, 5")
        e(f"s_add_u32 {d}, {d}, {sJ}")
        e(f"s_mul_i32 {d}, {d}, 1152")
        e(f"s_add_u32 {d}, {d}, {P4}")

    def attention(self, S, qidx, qlag, stop):
        e = self.e
        e.c("==== attention ====")
        S.step(stop=qidx)
        S.step(stop=qidx)
        e(f"s_mul_i32 s9, {sX}, {18*2048}")
        e(f"s_lshr_b32 s10, {sJ}, 4")
        e(f"s_lshl_b32 s10, s10, 10")
        e(f"s_add_u32 s9, s9, s10")
        e(f"s_lshl_b32 s10, {sW}, 7")
        e(f"s_add_u32 s9, s9, s10")
        e(f"s_add_u32 s9, s9, {P2}")
        e(f"s_add_u32 s11, s9, {8*2048}")
        e(f"s_add_u32 s64, s9, {16*2048}")
        e(f"v_lshrrev_b32 v16, 3, {vL}")
        e(f"v_lshlrev_b32 v16, 11, v16")
        e(f"v_and_b32 v17, 0x70, {vL16}")
        e(f"v_add_u32 v28, v16, v17")
        e(f"v_and_b32 v16, 3, {vL}")
        e(f"v_lshlrev_b32 v16, 4, v16")
        e(f"v_and_b32 v17, 4, {vL}")
        e(f"v_lshrrev_b32 v18, 5, {vL}")
        e(f"v_lshlrev_b32 v18, 3, v18")
        e(f"v_add3_u32 v16, v16, v17, v18")
        e(f"v_bfe_u32 v17, {vL}, 4, 1")
        e(f"s_lshr_b32 s10, {sW}, 1")
        e(f"s_lshl_b32 s10, s10, 6")
        e(f"s_and_b32 s8, {sW}, 1")
        e(f"s_lshl_b32 s8, s8, 1")
        e(f"s_add_u32 s10, s10, s8")
        e(f"v_add3_u32 v16, v16, v17, s10")
        e(f"v_lshlrev_b32 v26, 1, v16")
        e(f"v_and_b32 v16, 8, {vL}")
        e(f"v_lshlrev_b32 v29, 2, v16")
        e(f"v_lshlrev_b32 v16, 5, v16")
        e(f"v_and_b32 v18, 3, {vL}")
        e(f"v_lshlrev_b32 v18, 6, v18")
        e(f"v_and_b32 v17, 0x30, {vL}")
        e(f"v_add3_u32 v27, v16, v17, v18")

        def issue():
            for r in range(4):
                e(f"v_mov_b32 {v(44+r)}, {v(TG[r])}")
            e(f"buffer_load_dwordx4 v[32:35], v28, {WS}, s9 offen sc1")
            e(f"buffer_load_dwordx4 v[36:39], v28, {WS}, s11 offen sc1")
            e("s_mov_b64 exec, 0xffff")
            e(f"buffer_load_dwordx4 v[44:47], v28, {WS}, s64 offen sc1")
            e("s_mov_b64 exec, -1")
        e(f"s_lshl_b32 s8, {sW}, 2")
        e(f"v_add_u32 v30, s8, v29")
        e(f"v_and_b32 v16, 32, {vL}")
        e(f"v_lshlrev_b32 v16, 2, v16")
        e(f"v_and_b32 v17, 12, {vL}")
        e(f"v_lshlrev_b32 v17, 3, v17")
        e(f"v_and_b32 v18, 19, {vL}")
        e(f"v_add3_u32 v22, v16, v17, v18")
        e(f"s_mul_i32 s8, {sW}, 1152")
        e(f"s_add_u32 s10, s8, {L_ACCO}")
        e(f"v_lshl_add_u32 v22, v22, 2, s10")
        e(f"v_and_b32 v16, 8, {vL}")
        e(f"v_add_u32 v31, s8, v16")
        e(f"v_lshrrev_b32 v16, 3, {vL}")
        e(f"v_mul_u32_u24 v24, 1152, v16")
        e(f"v_and_b32 v17, 0x70, {vL16}")
        e(f"s_lshl_b32 s8, {sW}, 7")
        e(f"v_add3_u32 v23, v24, v17, s8")
        e(f"v_and_b32 v16, 0x30, {vL}")
        e(f"v_lshrrev_b32 v19, 2, v16")
        e(f"v_lshrrev_b32 v17, 2, v17")
        e(f"v_lshl_add_u32 v20, v16, 1, v17")
        self.off_p4("s12")
        e(f"s_add_u32 s13, s12, s8")
        S.run(qidx)
        cen = self.force is None
        if cen:
            e(f"s_lshl_b32 s10, {sX}, 9")
            e(f"s_add_u32 s10, s10, {CEN}")
            e(f"v_and_b32 v16, 0x1f0, {vL16}")
            e(f"buffer_load_dwordx4 v[40:43], v16, {WS}, s10 offen sc1")
            S.extra("cen")
        issue()
        S.extra("q0")
        S.extra("q1")
        S.extra("q")
        S.run(min(stop, qidx + qlag))
        S.wait_for("q")
        if cen:
            self.census_eval(40, sLOC)
        chk = self.g4(32) + self.g4(36) + self.g4(44)
        self.tagcheck(chk, "v21")
        e(f"v_cmp_ne_u32 vcc, 0, v21")
        ok = self.lab("qok")
        e(f"s_cbranch_vccz {ok}")
        self.stamp(13)
        self.poll(issue, chk)
        e.label(ok)
        self.stamp(5)

        def vstep():
            S.step(stop=stop)
        vstep()
        e("v_pk_add_f32 v[32:33], v[32:33], v[44:45]")
        e("v_pk_add_f32 v[34:35], v[34:35], v[46:47]")
        self.sumrows([32])
        e(f"v_add_f32_dpp v32, v32, v32 row_ror:8 {DPF}")
        e("v_cvt_pk_bf16_f32 v32, v32, v32")
        e(f"ds_write_b16 v26, v32 offset:{L_Q}")
        e("s_waitcnt lgkmcnt(0)")
        e("s_barrier")
        e(f"ds_read_b128 v[32:35], v27 offset:{L_Q}")
        vstep()
        e("s_waitcnt lgkmcnt(0)")
        for k in range(4):
            e(f"v_cndmask_b32 {v(36+k)}, {v(32+k)}, 0, {mT2}")
        for k in range(4):
            e(f"v_cndmask_b32 {v(32+k)}, 0, {v(32+k)}, {mT2}")
        for u in range(4):
            e(f"v_mfma_f32_16x16x32_bf16 {v(40+4*u,4)}, {v(RK+8*u,4)}, v[32:35], 0")
        for u in range(4):
            e(f"v_mfma_f32_16x16x32_bf16 {v(40+4*u,4)}, {v(RK+8*u+4,4)}, v[36:39], {v(40+4*u,4)}")
        for u in range(4):
            e(f"v_mov_b32_dpp {v(56+u)}, {v(40+4*u)} quad_perm:[0,0,0,0] {DPF}")
        for i in range(1, 4):
            for u in range(4):
                e(f"v_add_f32_dpp {v(56+u)}, {v(40+4*u+i)}, {v(56+u)} quad_perm:[{i},{i},{i},{i}] {DPF}")
        self.rb2("v56", "v57", "v60")
        self.rb2("v58", "v59", "v61")
        for u in range(4):
            e(f"v_mul_f32 {v(56+u)}, 0x3db504f3, {v(56+u)}")
        self.rb2("v56", "v57", "v60")
        self.rb2("v58", "v59", "v61")
        e("v_max3_f32 v60, v56, v57, v58")
        e("v_max_f32 v60, v60, v59")
        e(f"v_max_f32_dpp v60, v60, v60 row_half_mirror {DPF}")
        e("v_mov_b32 v61, v60")
        e("v_permlane16_swap_b32 v60, v61")
        e("v_max_f32 v60, v60, v61")
        e("v_mov_b32 v61, v60")
        e("v_permlane32_swap_b32 v60, v61")
        e("v_max_f32 v60, v60, v61")
        e("s_mov_b64 exec, 0x101")
        e(f"ds_write_b32 v30, v60 offset:{L_MX}")
        e("s_mov_b64 exec, -1")
        vstep()
        e("s_waitcnt lgkmcnt(0)")
        e("s_barrier")
        e(f"ds_read_b128 v[40:43], v29 offset:{L_MX}")
        e(f"ds_read_b128 v[44:47], v29 offset:{L_MX+16}")
        vstep()
        e("s_waitcnt lgkmcnt(0)")
        e("v_max3_f32 v60, v40, v41, v42")
        e("v_max3_f32 v61, v43, v44, v45")
        e("v_max3_f32 v60, v60, v46, v47")
        e("v_max_f32 v60, v60, v61")
        for u in range(4):
            e(f"v_sub_f32 {v(56+u)}, {v(56+u)}, v60")
        for u in range(4):
            e(f"v_mul_f32 {v(56+u)}, {sL2E}, {v(56+u)}")
        for u in range(4):
            e(f"v_exp_f32 {v(56+u)}, {v(56+u)}")
        for u in range(4):
            e(f"v_cvt_pk_bf16_f32 {v(56+u)}, {v(56+u)}, {v(56+u)}")
        dp = DPF + " bound_ctrl:0"
        for t in range(8):
            p = v(56 + (t >> 1))
            a = RK + 4 * t
            for k in range(4):
                need_shift = (k >= 2) if (t & 1) == 0 else (k < 2)
                if need_shift:
                    sh = "row_shr:4" if (t & 1) == 0 else "row_shl:4"
                    e(f"v_and_b32_dpp {v(a+k)}, {p}, {v(MK[k])} {sh} {dp}")
                else:
                    e(f"v_and_b32 {v(a+k)}, {p}, {v(MK[k])}")
            if t == 3:
                vstep()
        for u in range(4):
            e(f"v_and_b32 {v(44+u)}, {sHI}, {v(56+u)}")
        e("v_add_f32 v44, v44, v45")
        e("v_add_f32 v46, v46, v47")
        e("v_add_f32 v61, v44, v46")
        e(f"v_add_f32_dpp v61, v61, v61 row_half_mirror {DPF}")
        e("v_mov_b32 v44, v61")
        e("v_permlane16_swap_b32 v61, v44")
        e("v_add_f32 v61, v61, v44")
        e("v_mov_b32 v44, v61")
        e("v_permlane32_swap_b32 v61, v44")
        e("v_add_f32 v61, v61, v44")
        e(f"s_cmp_eq_u32 {sW}, 0")
        e("s_cselect_b32 s10, -1, 0")
        e("v_and_b32 v60, s10, v60")
        e("s_mov_b64 exec, 0x101")
        e(f"ds_write_b64 v31, v[60:61] offset:{L_ACCO+1024}")
        e("s_mov_b64 exec, -1")
        while not S.issued("V7"):
            vstep()
        e("s_waitcnt lgkmcnt(0)")
        e("s_barrier")
        e(f"ds_read_b128 v[44:47], v24 offset:{L_ACCO+1024}")
        e(f"s_lshl_b32 s12, {sX}, 5")
        e(f"s_add_u32 s12, s12, {sJ}")
        e(f"s_lshl_b32 s12, s12, 4")
        e(f"s_add_u32 s12, s12, {P4S}")
        e("s_waitcnt lgkmcnt(0)")
        self.reduce4(44)
        e(f"v_add_f32_dpp v44, v44, v44 row_ror:8 {DPF}")
        e(f"v_bfi_b32 v44, {sM10}, {vTs}, v44")
        e("s_mov_b32 s10, 0x00010001"); e("s_mov_b32 s11, 0x00010001")
        e("s_mov_b64 exec, s[10:11]")
        self.lstore(f"buffer_store_dword v44, v19, {WS}, s12 offen")
        S.extra("st")
        e("s_mov_b64 exec, -1")
        self.stamp(6)
        for t in range(8):
            S.wait_for(f"V{t}")
            c = "0" if t == 0 else "v[40:43]"
            e(f"v_mfma_f32_16x16x32_bf16 v[40:43], {v(RK+4*t,4)}, {v(RV+4*t,4)}, {c}")
            if t < 7 and S.pos < min(stop, len(S.items)) and S.pos - 1 - S.index(f"V{t}") <= S.items[S.pos][2]:
                S.step(wait=False, stop=stop)
        self.stamp(7)
        e(f"ds_write2_b32 v22, v40, v41 offset0:0 offset1:4")
        e(f"ds_write2_b32 v22, v42, v43 offset0:8 offset1:12")
        e("s_waitcnt lgkmcnt(0)")
        e("s_barrier")
        e(f"ds_read_b128 v[40:43], v23 offset:{L_ACCO}")
        e("s_waitcnt lgkmcnt(0)")
        self.reduce4(40)
        e(f"v_add_f32_dpp v40, v40, v40 row_ror:8 {DPF}")
        e(f"v_bfi_b32 v40, {sM10}, {vTq}, v40")
        e(f"s_mov_b64 exec, {mJ8}")
        self.lstore(f"buffer_store_dword v40, v20, {WS}, s13 offen")
        S.extra("p4")
        e("s_mov_b64 exec, -1")
        self.stamp(8)

    def build(self):
        e = self.e
        k0 = self.k0
        e("s_cmp_ge_u32 s2, 256")
        e("s_cbranch_scc1 L_end")
        e("s_load_dwordx16 s[16:31], s[0:1], 0")
        e("s_load_dwordx8 s[32:39], s[0:1], 64")
        e("s_load_dwordx4 s[40:43], s[0:1], 96")
        if self.stamps or self.hold:
            e("s_memrealtime s[98:99]")
        e("v_lshrrev_b32 v16, 6, v0")
        e("v_and_b32 v0, 63, v0")
        e(f"v_readfirstlane_b32 {sW}, v16")
        e(f"v_lshlrev_b32 {vL16}, 4, v0")
        e(f"s_and_b32 {sX}, s2, 7")
        e(f"s_lshr_b32 {sJ}, s2, 3")
        if self.prefetch:
            sk = self.lab("pf")
            e(f"s_cmp_lg_u32 {sW}, {self.pfw}")
            e(f"s_cbranch_scc1 {sk}")
            e("s_getpc_b64 s[8:9]")
            e.label("L_pc")
            e(f"v_lshlrev_b32 v16, 7, v0")
            e.raw("    .set CODE_LEFT, L_code_end - L_pc")
            for k in range(3):
                e(f"v_cmp_gt_u32 vcc, CODE_LEFT-4, v16")
                e("s_and_saveexec_b64 s[10:11], vcc")
                e(f"s_cbranch_execz L_pfx{k}")
                e(f"global_load_dword {vDUM}, v16, s[8:9]")
                e.label(f"L_pfx{k}")
                e("s_mov_b64 exec, -1")
                e("v_add_u32 v16, 0x2000, v16")
            e.label(sk)
        e(f"s_lshl_b32 s12, {sX}, 1")
        e(f"s_lshr_b32 s13, {sJ}, 4")
        e(f"s_add_u32 s12, s12, s13")
        e(f"s_lshl_b32 s12, s12, 24")
        e(f"s_add_u32 s12, s12, {61440*256}")
        e(f"s_and_b32 s13, {sJ}, 15")
        e(f"s_mul_i32 s94, s13, {((8*self.rm) % 128)*0x2000 if self.rm else 0x22000}")
        e("s_mov_b32 s50, 0x100000"); e("s_mov_b32 s51, 0x20000")
        e(f"s_lshl_b32 s95, {sW}, 10")
        e(f"v_and_b32 v16, 15, {vL}")
        e(f"v_lshlrev_b32 v16, 6, v16")
        e(f"v_and_b32 v17, 0x30, {vL}")
        e(f"v_add3_u32 {vKO}, v16, v17, s95")
        e(f"s_cmp_lt_u32 {sJ}, 18")
        e(f"s_cselect_b32 s15, {sW}, 1")
        e("s_cmp_lg_u32 s15, 0")
        e("s_cbranch_scc1 L_nomod")
        self.voff9(6912)
        e(f"v_lshlrev_b32 v18, 1, {vL}")
        e(f"v_lshrrev_b32 v19, 3, {vL}")
        e(f"v_lshlrev_b32 v19, 1, v19")
        e(f"s_mul_i32 s14, {sX}, {72*6912}")
        e(f"s_lshl_b32 s8, {sJ}, 7")
        e(f"s_add_u32 s14, s14, s8")
        e(f"s_mul_i32 s8, {sX}, 144")
        e("s_mov_b32 s66, 1152"); e("s_mov_b32 s67, 0x20000")
        e(f"s_mov_b32 s58, {576*6912}"); e("s_mov_b32 s59, 0x20000")
        e("s_waitcnt lgkmcnt(0)")
        e("s_mov_b32 s64, s34"); e("s_mov_b32 s65, s35")
        e("s_mov_b32 s56, s36"); e("s_mov_b32 s57, s37")
        e(f"buffer_load_ushort v30, v18, {SS1}, s8 offen")
        e(f"buffer_load_ushort v31, v19, {SS1}, s8 offen offset:128")
        self.wloads(RW1, SW1, "s14", 6912, 0, 9)
        e.label("L_nomod")
        e("s_waitcnt lgkmcnt(0)")
        e("s_add_u32 s48, s18, s12"); e("s_addc_u32 s49, s19, 0")
        if self.hold:
            e("v_mov_b32 v250, s98")
        if self.holdg:
            e("s_and_b32 s8, s98, 0x7fffffff")
            e("s_not_b32 s8, s8")
            e("v_mov_b32 v251, s8")
            e("v_mov_b32 v252, 0")
            e("s_mov_b32 s96, s40"); e("s_mov_b32 s97, s41")
            hg = self.lab("hg")
            e(f"s_cmp_lg_u32 {sW}, 0")
            e(f"s_cbranch_scc1 {hg}")
            e("s_mov_b64 exec, 1")
            e("global_atomic_umax v252, v251, s[40:41] sc1")
            e("s_mov_b64 exec, -1")
            e.label(hg)
        e("s_load_dwordx2 s[26:27], s[42:43], 0")
        if self.tlbw:
            e.c("one wave starts the address translations of every buffer used later (values are ignored)")
            tw = self.lab("tw")
            e(f"s_cmp_lg_u32 {sW}, 2")
            e(f"s_cbranch_scc1 {tw}")
            e("s_add_u32 s8, s20, s12"); e("s_addc_u32 s9, s21, 0")
            e(f"v_lshlrev_b32 v16, 21, {vL}")
            e("s_mov_b64 exec, 1")
            for p in ("s[8:9]", "s[42:43]", "s[16:17]", "s[34:35]", "s[38:39]"):
                e(f"global_load_dword {vDUM}, v16, {p}")
            e("s_mov_b64 exec, 3")
            e(f"global_load_dword {vDUM}, v16, s[36:37]")
            e("s_mov_b64 exec, 7")
            for p in ("s[22:23]", "s[24:25]", "s[28:29]", "s[30:31]", "s[32:33]"):
                e(f"global_load_dword {vDUM}, v16, {p}")
            e("s_mov_b64 exec, -1")
            e.label(tw)
        if not self.kdelay:
            self.kvloads(RK, vKO, SK, 0, k0)
        if self.stamps:
            e(f"v_mov_b32 {vST}, 0")
            e(f"v_writelane_b32 {vST}, s98, 0")
        e(f"s_mov_b32 {sM10}, 0x3ff")
        e(f"s_mov_b32 {sHI}, 0xffff0000")
        e(f"s_mov_b32 {sLOC}, 0")
        e(f"v_add_u32 {vVO}, s95, {vL16}")
        self.srd(WS, "s42", "s43", WS_BYTES)
        e("s_add_u32 s52, s20, s12"); e("s_addc_u32 s53, s21, 0"); e("s_mov_b32 s54, 0x100000"); e("s_mov_b32 s55, 0x20000")
        self.consts()
        if self.kdelay:
            self.kvloads(RK, vKO, SK, 0, k0)
        self.tags()
        e(f"s_cmp_ge_u32 {sJ}, 27")
        e("s_cbranch_scc1 L_MR")
        e(f"s_cmp_ge_u32 {sJ}, 18")
        e("s_cbranch_scc1 L_WD")
        self.role_gu()
        self.role_wd()
        self.role_mr()
        e.label("L_fin")
        if self.hold:
            if self.holdg:
                e.label("L_hold")
                e("s_sleep 32")
                e("global_load_dword v250, v252, s[40:41] sc1")
                e("s_waitcnt vmcnt(0)")
                e("v_readfirstlane_b32 s10, v250")
                e("s_memrealtime s[8:9]")
                e("s_not_b32 s10, s10")
                e("s_waitcnt lgkmcnt(0)")
                e("s_and_b32 s8, s8, 0x7fffffff")
                e("s_sub_u32 s8, s8, s10")
                e(f"s_cmp_lt_u32 s8, {self.hold - 300}")
                e("s_cbranch_scc1 L_hold")
                e.label("L_hold2")
                e("s_sleep 4")
                e("s_memrealtime s[8:9]")
                e("s_waitcnt lgkmcnt(0)")
                e("s_and_b32 s8, s8, 0x7fffffff")
                e("s_sub_u32 s8, s8, s10")
                e(f"s_cmp_lt_u32 s8, {self.hold}")
                e("s_cbranch_scc1 L_hold2")
                e("s_branch L_end")
            e("v_readfirstlane_b32 s10, v250")
            e.label("L_hold" if not self.holdg else "L_holdx")
            e("s_sleep 4")
            e("s_memrealtime s[8:9]")
            e("s_waitcnt lgkmcnt(0)")
            e("s_sub_u32 s8, s8, s10")
            e(f"s_cmp_lt_u32 s8, {self.hold}")
            e("s_cbranch_scc1 L_hold")
        if self.stamps:
            e(f"s_lshl_b32 s8, s2, 3")
            e(f"s_add_u32 s8, s8, {sW}")
            e(f"s_lshl_b32 s8, s8, 8")
            e(f"s_add_u32 s8, s8, {STAMP}")
            e(f"v_lshlrev_b32 v16, 2, {vL}")
            e(f"buffer_store_dword {vST}, v16, {WS}, s8 offen")
        e.label("L_end")
        return e

    def role_mr(self):
        e = self.e
        thr = self.thr_mr
        npre = self.mr_pre
        e.label("L_MR")
        e.c("================ MR ================")
        e(f"s_sub_u32 {sR}, {sJ}, 27")
        e(f"s_lshl_b32 {sR}, {sR}, 3")
        e(f"s_add_u32 {sR}, {sR}, {sX}")

        def off_x(base):
            def f(d):
                e(f"s_mul_i32 {d}, {sX}, 2304")
                e(f"s_add_u32 {d}, {d}, {base}")
            return f
        self.srd(SS1, "s34", "s35", 1152)
        self.srd(SW1, "s36", "s37", 576 * 6912)
        e(f"s_cmp_ge_u32 {sR}, 36")
        e(f"s_cselect_b32 s58, 0, s58")
        e(f"v_lshrrev_b32 v16, 3, {vL}")
        e(f"v_mul_u32_u24 v17, 10, v16")
        e(f"v_and_b32 v18, 7, {vL}")
        e(f"v_lshl_add_u32 v17, v18, 1, v17")
        e(f"s_mul_i32 s8, {sW}, 80")
        e(f"buffer_load_ushort v30, v17, {SS1}, s8 offen")
        e(f"v_mul_u32_u24 v16, {5*6912}, v16")
        e(f"v_lshl_add_u32 {vWA}, v18, 4, v16")
        e(f"s_mul_i32 s14, {sW}, {40*6912}")
        e(f"s_lshl_b32 s8, {sR}, 7")
        e(f"s_add_u32 s14, s14, s8")
        e(f"s_add_u32 s14, s14, {18*128}")
        S = self.stream(self.it_w(RW1, SW1, "s14", 6912, 0, 5, thr) + self.it_kv("K", self.k0, 8, thr) + self.it_kv("V", 0, 8, thr))
        S.extra("c")
        S.run(self.k0 + thr + 1)
        S.wait_for("c")
        self.silu1("v30")
        self.swz(48, "v30", 5)

        def off_p11(d):
            e(f"s_mul_i32 {d}, {sX}, {3*2304}")
            e(f"s_add_u32 {d}, {d}, {P11}")
        self.touch([(self.off_p4, 8), (off_x(P9), 18), (off_p11, 45)])
        e("s_waitcnt lgkmcnt(0)")
        S.run(self.k0 + 5 + thr + 1)
        S.wait_for("W4")
        self.core(48, RW1, 5, 40, 32)
        self.acc_add(40, L_ACC1)
        sk = self.lab("mri")
        e(f"s_cmp_ge_u32 {sR}, 36")
        e(f"s_cbranch_scc1 {sk}")
        e(f"s_lshl_b32 s8, {sR}, 8")
        e(f"s_add_u32 s8, s8, {P6}")
        self.acc_publish(L_ACC1, "s8", False, False)
        e.label(sk)
        self.stamp(4)
        self.attention(S, 13 + self.qpos, thr, 21)
        e.c("================ reducers: one wave per 64-column slice ================")
        e(f"s_sub_u32 s8, {sJ}, 27")
        e(f"s_lshl_b32 s8, s8, 1")
        e(f"s_add_u32 s8, s8, {sW}")
        e(f"s_cmp_gt_u32 {sW}, 1")
        e("s_cbranch_scc1 L_pfs" if self.slowpf else "s_cbranch_scc1 L_fin")
        e("s_cmp_gt_u32 s8, 8")
        e("s_cbranch_scc1 L_fin")
        self.srd(SS2, "s16", "s17", 1152)
        e("s_lshl_b32 s9, s8, 7")
        e(f"v_lshlrev_b32 v25, 1, {vL}")
        e(f"buffer_load_ushort v62, v25, {SS2}, s9 offen")
        e(f"s_mul_i32 s12, {sX}, {3*2304}")
        e(f"s_add_u32 s12, s12, {P11}")
        if self.cstat:
            e("s_lshl_b32 s13, s8, 4")
            e("s_add_u32 s13, s13, s12")
        else:
            e(f"s_add_u32 s13, s12, s9")
        e(f"s_add_u32 s13, s13, 4608")
        e("s_lshl_b32 s8, s8, 8")
        e("s_add_u32 s12, s12, s8")
        e(f"s_add_u32 s10, s8, {P6}")
        e(f"s_add_u32 s11, s10, 4608")
        e(f"v_lshrrev_b32 v16, 4, {vL}")
        e(f"v_lshlrev_b32 v26, 2, v16")
        e(f"v_mul_u32_u24 v16, 2304, v16")
        e(f"v_and_b32 v17, 0xf0, {vL16}")
        e(f"v_add_u32 v27, v16, v17")
        e(f"s_add_u32 s14, s8, {P5}")
        e(f"s_add_u32 s15, s14, {4*2304}")
        off_x(P9)("s64")
        e("s_add_u32 s64, s64, s8")
        e("s_mov_b32 s66, 0x00010001"); e("s_mov_b32 s67, 0x00010001")
        e("s_movk_i32 s68, 9216")
        l5 = [(f"buffer_load_dwordx4 {v(32+4*m,4)}, v27, {WS}, {so} offen sc1", 32 + 4 * m) for m, so in enumerate(("s14", "s15"))]
        e(f"v_lshrrev_b32 v16, 4, {vL}")
        e(f"v_mul_u32_u24 v16, 9216, v16")
        e(f"v_add3_u32 v24, v16, v17, s68")

        def issue6():
            for k, (so, off) in enumerate((("s10", 0), ("s10", 2304), ("s11", 0), ("s11", 2304))):
                e(f"buffer_load_dword {v(56+k)}, {vL4}, {WS}, {so} offen offset:{off} sc1")
                e(f"buffer_load_dwordx4 {v(40+4*k,4)}, v24, {WS}, {so} offen offset:{off} sc1")
        self.poll(issue6, [(v(56 + k), vTq) for k in range(4)] + self.g4(40) + self.g4(44) + self.g4(48) + self.g4(52))
        for k in range(4):
            self.reduce4(40 + 4 * k)
            e(f"v_add_f32 {v(56+k)}, {v(56+k)}, {v(40+4*k)}")
            self.rb1(v(56 + k))
        e("v_add_f32 v58, 1.0, v58")
        self.rb1("v58")
        e(f"v_or_b32 v60, v58, {vTq}")
        e(f"v_or_b32 v61, v57, {vTq}")
        e("v_lshlrev_b32 v62, 16, v62")
        self.lstore_multi([f"buffer_store_dword v60, {vL4}, {WS}, s12 offen",
                           f"buffer_store_dword v61, {vL4}, {WS}, s12 offen offset:2304"])
        self.stamp(9)
        self.mpoll(l5)
        self.stamp(10)
        self.sumrows([32])
        e("v_fma_f32 v62, v32, v56, v62")
        e("v_mov_b32 v36, v62")
        e("v_mul_f32 v37, v62, v62")
        e("v_mul_f32 v33, v62, v58")
        e(f"v_bfi_b32 v33, {sM10}, {vTq}, v33")
        e("v_permlane32_swap_b32 v36, v37")
        e("v_add_f32 v36, v36, v37")
        for r in (8, 4, 2, 1):
            e(f"v_add_f32_dpp v36, v36, v36 row_ror:{r} {DPF}")
        e(f"v_bfi_b32 v36, {sM10}, {vTs}, v36")
        self.lstore_multi([f"buffer_store_dword v33, {vL4}, {WS}, s64 offen",
                           "s_mov_b64 exec, s[66:67]",
                           f"buffer_store_dword v36, v26, {WS}, s13 offen",
                           "s_mov_b64 exec, -1"])
        self.stamp(11)
        e.c("---- output: the reducer of slice s in slot s&7 ----")
        e("s_lshr_b32 s10, s8, 8")
        e("s_and_b32 s10, s10, 7")
        e(f"s_cmp_lg_u32 s10, {sX}")
        e("s_cbranch_scc1 L_fin")
        self.srd(SS1, "s38", "s39", 1152)
        e(f"s_add_u32 s14, s8, {P8}")
        e(f"s_add_u32 s15, s14, {4*2304}")
        self.mpoll(l5)
        self.sumrows([32])
        e("v_fma_f32 v32, v32, v59, v62")
        e("v_cvt_pk_bf16_f32 v32, v32, v32")
        e(f"buffer_store_short v32, v25, {SS1}, s9 offen")
        self.stamp(16)
        e("s_cmp_lg_u32 s8, 0")
        e("s_cbranch_scc1 L_fin")
        e("s_mov_b64 exec, 1")
        e(f"buffer_store_dwordx2 {v(vE0,2)}, off, {WS}, 0 sc1")
        e("s_mov_b64 exec, -1")
        if self.slowpf:
            e("s_branch L_fin")
            e.label("L_pfs")
            e.c("idle waves: pull the gate/up column slice whose lines stream slowest into this slot's L2")
            NT = self.slowpf
            e(f"s_sub_u32 s8, {sW}, 2")
            e("s_mul_i32 s8, s8, 5")
            e(f"s_add_u32 s8, s8, {sJ}")
            e("s_sub_u32 s8, s8, 27")
            e(f"s_cmp_ge_u32 s8, {4*NT}")
            e("s_cbranch_scc1 L_fin")
            e("s_bitcmp1_b32 s8, 0")
            e("s_cselect_b32 s60, s30, s28")
            e("s_cselect_b32 s61, s31, s29")
            e(f"s_mov_b32 s62, {576*9216}")
            e("s_mov_b32 s63, 0x20000")
            e(f"s_mul_i32 s10, {sX}, 1152")
            e("s_add_u32 s9, s10, s60")
            e("s_sub_u32 s9, 0x180, s9")
            e("s_and_b32 s9, s9, 0x380")
            e("s_lshr_b32 s8, s8, 1")
            sk = self.lab("pf2")
            e(f"s_cmp_lt_u32 s8, {NT}")
            e(f"s_cbranch_scc1 {sk}")
            e("s_cmp_lg_u32 s9, 0")
            e("s_cbranch_scc1 L_fin")
            e(f"s_sub_u32 s8, s8, {NT}")
            e("s_movk_i32 s9, 1024")
            e.label(sk)
            e("s_sub_u32 s8, 7, s8")
            e("s_mul_i32 s8, s8, 9216")
            e("s_add_u32 s8, s8, s9")
            e("s_add_u32 s8, s8, s10")
            e(f"v_lshrrev_b32 v17, 3, {vL}")
            e(f"v_add_u32 v16, {vL}, v17")
            e(f"v_mul_u32_u24 v16, {8*9216}, v16")
            e(f"buffer_load_dword {vDUM}, v16, {SW2}, s8 offen")

    def role_wd(self):
        e = self.e
        thr = self.thr
        e.label("L_WD")
        e.c("================ WD ================")
        e(f"s_sub_u32 {sR}, {sJ}, 18")
        self.srd(SW1, "s24", "s25", 4096 * 1152)
        self.srd(SW2, "s32", "s33", 4608 * 1152)
        e(f"v_and_b32 v16, 8, {vL}")
        e(f"v_lshlrev_b32 v16, 2, v16")
        e(f"v_lshrrev_b32 v17, 4, {vL}")
        e(f"v_add_u32 v16, v16, v17")
        e(f"v_mul_u32_u24 v16, 1152, v16")
        e(f"v_and_b32 v17, 0x70, {vL16}")
        e(f"v_add_u32 {vWA}, v16, v17")
        e(f"s_lshl_b32 s14, {sX}, 3")
        e(f"s_add_u32 s14, s14, {sW}")
        e(f"s_mul_i32 s15, s14, {72*1152}")
        e(f"s_mul_i32 s14, s14, {64*1152}")
        e(f"s_lshl_b32 s8, {sR}, 7")
        e(f"s_add_u32 s14, s14, s8")
        e(f"s_add_u32 s15, s15, s8")
        wp = self.wd_pre
        S = self.stream(self.it_w(RW1, SW1, "s14", 4 * 1152, 0, wp, thr) + self.it_kv("K", self.k0, 8, thr) + self.it_kv("V", 0, 8, thr)
                        + self.it_w(RW1, SW1, "s14", 4 * 1152, wp, 8, thr))
        self.touch([(self.off_p4, 8)])
        self.attention(S, wp + 8 + self.qpos_wd, thr, 24)
        S.run(24)
        self.voff9(1152)
        ne = self.n_early_wd
        self.wloads(RW2, SW2, "s15", 1152, 0, ne, self.thr_w)
        e.c("---- combine: gather P4 ----")
        e(f"s_lshl_b32 s8, {sX}, 5")
        e(f"s_lshr_b32 s9, {sW}, 2")
        e(f"s_lshl_b32 s9, s9, 4")
        e(f"s_add_u32 s8, s8, s9")
        e(f"s_mul_i32 s8, s8, 1152")
        e(f"s_add_u32 s8, s8, {P4}")
        e(f"s_and_b32 s9, {sW}, 3")
        e(f"s_lshl_b32 s9, s9, 8")
        e(f"s_add_u32 s9, s9, s8")
        e(f"v_lshrrev_b32 v16, 4, {vL}")
        e(f"v_mul_u32_u24 v17, {4*1152}, v16")
        e(f"v_and_b32 v18, 0xf0, {vL16}")
        e(f"v_add_u32 v26, v17, v18")
        e(f"v_lshl_add_u32 v17, v16, 2, {vL}")
        e(f"v_and_b32 v17, 15, v17")
        e(f"v_lshlrev_b32 v27, 4, v17")
        e(f"s_lshl_b32 s68, {sX}, 1")
        e(f"s_lshr_b32 s69, {sW}, 2")
        e(f"s_add_u32 s68, s68, s69")
        e(f"s_lshl_b32 s68, s68, 8")
        e(f"s_add_u32 s68, s68, {P4S}")
        e(f"s_mul_i32 s10, {sX}, 2304")
        e(f"s_lshl_b32 s11, {sR}, 8")
        e(f"s_add_u32 s13, s10, s11")
        e(f"s_add_u32 s12, s13, {P5}")
        e(f"s_mov_b32 s64, s8")
        self.acc_addr("T")
        e(f"s_mov_b32 s8, s64")
        e(f"s_bitcmp1_b32 {sW}, 1")
        e("s_cselect_b64 s[10:11], -1, 0")

        l4 = [(f"buffer_load_dwordx4 {v(32+4*m,4)}, v26, {WS}, s9 offen offset:{1152*m} sc1", 32 + 4 * m) for m in range(4)]
        self.mpoll(l4 + [(f"buffer_load_dwordx4 v[48:51], v27, {WS}, s68 offen sc1", 48)], until=4)
        self.stamp(17)
        e("v_cndmask_b32 v28, v48, v50, s[10:11]")
        e("v_cndmask_b32 v29, v49, v51, s[10:11]")
        e(f"v_max_f32_dpp v30, v28, v28 row_ror:8 {DPF}")
        for r in (4, 2, 1):
            e(f"v_max_f32_dpp v30, v30, v30 row_ror:{r} {DPF}")
        e("v_sub_f32 v28, v28, v30")
        e(f"v_mul_f32 v28, {sL2E}, v28")
        e("v_exp_f32 v28, v28")
        e("v_mul_f32 v29, v28, v29")
        for r in (8, 4, 2, 1):
            e(f"v_add_f32_dpp v29, v29, v29 row_ror:{r} {DPF}")
        e("v_rcp_f32 v29, v29")
        e("v_mul_f32 v28, v28, v29")
        self.mpoll(l4, init=False)
        self.stamp(9)
        for m in range(4):
            for r in range(4):
                op = "v_mul_f32_dpp" if m == 0 else "v_fmac_f32_dpp"
                e(f"{op} {v(52+r)}, v28, {v(32+4*m+r)} row_newbcast:{m} {DPF}")
        self.reduce4(52)
        e("v_cvt_pk_bf16_f32 v52, v52, v52")
        self.swz(56, "v52")
        self.core(56, RW1, 8, 40, 32, lgkm=8)
        self.acc_add(40, L_ACC1)
        self.acc_publish(L_ACC1, "s12", False, False)
        self.stamp(10)
        e("s_barrier")
        self.wloads(RW2, SW2, "s15", 1152, ne, 9, self.thr_dn)
        e.c("---- gather P7, gelu ----")
        e(f"s_mul_i32 s8, {sX}, 9216")
        e(f"s_mul_i32 s9, {sW}, 576")
        e(f"s_add_u32 s8, s8, s9")
        e(f"s_add_u32 s8, s8, {P7}")
        e(f"s_add_u32 s9, s8, 4608")
        e(f"v_lshlrev_b32 v26, 3, {vL}")
        e(f"v_and_b32 v27, 0x38, {vL}")
        e(f"v_mov_b32 v38, 0x3d372713")
        e(f"s_add_u32 s12, s13, {P8}")

        if not self.pair:
            e(f"s_mul_i32 s8, {sX}, 9216")
            e(f"s_mul_i32 s9, {sW}, 288")
            e(f"s_add_u32 s8, s8, s9")
            e(f"s_add_u32 s8, s8, {P7}")
            e(f"v_lshrrev_b32 v27, 1, v27")

            def issue2():
                e(f"buffer_load_dword v64, {vL4}, {WS}, s8 offen sc1")
                e(f"buffer_load_dword v65, v27, {WS}, s8 offen offset:256 sc1")
                e(f"buffer_load_dword v66, {vL4}, {WS}, s8 offen offset:2304 sc1")
                e(f"buffer_load_dword v67, v27, {WS}, s8 offen offset:2560 sc1")
            self.poll(issue2, [("v64", vTq), ("v65", vTg), ("v66", vTq), ("v67", vTg)], clean=False)
            self.stamp(11)
            for r in range(4):
                e(f"v_and_b32 {v(32+r)}, {sHI}, {v(64+r)}")
        else:
            def issue2():
                e(f"buffer_load_dwordx2 v[64:65], v26, {WS}, s8 offen sc1")
                e(f"buffer_load_dwordx2 v[66:67], v27, {WS}, s8 offen offset:512 sc1")
                e(f"buffer_load_dwordx2 v[68:69], v26, {WS}, s9 offen sc1")
                e(f"buffer_load_dwordx2 v[70:71], v27, {WS}, s9 offen offset:512 sc1")
            self.poll(issue2, [(v(64 + r), vTq if (r >> 1) % 2 == 0 else vTg) for r in range(8)])
            self.stamp(11)
            for r in range(4):
                e(f"v_add_f32 {v(32+r)}, {v(64+2*r)}, {v(65+2*r)}")
        pr = (("v32", "v36"), ("v33", "v37"))
        for a, t in pr:
            e(f"v_mul_f32 {t}, {a}, {a}")
        for a, t in pr:
            e(f"v_fma_f32 {t}, {t}, v38, 1.0")
        for a, t in pr:
            e(f"v_mul_f32 {t}, {t}, {a}")
        for a, t in pr:
            e(f"v_mul_f32 {t}, 0xc0135761, {t}")
        e("v_exp_f32 v36, v36"); e("v_exp_f32 v37, v37")
        e("v_mul_f32 v32, v32, v34"); e("v_mul_f32 v33, v33, v35")
        e("v_add_f32 v36, 1.0, v36"); e("v_add_f32 v37, 1.0, v37")
        e("v_rcp_f32 v36, v36"); e("v_rcp_f32 v37, v37")
        e("v_mul_f32 v32, v32, v36"); e("v_mul_f32 v33, v33, v37")
        e("v_cvt_pk_bf16_f32 v47, v32, v32")
        self.swz(48, "v47")
        e("v_cvt_pk_bf16_f32 v56, v33, v33")
        self.core(48, RW2, 9, 40, 32, lgkm=8, order=[8, 0, 1, 2, 3, 4, 5, 6, 7])
        self.acc_add(40, L_ACC2)
        self.acc_publish(L_ACC2, "s12", False, False)
        self.stamp(12)
        e("s_branch L_fin")

    def role_gu(self):
        e = self.e
        thr = self.thr_gu
        e.c("================ GU ================")
        e(f"s_mov_b32 {sR}, {sJ}")
        self.srd(SW2, "s22", "s23", 576 * 8192)
        w1 = self.lab("w1")
        e(f"s_cmp_lg_u32 {sW}, 1")
        e(f"s_cbranch_scc1 {w1}")
        self.srd(SS2, "s16", "s17", 1152)
        e(f"buffer_load_dwordx4 v[32:35], {vL16}, {SS2}, 0 offen")
        e(f"buffer_load_dwordx4 v[36:39], {vL16}, {SS2}, 0 offen offset:1024")
        e(f"v_and_b32 v16, 7, {vL}")
        e(f"v_lshrrev_b32 v17, 4, {vL}")
        e(f"v_lshl_add_u32 v28, v16, 2, v17")
        e(f"v_lshlrev_b32 v16, 1, v28")
        e(f"s_lshl_b32 s8, {sR}, 6")
        e(f"buffer_load_ushort v40, v16, {SS2}, s8 offen")
        e.label(w1)
        n0 = self.lab("n0")
        e(f"s_cmp_lg_u32 {sW}, 0")
        e(f"s_cbranch_scc1 {n0}")
        e(f"s_waitcnt vmcnt({9+self.k0})")
        self.silu2(48)
        self.core(48, RW1, 9, 40, 32, vm_after=self.k0, lgkm=8)
        e(f"s_lshl_b32 s8, {sR}, 3")
        e(f"s_add_u32 s8, s8, {sX}")
        e(f"s_lshl_b32 s8, s8, 9")
        e(f"s_add_u32 s8, s8, {P1}")
        self.bsum(40)
        for k in range(2):
            e(f"v_bfi_b32 {v(42+k)}, {sM10}, 0, {v(40+k)}")
            e(f"v_sub_f32 {v(42+k)}, {v(40+k)}, {v(42+k)}")
        for k, t in enumerate((vTb0, vTb1, vTb0, vTb1)):
            e(f"v_bfi_b32 {v(40+k)}, {sM10}, {t}, {v(40+k)}")
        e(f"s_mov_b64 exec, {mJ8}")
        e(f"buffer_store_dwordx2 v[40:41], {vBO}, {WS}, s8 offen sc1")
        e(f"buffer_store_dwordx2 v[42:43], {vBO}, {WS}, s8 offen offset:256 sc1")
        e("s_mov_b64 exec, -1")
        self.stamp(1)
        e.label(n0)
        self.srd(SS1, "s34", "s35", 1152)
        self.srd(SW1, "s36", "s37", 576 * 6912)
        e(f"s_mul_i32 s12, {sX}, 18")
        e(f"s_add_u32 s12, s12, {sR}")
        e(f"s_and_b32 s13, s12, 3")
        e(f"s_lshr_b32 s12, s12, 2")
        e(f"s_lshl_b32 s8, s13, 3")
        e(f"s_add_u32 s8, s8, {sW}")
        e(f"s_add_u32 s8, s8, 40")
        e(f"s_lshl_b32 s9, s8, 4")
        e(f"v_lshrrev_b32 v16, 3, {vL}")
        e(f"v_lshlrev_b32 v17, 1, v16")
        e(f"buffer_load_ushort v62, v17, {SS1}, s9 offen")
        e(f"s_mul_i32 s8, s8, {8*6912}")
        e(f"s_lshl_b32 s9, s12, 7")
        e(f"s_add_u32 s8, s8, s9")
        e(f"s_add_u32 s8, s8, {18*128}")
        e(f"v_mul_u32_u24 v16, 6912, v16")
        e(f"v_and_b32 v17, 0x70, {vL16}")
        e(f"v_add_u32 v16, v16, v17")
        e(f"buffer_load_dwordx4 {v(RW1,4)}, v16, {SW1}, s8 offen {self.wf}")
        e(f"s_add_u32 s13, s13, 1")
        e(f"s_mul_i32 s13, s13, 9216")
        e(f"s_lshl_b32 s12, s12, 8")
        e(f"s_add_u32 s13, s13, s12")
        e(f"s_add_u32 s13, s13, {P6}")
        self.acc_addr("T")
        e(f"v_lshrrev_b32 v16, 3, {vL}")
        e(f"v_lshlrev_b32 v16, 15, v16")
        e(f"v_and_b32 v17, 0x70, {vL16}")
        e(f"v_add_u32 {vWA}, v16, v17")
        e(f"s_lshl_b32 s14, {sR}, 18")
        e(f"s_lshl_b32 s8, {sX}, 10")
        e(f"s_add_u32 s14, s14, s8")
        e(f"s_lshl_b32 s8, {sW}, 7")
        e(f"s_add_u32 s14, s14, s8")

        def off_p2(d):
            e(f"s_mul_i32 {d}, {sX}, 18")
            e(f"s_add_u32 {d}, {d}, {sR}")
            e(f"s_lshl_b32 {d}, {d}, 11")
            e(f"s_add_u32 {d}, {d}, {P2}")

        def off_p3(d):
            e(f"s_lshl_b32 {d}, {sX}, 4")
            e(f"s_add_u32 {d}, {d}, {sR}")
            e(f"s_lshl_b32 {d}, {d}, 7")
            e(f"s_add_u32 {d}, {d}, {P3}")

        def off_p7(d):
            e(f"s_mul_i32 {d}, {sX}, 18")
            e(f"s_add_u32 {d}, {d}, {sR}")
            e(f"s_lshl_b32 {d}, {d}, 9")
            e(f"s_add_u32 {d}, {d}, {P7}")
        self.touch([(off_p2, 16), (self.off_p4, 8), (off_p7, 4)])
        e(f"s_cmp_eq_u32 {sW}, 1")
        e(f"s_cbranch_scc1 L_GU_w1")
        e(f"s_waitcnt vmcnt({thr})")
        self.wloads(RW2, SW2, "s14", 8192, 0, 3, thr)
        self.wloads(RW2, SW2, "s14", 8192, 3, 4, thr if self.kpre > self.k0 else None)
        e("s_waitcnt vmcnt(4)")
        self.silu1("v62")
        self.core(62, RW1, 1, 56, 52)
        self.bsum(56)
        e(f"s_mov_b64 exec, {mJ8}")
        e(f"ds_write_b32 {vA0}, v56 offset:{L_ACC2}")
        e(f"ds_write_b32 {vA1}, v57 offset:{L_ACC2}")
        e("s_mov_b64 exec, -1")
        if self.force is None:
            nc = self.lab("nc")
            e(f"s_cmp_lg_u32 {sW}, 2")
            e(f"s_cbranch_scc1 {nc}")
            self.census_load(44)
            e.label(nc)
        self.kvloads(RK, vKO, SK, self.k0, self.kpre - 1, thr)
        self.kvloads(RK, vKO, SK, self.kpre - 1, self.kpre)
        if self.force is None:
            e(f"s_cmp_lg_u32 {sW}, 2")
            e(f"s_cbranch_scc1 L_GU_b1")
            e(f"s_waitcnt vmcnt({self.kpre - self.k0})")
            self.census_eval(44, "s10")
            e("v_mov_b32 v44, s10")
            e("v_mov_b32 v45, 0")
            e(f"ds_write_b32 v45, v44 offset:{L_H32+128}")
        e(f"s_branch L_GU_b1")
        e.label("L_GU_w1")
        self.wloads(RW2, SW2, "s14", 8192, 0, 4)
        e(f"s_waitcnt vmcnt(4)")
        e("v_mov_b32 v41, 0x3f803f80")
        e("v_mov_b32 v42, 0")
        e("v_mov_b32 v43, 0")
        for r in range(8):
            e(f"v_dot2_f32_bf16 v42, {v(32+r)}, v41, v42")
        for r in range(8):
            e(f"v_dot2_f32_bf16 v43, {v(32+r)}, {v(32+r)}, v43")
        e("v_permlane32_swap_b32 v42, v43")
        e("v_add_f32 v42, v42, v43")
        e("v_mov_b32 v43, v42")
        e("v_permlane16_swap_b32 v42, v43")
        e("v_add_f32 v42, v42, v43")
        for r in (8, 4, 2, 1):
            e(f"v_add_f32_dpp v42, v42, v42 row_ror:{r} {DPF}")
        e("v_mov_b32 v43, v42")
        e("v_permlane32_swap_b32 v42, v43")
        S1, S2, mb, rinv = "v42", "v43", "v44", "v45"
        e(f"v_mul_f32 {S1}, 0x3ae38e39, {S1}")
        e(f"v_mul_f32 {S2}, 0x3ae38e39, {S2}")
        e(f"v_fma_f32 {S2}, -{S1}, {S1}, {S2}")
        e(f"v_max_f32 {S2}, 0, {S2}")
        e(f"v_cvt_pk_bf16_f32 {rinv}, {S1}, {S2}")
        e(f"v_lshlrev_b32 {mb}, 16, {rinv}")
        e(f"v_and_b32 {S2}, {sHI}, {rinv}")
        e(f"v_add_f32 {S2}, 0x3727c5ac, {S2}")
        self.rb1(S2)
        e(f"v_sqrt_f32 {S2}, {S2}")
        self.rb1(S2)
        e("v_lshlrev_b32 v40, 16, v40")
        e("v_sub_f32 v40, v40, v44")
        self.rb1("v40")
        self.div("v40", "v40", S2, "v45", "v46")
        self.rb1("v40")
        e("v_lshlrev_b32 v28, 2, v28")
        self.silu1("v62")
        self.core(62, RW1, 1, 56, 52)
        self.bsum(56)
        e(f"s_mov_b64 exec, {mJ8}")
        e(f"ds_write_b32 {vA0}, v56 offset:{L_ACC2}")
        e(f"ds_write_b32 {vA1}, v57 offset:{L_ACC2}")
        e("s_mov_b64 exec, -1")
        e(f"v_lshrrev_b32 v16, 3, {vL}")
        e(f"v_lshlrev_b32 v16, 9, v16")
        e(f"v_and_b32 v17, 0x70, {vL16}")
        e(f"v_add_u32 v26, v16, v17")
        e(f"s_lshr_b32 s8, {sR}, 1")
        e(f"s_lshl_b32 s8, s8, 12")
        e(f"s_and_b32 s9, {sR}, 1")
        e(f"s_lshl_b32 s9, s9, 7")
        e(f"s_add_u32 s8, s8, s9")
        e(f"s_add_u32 s8, s8, {P1}")
        e(f"s_add_u32 s9, s8, {9*4096}")
        cen = self.force is None
        self.kvloads(RK, vKO, SK, self.k0, self.kpre, thr)

        def issue():
            e(f"buffer_load_dwordx4 v[32:35], v26, {WS}, s8 offen sc1")
            e(f"buffer_load_dwordx4 v[36:39], v26, {WS}, s9 offen sc1")
            e(f"buffer_load_dwordx4 v[44:47], v26, {WS}, s8 offen offset:256 sc1")
            e(f"buffer_load_dwordx4 v[48:51], v26, {WS}, s9 offen offset:256 sc1")
        self.stamp(17)
        if self.p1wait:
            e("s_waitcnt vmcnt(0)")
            self.stamp(18)
        self.poll(issue, self.g4(32) + self.g4(36) + self.g4(44) + self.g4(48))
        self.stamp(2)
        for k in range(4):
            e(f"v_pk_add_f32 {v(32+2*k,2)}, {v(32+2*k,2)}, {v(44+2*k,2)}")
        if self.stamps:
            e(f"v_writelane_b32 {vST}, {sSP}, 40")
        self.reduce4(32)
        self.reduce4(36)
        e(f"v_add_f32_dpp v32, v32, v32 row_ror:8 {DPF}")
        e(f"v_add_f32_dpp v36, v36, v36 row_ror:8 {DPF}")
        self.rb2("v32", "v36", "v33")
        e("v_add_f32 v36, 1.0, v36")
        self.rb1("v36")
        e("v_mul_f32 v36, v36, v40")
        self.rb1("v36")
        e("v_add_f32 v36, v36, v32")
        e("v_cvt_pk_bf16_f32 v36, v36, v36")
        e(f"ds_write_b32 v28, v36 offset:{L_H32}")
        e.label("L_GU_b1")
        e(f"v_lshrrev_b32 v25, 3, {vL}")
        e(f"v_lshlrev_b32 v26, 4, v25")
        e("v_mov_b32 v27, 0")
        e(f"v_and_b32 v16, 7, {vL}")
        e(f"v_and_b32 v17, 0x30, {vL}")
        e(f"v_lshrrev_b32 v17, 1, v17")
        e(f"v_add_lshl_u32 v24, v16, v17, 3")
        off_p2("s9")
        e(f"s_lshl_b32 s10, {sW}, 8")
        e(f"s_add_u32 s9, s9, s10")
        e("s_waitcnt lgkmcnt(0)")
        e("s_barrier")
        e(f"ds_read_b128 v[48:51], v26 offset:{L_H32}")
        if cen:
            e(f"ds_read_b32 v52, v27 offset:{L_H32+128}")
        e("s_waitcnt lgkmcnt(0)")
        if cen:
            e(f"v_readfirstlane_b32 {sLOC}, v52")
        e(f"s_waitcnt vmcnt({self.kpre - self.k0})")
        self.core(48, RW2, 4, 40, 32)
        self.bsum_store(40, "s9", True, lin="v24")
        self.stamp(3)
        self.acc_publish(L_ACC2, "s13", False, False)
        e.label("L_GU_b2")
        if not self.resume:
            e("s_barrier")

        t2 = self.thr_gu2
        S = Stream(e, self.it_kv("K", self.kpre, 8, t2) + self.it_kv("V", 0, 8, t2)
                   + self.it_w(RW2, SW2, "s14", 9216, 0, self.n_early_gu, t2)
                   + self.it_w(RW2, SW2, "s14", 9216, self.n_early_gu, 9, self.thr_post))
        nk = 8 - self.kpre
        S.run(min(nk, t2 + 1))
        self.acc_addr("N")
        e(f"s_add_u32 s15, {sR}, 2")
        e(f"s_cmp_ge_u32 s15, 18")
        e(f"s_cselect_b32 s8, 18, 0")
        e(f"s_sub_u32 s15, s15, s8")
        e(f"s_cmp_ge_u32 {sW}, {4 if self.pair else 99}")
        e(f"s_cselect_b32 s9, s15, {sR}")
        e(f"s_cmp_ge_u32 s9, 9")
        e("s_cselect_b32 s60, s30, s28")
        e("s_cselect_b32 s61, s31, s29")
        e("s_cselect_b32 s8, 9, 0")
        e(f"s_mov_b32 s62, {576*9216}")
        e(f"s_sub_u32 s8, s9, s8")
        e(f"s_lshl_b32 s8, s8, 7")
        e(f"s_mul_i32 s14, {sX}, 1152")
        e(f"s_add_u32 s14, s14, s8")
        e(f"s_mul_i32 s8, {sW}, {72*9216}")
        e(f"s_add_u32 s14, s14, s8")
        self.voff9(9216)
        self.attention(S, nk + self.qpos_gu, t2, nk + 8 + self.n_early_gu)
        if self.gate_n:
            e.c("hold the FFN weight stream until most attention partials of this slot are out")
            gd, gt = self.lab("gd"), self.lab("gt")
            e(f"s_cmp_lg_u32 {sW}, 0")
            e(f"s_cbranch_scc1 {gd}")
            e(f"s_mul_i32 s8, {sX}, {32*1152}")
            e(f"s_add_u32 s8, s8, {P4}")
            e(f"v_mul_u32_u24 v26, 1152, {vL}")
            e(f"s_mov_b32 {sSP}, 0")
            e("s_mov_b32 exec_hi, 0")
            e.label(gt)
            e(f"s_add_u32 {sSP}, {sSP}, 1")
            e(f"s_cmp_gt_u32 {sSP}, {SPIN}")
            e("s_cbranch_scc1 L_end")
            e(f"buffer_load_dword v32, v26, {WS}, s8 offen offset:1024 sc1")
            e("s_waitcnt vmcnt(0)")
            e(f"v_and_b32 v32, {sM10}, v32")
            e(f"v_cmp_eq_u32 vcc, v32, {v(TG[0])}")
            e("s_bcnt1_i32_b64 s9, vcc")
            e(f"s_cmp_lt_u32 s9, {self.gate_n}")
            e(f"s_cbranch_scc1 {gt}")
            e("s_mov_b64 exec, -1")
            e.label(gd)
        e("s_barrier")
        self.stamp(18)
        S.run(99)
        e.c("---- gather u = x1*(1+cb), stats, finish the LayerNorm ----")
        e(f"s_mul_i32 s8, {sX}, 2304")
        e(f"s_mul_i32 s9, {sW}, 288")
        e(f"s_add_u32 s8, s8, s9")
        e(f"s_add_u32 s8, s8, {P9}")
        e(f"s_mul_i32 s10, {sX}, {3*2304}")
        e(f"s_add_u32 s10, s10, {P11}")
        e(f"s_add_u32 s11, s10, 4608")
        e(f"s_add_u32 s10, s10, s9")
        e(f"v_lshrrev_b32 v16, 3, {vL}")
        e(f"v_lshlrev_b32 v27, 2, v16")
        e(f"v_and_b32 v16, 15, {vL}")
        e(f"v_min_u32 v17, 8, v16")
        e(f"v_lshlrev_b32 v26, {4 if self.cstat else 7}, v17")
        e(f"v_cmp_gt_u32 vcc, 9, v16")
        e(f"v_mov_b32 v16, 0x3ae38e39")
        e(f"v_cndmask_b32 v28, 0, v16, vcc")
        off_p7("s12")
        e(f"s_sub_u32 s13, s15, {sR}")
        e(f"s_lshl_b32 s13, s13, 9")
        e(f"s_add_u32 s13, s13, s12")
        e(f"s_add_u32 s13, s13, 4")
        e(f"s_cmp_eq_u32 {sW}, 1")
        e(f"s_cselect_b32 s12, s13, s12")
        e(f"s_cselect_b32 s13, {4*ACCS}, 0")
        e(f"v_add_u32 v25, s13, {vAR}")
        e(f"v_lshlrev_b32 v24, 3, {vL}")

        def issue11():
            e(f"buffer_load_dword v58, {vL4}, {WS}, s10 offen sc1")
            e(f"buffer_load_dword v59, v27, {WS}, s10 offen offset:256 sc1")
            e(f"buffer_load_dword v60, {vL4}, {WS}, s10 offen offset:2304 sc1")
            e(f"buffer_load_dword v61, v27, {WS}, s10 offen offset:2560 sc1")

        def issue9():
            e(f"buffer_load_dwordx4 v[44:47], v26, {WS}, s11 offen sc1")
            e(f"buffer_load_dword v62, {vL4}, {WS}, s8 offen sc1")
            e(f"buffer_load_dword v63, v27, {WS}, s8 offen offset:256 sc1")
        c11 = [("v58", vTq), ("v59", vTg), ("v60", vTq), ("v61", vTg)]
        c9 = self.g4(44) + [("v62", vTq), ("v63", vTg)]
        self.poll(issue11, c11)
        self.poll(issue9, c9)
        self.stamp(10)
        e("v_add_f32 v44, v44, v45")
        e("v_add_f32 v46, v46, v47")
        e("v_mul_f32 v44, v44, v28")
        e("v_mul_f32 v46, v46, v28")
        for r in (8, 4, 2, 1):
            e(f"v_add_f32_dpp v44, v44, v44 row_ror:{r} {DPF}")
            e(f"v_add_f32_dpp v46, v46, v46 row_ror:{r} {DPF}")
        e("v_fma_f32 v46, -v44, v44, v46")
        e("v_fma_f32 v62, -v44, v58, v62")
        e("v_max_f32 v46, 0, v46")
        e("v_fma_f32 v63, -v44, v59, v63")
        e("v_add_f32 v46, 0x3727c5ac, v46")
        e("v_rsq_f32 v46, v46")
        e("v_fma_f32 v62, v62, v46, v60")
        e("v_fma_f32 v63, v63, v46, v61")
        e("v_cvt_pk_bf16_f32 v47, v62, v62")
        self.swz(48, "v47")
        e("v_cvt_pk_bf16_f32 v56, v63, v63")
        self.core(48, RW2, 9, 40, 32, lgkm=8, order=[8, 0, 1, 2, 3, 4, 5, 6, 7])
        self.acc_add(40, L_ACC1)
        if not self.pair:
            e(f"s_mul_i32 s12, {sX}, 36")
            e(f"s_add_u32 s12, s12, {sR}")
            e(f"s_lshl_b32 s12, s12, 8")
            e(f"s_add_u32 s12, s12, {P7}")
            self.acc_publish(L_ACC1, "s12", True, True)
            self.stamp(11)
            e("s_branch L_fin")
            return
        e(f"s_cmp_gt_u32 {sW}, 1")
        e(f"s_cbranch_scc1 L_fin")
        e(f"ds_read_b128 v[16:19], v25 offset:{L_ACC1}")
        e("s_waitcnt lgkmcnt(0)")
        self.reduce4(16)
        e(f"v_bfi_b32 v16, {sM10}, {vTq}, v16")
        self.lstore(f"buffer_store_dword v16, v24, {WS}, s12 offen")
        self.stamp(11)
        e("s_branch L_fin")


def generate(fn, **kw):
    g = Gen(**kw)
    e = g.build()
    body = e.text()
    nv = max(e.maxv + 1, 136)
    txt = wrap(body, 256, 512, lds=LDS_BYTES, vgpr=nv, sgpr=max(e.maxs + 1, 96))
    txt = txt.replace("\ns_endpgm\n", "\n    s_endpgm\nL_code_end:\n")
    open(fn, "w").write(txt)
    return e


if __name__ == "__main__":
    import itertools
    names = []
    for spec in sys.argv[1:]:
        nm, _, kv = spec.partition(":")
        kw = {}
        for p in kv.split(","):
            if p:
                k, _, val = p.partition("=")
                kw[k] = eval(val)
        e = generate(nm, **kw)
        names.append(nm)
    print(" ".join(names))
```

```python
import sys
from emit import Em
from asmgen import wrap, NAME

P1 = 0x1D0000
P2 = 0x10000
P3 = 0x60000
P4 = 0x70000
P5 = 0xC0000
P6 = 0x1C0000
P7 = 0x180000
P8 = 0xE0000
P9 = 0xE8000
P10 = 0xEE000
P11 = 0x1A0000
P4S = 0xFA000
CEN = 0xF8000
STAMP = 0x100000
WS_BYTES = 0x200000
XS = 224

L_ACC1 = 0x0000
L_ACC2 = 0x0900
L_LNS = 0x1200
L_MX = 0x1280
L_H32 = 0x1300
L_ACCO = 0x1400
L_Q = 0x3800
LDS_BYTES = 0x3A00
ACCS = 272

sX, sJ, sW, sR, sSP = "s3", "s4", "s5", "s6", "s7"
WS, SK, SV, SW1, SW2, SS1, SS2 = "s[44:47]", "s[48:51]", "s[52:55]", "s[56:59]", "s[60:63]", "s[64:67]", "s[68:71]"
sM10, sHI, sLOC, sSEL, sL2E, sKV = "s72", "s73", "s74", "s75", "s76", "s77"
m36, mJ8, mT2, mODD, mHI = "s[82:83]", "s[84:85]", "s[86:87]", "s[88:89]", "s[90:91]"
vL, vL16 = "v0", "v1"
MK = [2, 3, 4, 5]
TG = [6, 7, 8, 9]
vTa0, vTa1 = "v10", "v11"
vWA, vWB = "v12", "v13"
vKO, vVO = "v14", "v210"
vST = "v15"
RK, RV, RW1, RW2 = 64, 96, 128, 164
vTb0, vTb1, vTs, vBO, vAA = "v200", "v201", "v202", "v203", "v204"
vDUM = "v205"
vE0, vE1 = 206, 207
vAR, vCO = "v208", "v209"
PS = [212, 213, 214, 215]
vA0, vA1, vL4 = "v204", "v211", "v234"
vTq, vTg = "v216", "v217"
KVO = ["s18", "s19", "s20", "s21", "s40", "s41", "s94", "s95"]
SPIN = 400000
DPF = "row_mask:0xf bank_mask:0xf"


def v(n, k=1):
    return f"v{n}" if k == 1 else f"v[{n}:{n+k-1}]"


class Stream:
    def __init__(self, e, items):
        self.e, self.items, self.pos, self.log = e, items, 0, []

    def step(self, wait=True, stop=None):
        if self.pos >= len(self.items) or (stop is not None and self.pos >= stop):
            return False
        name, fn, thr = self.items[self.pos]
        bulk = [i for i, (n, b) in enumerate(self.log) if b]
        if wait and thr is not None and len(bulk) > thr:
            self.e(f"s_waitcnt vmcnt({len(self.log) - 1 - bulk[-(thr + 1)]})")
        fn()
        self.log.append((name, True))
        self.pos += 1
        return True

    def run(self, stop):
        while self.step(stop=stop):
            pass

    def extra(self, name):
        self.log.append((name, False))

    def issued(self, name):
        return any(n == name for n, _ in self.log)

    def wait_for(self, name):
        idx = max(i for i, (n, _) in enumerate(self.log) if n == name)
        self.e(f"s_waitcnt vmcnt({len(self.log) - 1 - idx})")

    def index(self, name):
        return [n for n, _, _ in self.items].index(name)


class Gen:
    def __init__(self, stamps=False, force=None, thr=3, thr_gu=4, n_early_gu=2, n_early_wd=0, prefetch=True,
                 pretouch=True, kpre=4, thr_gu2=4, kvf='nt', wf='nt', qpos=2, qpos_gu=0, resume=False, mr_pre=3, late_first=True, thr_mr=3, thr_post=None, p1wait=False, thr_w=1, wd_pre=6, qpos_wd=3, gate_n=0, mod_on_gu=False, pipe4=False, pipe79=False, thr_dn=None, l2pf=0, kvmap='contig', pair=False, rotc=3, slp=0, k0=2, pfw=1, kdelay=False, tlbw=False, hold=0, holdg=False, rm=45, joint=False, dn_late=False, merge=False, ad_n=0, ad_steps=2, ad_per=2, cskip=True, estat=True, nobsum=True, slowpf=0, cstat=True, p1k=None, qlx=0, pre1=0, vburst=True, wb=2):
        self.e = Em()
        self.stamps = stamps
        self.force = force
        self.thr = thr
        self.thr_gu = thr_gu
        self.n_early_gu = n_early_gu
        self.n_early_wd = n_early_wd
        self.prefetch = prefetch
        self.pretouch = pretouch
        self.kpre = kpre
        self.kvf = kvf
        self.qpos = qpos
        self.pv_steps = 0
        self.thr_w = thr_w
        self.pipe4 = pipe4
        self.kvmap = 'rot'
        self.k0 = k0
        self.pfw = pfw
        self.hold = hold
        self.rm = rm
        self.wb = wb
        self.vburst = vburst
        self.qlx = qlx
        self.pre1 = pre1
        self.p1k = p1k
        self.cstat = cstat
        self.slowpf = slowpf
        self.estat = estat
        self.nobsum = nobsum
        self.cskip = cskip
        self.ad_n, self.ad_steps, self.ad_per = ad_n, ad_steps, ad_per
        self.merge = merge
        self.dn_late = dn_late
        self.joint = joint
        self.holdg = holdg
        self.tlbw = tlbw
        self.kdelay = kdelay
        self.rotc = rotc
        self.slp = slp
        self.pair = pair
        self.l2pf = l2pf
        self.pipe79 = pipe79
        self.thr_dn = thr_dn
        self.gate_n = gate_n
        self.mod_on_gu = mod_on_gu
        self.qpos_wd = qpos_wd
        self.wd_pre = wd_pre
        self.p1wait = p1wait
        self.thr_post = thr_post
        self.qpos_gu = qpos_gu
        self.resume = resume
        self.mr_pre = mr_pre
        self.late_first = late_first
        self.thr_mr = thr if thr_mr is None else thr_mr
        self.wf = wf
        self.thr_gu2 = thr_gu2
        self.uid = 0

    def lab(self, p):
        self.uid += 1
        return f"L_{p}{self.uid}"

    def stamp(self, k):
        if self.stamps:
            e = self.e
            e("s_memrealtime s[92:93]")
            e("s_waitcnt lgkmcnt(0)")
            e(f"v_writelane_b32 {vST}, s92, {k}")

    def srd(self, srd, lo, hi, nbytes):
        b = int(srd[2:].split(":")[0])
        e = self.e
        e(f"s_mov_b32 s{b}, {lo}")
        e(f"s_mov_b32 s{b+1}, {hi}")
        e(f"s_mov_b32 s{b+2}, {nbytes}")
        e(f"s_mov_b32 s{b+3}, 0x20000")

    def lstore(self, text):
        e = self.e
        if self.force is not None:
            e(f"{text} {self.force}")
            return
        a, b = self.lab("ls"), self.lab("le")
        e(f"s_cmp_eq_u32 {sLOC}, 0")
        e(f"s_cbranch_scc1 {a}")
        e(text)
        e(f"s_branch {b}")
        e.label(a)
        e(f"{text} sc1")
        e.label(b)

    def lstore_multi(self, lines):
        e = self.e

        def emit(flag):
            for t in lines:
                e(f"{t} {flag}" if t.startswith("buffer_store") else t)
        if self.force is not None:
            emit(self.force)
            return
        a, b = self.lab("ls"), self.lab("le")
        e(f"s_cmp_eq_u32 {sLOC}, 0")
        e(f"s_cbranch_scc1 {a}")
        emit("")
        e(f"s_branch {b}")
        e.label(a)
        emit("sc1")
        e.label(b)

    def voff9(self, stride):
        e = self.e
        e(f"v_lshrrev_b32 v16, 3, {vL}")
        e(f"v_and_b32 v17, 0x70, {vL16}")
        e(f"v_mul_u32_u24 v16, {stride}, v16")
        e(f"v_lshl_add_u32 {vWA}, v16, 3, v17")
        e(f"v_add_u32 v16, {56*stride}, v16")
        e(f"v_add_u32 {vWB}, v16, v17")

    def wloads(self, base, srd, soff, step, t0, t1, thr=None):
        e = self.e
        for t in range(t0, t1):
            vo = vWB if t == 8 else vWA
            e(f"buffer_load_dwordx4 {v(base+4*t,4)}, {vo}, {srd}, {soff} offen {self.wf}")
            e(f"s_add_u32 {soff}, {soff}, {step}")
            if thr is not None:
                e(f"s_waitcnt vmcnt({thr})")

    def kvloads(self, base, vo, srd, t0, t1, thr=None):
        e = self.e
        for t in range(t0, t1):
            if self.kvmap == "rot2":
                e(f"buffer_load_dwordx4 {v(base+4*t,4)}, {vo}, {srd}, {KVO[t]} offen {self.kvf}")
                if thr is not None:
                    e(f"s_waitcnt vmcnt({thr})")
                continue
            if self.kvmap == "contig":
                e(f"s_mov_b32 {sKV}, {t*8192}")
            else:
                e(f"s_add_u32 {sKV}, s94, {t*(self.rm*0x2000 if self.rm else 0x20000)}")
                e(f"s_and_b32 {sKV}, {sKV}, 0xfffff")
            e(f"buffer_load_dwordx4 {v(base+4*t,4)}, {vo}, {srd}, {sKV} offen {self.kvf}")
            if thr is not None:
                e(f"s_waitcnt vmcnt({thr})")

    def stream(self, items):
        S = Stream(self.e, self.it_kv("K", 0, self.k0, None) + items)
        S.pos = self.k0
        S.log = [(f"K{t}", True) for t in range(self.k0)]
        return S

    def it_kv(self, kind, t0, t1, thr):
        base, vo, srd = (RK, vKO, SK) if kind == "K" else (RV, vVO, SV)
        return [(f"{kind}{t}", (lambda t=t: self.kvloads(base, vo, srd, t, t + 1)), thr) for t in range(t0, t1)]

    def it_w(self, base, srd, soff, step, t0, t1, thr):
        return [(f"W{t}", (lambda t=t: self.wloads(base, srd, soff, step, t, t + 1)), thr) for t in range(t0, t1)]

    def rb2(self, a, b, t):
        e = self.e
        e(f"v_cvt_pk_bf16_f32 {t}, {a}, {b}")
        e(f"v_lshlrev_b32 {a}, 16, {t}")
        e(f"v_and_b32 {b}, {sHI}, {t}")

    def rb1(self, a):
        e = self.e
        e(f"v_cvt_pk_bf16_f32 {a}, {a}, {a}")
        e(f"v_and_b32 {a}, {sHI}, {a}")

    def swz(self, X, src, n=8):
        for t in range(n):
            self.e(f"ds_swizzle_b32 {v(X+t)}, {src} offset:{(t << 5) | 0x18}")

    def core(self, X, W, T, D, A, vm_after=None, lgkm=None, perm=False, order=None):
        e = self.e
        seq = list(order or range(T))

        def prep(n):
            t = seq[n]
            a = A + 4 * (n & 1)
            if lgkm is not None and t < lgkm:
                e(f"s_waitcnt lgkmcnt({lgkm-1-t})")
            for k in range(4):
                if perm:
                    e(f"v_perm_b32 {v(a+k)}, {v(X+t)}, {v(X+t)}, {v(PS[k])}")
                else:
                    e(f"v_and_b32 {v(a+k)}, {v(X+t)}, {v(MK[k])}")
        prep(0)
        for n, t in enumerate(seq):
            a = A + 4 * (n & 1)
            if n == 0 and len(seq) > 1:
                prep(1)
            if vm_after is not None:
                e(f"s_waitcnt vmcnt({T-1-t+vm_after})")
            c = "0" if n == 0 else v(D, 4)
            e(f"v_mfma_f32_16x16x32_bf16 {v(D,4)}, {v(a,4)}, {v(W+4*t,4)}, {c}")
            if n + 2 < len(seq):
                prep(n + 2)

    def bsum(self, D):
        e = self.e
        e(f"v_permlane32_swap_b32 {v(D)}, {v(D+2)}")
        e(f"v_permlane32_swap_b32 {v(D+1)}, {v(D+3)}")
        e(f"v_add_f32_dpp {v(D)}, {v(D+2)}, {v(D)} row_ror:8 {DPF}")
        e(f"v_add_f32_dpp {v(D+1)}, {v(D+3)}, {v(D+1)} row_ror:8 {DPF}")

    def bsum_store(self, D, soff, local, lin=False):
        e = self.e
        self.bsum(D)
        e(f"v_add_u32 {v(D)}, 0x200, {v(D)}")
        e(f"v_add_u32 {v(D+1)}, 0x200, {v(D+1)}")
        e(f"v_bfi_b32 {v(D)}, {sM10}, {vTa0 if lin else vTb0}, {v(D)}")
        e(f"v_bfi_b32 {v(D+1)}, {sM10}, {vTa1 if lin else vTb1}, {v(D+1)}")
        e(f"s_mov_b64 exec, {mJ8}")
        t = f"buffer_store_dwordx2 {v(D,2)}, {lin or vBO}, {WS}, {soff} offen"
        if local:
            self.lstore(t)
        else:
            e(t + " sc1")
        e("s_mov_b64 exec, -1")

    def acc_addr(self, mode):
        e = self.e
        e(f"s_mul_i32 s8, {sW}, {ACCS}")
        if mode == "N":
            e(f"v_and_b32 v16, 1, {vL}")
            e(f"v_lshlrev_b32 v16, 5, v16")
            e(f"v_and_b32 v17, 16, {vL}")
            e(f"v_lshrrev_b32 v18, 5, {vL}")
            e(f"v_lshlrev_b32 v18, 3, v18")
            e(f"v_add3_u32 v16, v16, v17, v18")
            e(f"v_bfe_u32 v17, {vL}, 1, 2")
            e(f"v_add_lshl_u32 v16, v16, v17, 2")
            e(f"v_add_u32 {vA0}, s8, v16")
            e(f"v_add_u32 {vA1}, 16, {vA0}")
        else:
            e(f"v_and_b32 v16, 32, {vL}")
            e(f"v_and_b32 v17, 7, {vL}")
            e(f"v_lshl_add_u32 v16, v17, 1, v16")
            e(f"v_bfe_u32 v17, {vL}, 4, 1")
            e(f"v_add_lshl_u32 v16, v16, v17, 2")
            e(f"v_add_u32 {vA0}, s8, v16")
            e(f"v_add_u32 {vA1}, 64, {vA0}")

    def acc_add(self, D, acc):
        e = self.e
        self.bsum(D)
        e(f"s_mov_b64 exec, {mJ8}")
        e(f"ds_write_b32 {vA0}, {v(D)} offset:{acc}")
        e(f"ds_write_b32 {vA1}, {v(D+1)} offset:{acc}")
        e("s_mov_b64 exec, -1")
        e("s_waitcnt lgkmcnt(0)")
        e("s_barrier")

    def acc_publish(self, acc, soff, local, round_bf16, D=16):
        e = self.e
        skip = self.lab("ap")
        e(f"s_cmp_lg_u32 {sW}, 0")
        e(f"s_cbranch_scc1 {skip}")
        e(f"ds_read_b128 {v(D,4)}, {vAR} offset:{acc}")
        e(f"ds_read_b128 {v(D+4,4)}, {vAR} offset:{acc+4*ACCS}")
        e("s_waitcnt lgkmcnt(0)")
        self.sumrows([D])
        if round_bf16:
            e(f"v_cvt_pk_bf16_f32 {v(D)}, {v(D)}, {v(D)}")
        e(f"v_bfi_b32 {v(D)}, {sM10}, {vTq}, {v(D)}")
        t = f"buffer_store_dword {v(D)}, {vL4}, {WS}, {soff} offen"
        if local:
            self.lstore(t)
        else:
            e(t + " sc1")
        e.label(skip)

    def poll(self, issue, lst, clean=True):
        e = self.e
        top = self.lab("poll")
        e(f"s_mov_b32 {sSP}, 0")
        e.label(top)
        issue()
        e(f"s_add_u32 {sSP}, {sSP}, 1")
        e(f"s_cmp_gt_u32 {sSP}, {SPIN}")
        e("s_cbranch_scc1 L_end")
        e("s_waitcnt vmcnt(0)")
        self.tagcheck(lst, "v21", clean)
        e("v_cmp_ne_u32 vcc, 0, v21")
        e(f"s_cbranch_vccnz {top}")

    def tagcheck(self, lst, dst, clean=True):
        e = self.e
        tmp, n = [], 0
        if clean:
            for r, t in lst:
                e(f"v_xor_b32 {r}, {r}, {t}")
            src = [r for r, _ in lst]
            while len(src) > 2:
                d = f"v{236+n}"
                n = (n + 1) % 8
                e(f"v_or3_b32 {d}, {src[0]}, {src[1]}, {src[2]}")
                src = src[3:] + [d]
            tmp = src
        else:
            by, rest = {}, []
            for r, t in lst:
                by.setdefault(t, []).append(r)
            for t, rs in by.items():
                while len(rs) >= 2:
                    a, b = rs.pop(), rs.pop()
                    d = f"v{236+n}"
                    n += 1
                    e(f"v_bitop3_b32 {d}, {a}, {b}, {t} bitop3:0x7e")
                    tmp.append(d)
                rest += [(r, t) for r in rs]
            if not tmp:
                r, t = rest.pop()
                e(f"v_xor_b32 v236, {r}, {t}")
                tmp = ["v236"]
            for k, (r, t) in enumerate(rest):
                d = tmp[k % len(tmp)]
                e(f"v_bitop3_b32 {d}, {r}, {t}, {d} bitop3:0xbe")
            while len(tmp) > 2:
                e(f"v_or3_b32 {tmp[0]}, {tmp[0]}, {tmp[1]}, {tmp[2]}")
                tmp = tmp[3:] + tmp[:1]
        if len(tmp) == 2:
            e(f"v_bitop3_b32 {dst}, {tmp[0]}, {tmp[1]}, {sM10} bitop3:0xa8")
        else:
            e(f"v_and_b32 {dst}, {sM10}, {tmp[0]}")

    def mpoll(self, loads, until=None, init=True):
        e = self.e
        regs = ["s[96:97]", "s[98:99]", "s[100:101]", "s[78:79]", "s[80:81]"]
        top = self.lab("mp")
        done = self.lab("md")
        if init:
            for m in range(len(loads)):
                e(f"s_mov_b64 {regs[m]}, -1")
        else:
            e(f"s_or_b64 vcc, {regs[0]}, {regs[1]}")
            for m in range(2, len(loads)):
                e(f"s_or_b64 vcc, vcc, {regs[m]}")
            e(f"s_cbranch_scc0 {done}")
        e(f"s_mov_b32 {sSP}, 0")
        e.label(top)
        for m, (txt, _) in enumerate(loads):
            sk = self.lab("ms")
            e(f"s_mov_b64 exec, {regs[m]}")
            e(f"s_cbranch_execz {sk}")
            e(txt)
            e.label(sk)
        e(f"s_add_u32 {sSP}, {sSP}, 1")
        e(f"s_cmp_gt_u32 {sSP}, {SPIN}")
        e("s_cbranch_scc1 L_end")
        e("s_waitcnt vmcnt(0)")
        for m, (_, r) in enumerate(loads):
            sk = self.lab("mc")
            e(f"s_mov_b64 exec, {regs[m]}")
            if self.cskip:
                e(f"s_cbranch_execz {sk}")
            self.tagcheck(self.g4(r), "v21")
            e(f"v_cmp_ne_u32 {regs[m]}, 0, v21")
            if self.cskip:
                e.label(sk)
        if until is not None:
            e(f"s_cmp_lg_u64 {regs[until]}, 0")
        else:
            e(f"s_or_b64 vcc, {regs[0]}, {regs[1]}")
            for m in range(2, len(loads)):
                e(f"s_or_b64 vcc, vcc, {regs[m]}")
        e("s_mov_b64 exec, -1")
        e(f"s_cbranch_scc1 {top}")
        e.label(done)

    def g4(self, base):
        return [(v(base + r), v(TG[r])) for r in range(4)]

    def reduce4(self, r):
        e = self.e
        e(f"v_permlane32_swap_b32 {v(r)}, {v(r+2)}")
        e(f"v_permlane32_swap_b32 {v(r+1)}, {v(r+3)}")
        e(f"v_add_f32 {v(r)}, {v(r)}, {v(r+2)}")
        e(f"v_add_f32 {v(r+1)}, {v(r+1)}, {v(r+3)}")
        e(f"v_permlane16_swap_b32 {v(r)}, {v(r+1)}")
        e(f"v_add_f32 {v(r)}, {v(r)}, {v(r+1)}")

    def c_loads(self, soff):
        e = self.e
        e(f"v_lshlrev_b32 v18, 1, {vL}")
        e(f"v_lshrrev_b32 v19, 3, {vL}")
        e(f"v_lshlrev_b32 v19, 1, v19")
        e(f"buffer_load_ushort v30, v18, {SS1}, {soff} offen")
        e(f"buffer_load_ushort v31, v19, {SS1}, {soff} offen offset:128")

    def div(self, dst, n, d, t1, t2):
        e = self.e
        e(f"v_min_f32 {d}, 0x7e800000, {d}")
        e(f"v_rcp_f32 {t1}, {d}")
        e(f"v_mul_f32 {t2}, {n}, {t1}")
        e(f"v_fma_f32 {d}, -{d}, {t2}, {n}")
        e(f"v_fma_f32 {dst}, {d}, {t1}, {t2}")

    def silu1(self, a):
        e = self.e
        e(f"v_lshlrev_b32 {a}, 16, {a}")
        e(f"v_mul_f32 v33, 0xbfb8aa3b, {a}")
        e("v_exp_f32 v33, v33")
        e("v_add_f32 v33, 1.0, v33")
        self.div(a, a, "v33", "v34", "v35")
        e(f"v_cvt_pk_bf16_f32 {a}, {a}, {a}")

    def silu2(self, X):
        e = self.e
        e(f"v_lshlrev_b32 v30, 16, v30")
        e(f"v_lshlrev_b32 v31, 16, v31")
        e(f"v_mul_f32 v33, 0xbfb8aa3b, v30")
        e(f"v_mul_f32 v34, 0xbfb8aa3b, v31")
        e("v_exp_f32 v33, v33")
        e("v_exp_f32 v34, v34")
        e("v_add_f32 v33, 1.0, v33")
        e("v_add_f32 v34, 1.0, v34")
        self.div("v30", "v30", "v33", "v35", "v36")
        self.div("v31", "v31", "v34", "v35", "v36")
        e("v_cvt_pk_bf16_f32 v30, v30, v30")
        e(f"v_cvt_pk_bf16_f32 {v(X+8)}, v31, v31")
        self.swz(X, "v30")

    def consts(self, perm=False):
        e = self.e
        e.c("constants")
        e(f"s_mov_b32 {sSEL}, 0x07060302")
        e(f"s_mov_b32 {sL2E}, 0x3fb8aa3b")
        e("s_mov_b32 s82, -1"); e("s_mov_b32 s83, 15")
        e("s_mov_b32 s84, 0x00ff00ff"); e("s_mov_b32 s85, 0x00ff00ff")
        e("s_mov_b32 s86, 0x0f0f0f0f"); e("s_mov_b32 s87, 0x0f0f0f0f")
        e("s_mov_b32 s88, 0xaaaaaaaa"); e("s_mov_b32 s89, 0xaaaaaaaa")
        e("s_mov_b32 s90, 0"); e("s_mov_b32 s91, -1")
        e(f"v_mov_b32 v16, 0xffff")
        e(f"v_mov_b32 v17, {sHI}")
        e(f"v_cndmask_b32 v16, v16, v17, {mODD}")
        e(f"v_bfe_u32 v17, {vL}, 1, 2")
        if perm:
            e(f"v_mov_b32 v18, 0x0c0c0302")
            e(f"v_mov_b32 v19, 0x03020c0c")
            e(f"v_cndmask_b32 v18, v18, v19, {mODD}")
            e(f"v_mov_b32 v19, 0x0c0c0c0c")
        for k in range(4):
            e(f"v_cmp_eq_u32 vcc, {k}, v17")
            e(f"v_cndmask_b32 {v(MK[k])}, 0, v16, vcc")
            if perm:
                e(f"v_cndmask_b32 {v(PS[k])}, v19, v18, vcc")
        e(f"v_and_b32 v16, 15, {vL}")
        e(f"v_lshlrev_b32 v16, 5, v16")
        e(f"v_and_b32 v17, 16, {vL}")
        e(f"v_lshrrev_b32 v18, 5, {vL}")
        e(f"v_lshlrev_b32 v18, 3, v18")
        e(f"v_add3_u32 {vBO}, v16, v17, v18")
        e(f"v_lshlrev_b32 {vL4}, 2, {vL}")
        e(f"v_lshrrev_b32 v16, 4, {vL}")
        e(f"v_mul_u32_u24 v17, {ACCS}, v16")
        e(f"v_and_b32 v18, 0xf0, {vL16}")
        e(f"v_add_u32 {vAR}, v17, v18")
        e(f"v_lshl_add_u32 {vCO}, v16, 2, v18")
        self.acc_addr("N")

    def tags(self, touch=()):
        e = self.e
        e.c("tags from epoch+1")
        e("s_waitcnt lgkmcnt(0)")
        self.stamp(15)
        e("s_add_u32 s26, s26, 0x40100401")
        e("s_addc_u32 s27, s27, 0")
        e(f"v_mov_b32 {v(vE0)}, s26")
        e(f"v_mov_b32 {v(vE1)}, s27")
        e(f"v_and_b32 {v(TG[0])}, {sM10}, {v(vE0)}")
        e(f"v_bfe_u32 {v(TG[1])}, {v(vE0)}, 10, 10")
        e(f"v_bfe_u32 {v(TG[2])}, {v(vE0)}, 20, 10")
        e(f"v_alignbit_b32 {v(TG[3])}, {v(vE1)}, {v(vE0)}, 30")
        e(f"v_and_b32 {v(TG[3])}, {sM10}, {v(TG[3])}")
        e(f"v_cndmask_b32 {vTa0}, {v(TG[0])}, {v(TG[2])}, {mODD}")
        e(f"v_cndmask_b32 {vTa1}, {v(TG[1])}, {v(TG[3])}, {mODD}")
        e(f"v_cndmask_b32 {vTb0}, {v(TG[0])}, {v(TG[2])}, {mHI}")
        e(f"v_cndmask_b32 {vTb1}, {v(TG[1])}, {v(TG[3])}, {mHI}")
        e(f"v_and_b32 v16, 16, {vL}")
        e(f"v_cmp_ne_u32 vcc, 0, v16")
        e(f"v_cndmask_b32 {vTs}, {vTb0}, {vTb1}, vcc")
        e(f"v_and_b32 v16, 3, {vL}")
        e(f"v_mul_u32_u24 v16, 10, v16")
        e(f"v_lshrrev_b64 v[18:19], v16, {v(vE0,2)}")
        e(f"v_and_b32 {vTq}, {sM10}, v18")
        e(f"v_bfe_u32 v16, {vL}, 3, 2")
        e(f"v_mul_u32_u24 v16, 10, v16")
        e(f"v_lshrrev_b64 v[18:19], v16, {v(vE0,2)}")
        e(f"v_and_b32 {vTg}, {sM10}, v18")
        if self.force is None:
            sk = self.lab("cen")
            e(f"s_cmp_lg_u32 {sW}, 2")
            e(f"s_cbranch_scc1 {sk}")
            e("s_getreg_b32 s8, hwreg(HW_REG_XCC_ID)")
            e("s_and_b32 s8, s8, 0xff")
            e("s_lshl_b32 s8, s8, 16")
            e(f"v_or_b32 v16, s8, {vTq}")
            e(f"s_lshl_b32 s8, {sX}, 5")
            e(f"s_add_u32 s8, s8, {sJ}")
            e(f"s_lshl_b32 s8, s8, 4")
            e(f"s_add_u32 s8, s8, {CEN}")
            e(f"v_lshlrev_b32 v17, 2, {vL}")
            e("s_mov_b64 exec, 15")
            e(f"buffer_store_dword v16, v17, {WS}, s8 offen")
            e("s_mov_b64 exec, -1")
            e.label(sk)

    def touch(self, items):
        if not self.pretouch:
            return
        e = self.e
        sk = self.lab("tch")
        e(f"s_cmp_lg_u32 {sW}, 3")
        e(f"s_cbranch_scc1 {sk}")
        e(f"v_lshlrev_b32 v17, 7, {vL}")
        for fn, n in items:
            fn("s8")
            e(f"s_mov_b32 exec_lo, {min((1 << n) - 1, 0xffffffff)}")
            e(f"s_mov_b32 exec_hi, {((1 << n) - 1) >> 32}")
            e(f"buffer_load_dword {vDUM}, v17, {WS}, s8 offen sc1")
        e("s_mov_b64 exec, -1")
        e.label(sk)

    def census_load(self, r):
        e = self.e
        e(f"s_lshl_b32 s10, {sX}, 9")
        e(f"s_add_u32 s10, s10, {CEN}")
        e(f"v_and_b32 v16, 0x1f0, {vL16}")
        e(f"buffer_load_dwordx4 {v(r,4)}, v16, {WS}, s10 offen sc1")

    def sumrows(self, regs):
        e = self.e
        for r in regs:
            e(f"v_pk_add_f32 {v(r,2)}, {v(r,2)}, {v(r+4,2)}")
            e(f"v_pk_add_f32 {v(r+2,2)}, {v(r+2,2)}, {v(r+6,2)}")
        for r in regs:
            e(f"v_permlane32_swap_b32 {v(r)}, {v(r+2)}")
            e(f"v_permlane32_swap_b32 {v(r+1)}, {v(r+3)}")
        for r in regs:
            e(f"v_pk_add_f32 {v(r,2)}, {v(r,2)}, {v(r+2,2)}")
        for r in regs:
            e(f"v_permlane16_swap_b32 {v(r)}, {v(r+1)}")
        for r in regs:
            e(f"v_add_f32 {v(r)}, {v(r)}, {v(r+1)}")

    def census_eval(self, r, dst):
        e = self.e
        e(f"v_readfirstlane_b32 s10, {v(r)}")
        e(f"v_xor_b32 v17, {v(r)}, {v(TG[0])}")
        for k in range(1, 4):
            e(f"v_bitop3_b32 v17, {v(r+k)}, {v(TG[k])}, v17 bitop3:0xbe")
        e(f"v_and_b32 v17, {sM10}, v17")
        e(f"v_xor_b32 v18, s10, {v(r)}")
        e(f"v_or_b32 v17, v17, v18")
        e(f"v_cmp_ne_u32 vcc, 0, v17")
        e("s_cmp_eq_u64 vcc, 0")
        e(f"s_cselect_b32 {dst}, 1, 0")

    def off_p4(self, d):
        e = self.e
        e(f"s_lshl_b32 {d}, {sX}, 5")
        e(f"s_add_u32 {d}, {d}, {sJ}")
        e(f"s_mul_i32 {d}, {d}, 1152")
        e(f"s_add_u32 {d}, {d}, {P4}")

    def attention(self, S, qidx, qlag, stop):
        e = self.e
        e.c("==== attention ====")
        S.step(stop=qidx)
        S.step(stop=qidx)
        e(f"s_mul_i32 s9, {sX}, {18*2048}")
        e(f"s_lshr_b32 s10, {sJ}, 4")
        e(f"s_lshl_b32 s10, s10, 10")
        e(f"s_add_u32 s9, s9, s10")
        e(f"s_lshl_b32 s10, {sW}, 7")
        e(f"s_add_u32 s9, s9, s10")
        e(f"s_add_u32 s9, s9, {P2}")
        e(f"s_add_u32 s11, s9, {8*2048}")
        e(f"s_add_u32 s64, s9, {16*2048}")
        e(f"v_lshrrev_b32 v16, 3, {vL}")
        e(f"v_lshlrev_b32 v16, 11, v16")
        e(f"v_and_b32 v17, 0x70, {vL16}")
        e(f"v_add_u32 v28, v16, v17")
        e(f"v_and_b32 v16, 3, {vL}")
        e(f"v_lshlrev_b32 v16, 4, v16")
        e(f"v_and_b32 v17, 4, {vL}")
        e(f"v_lshrrev_b32 v18, 5, {vL}")
        e(f"v_lshlrev_b32 v18, 3, v18")
        e(f"v_add3_u32 v16, v16, v17, v18")
        e(f"v_bfe_u32 v17, {vL}, 4, 1")
        e(f"s_lshr_b32 s10, {sW}, 1")
        e(f"s_lshl_b32 s10, s10, 6")
        e(f"s_and_b32 s8, {sW}, 1")
        e(f"s_lshl_b32 s8, s8, 1")
        e(f"s_add_u32 s10, s10, s8")
        e(f"v_add3_u32 v16, v16, v17, s10")
        e(f"v_lshlrev_b32 v26, 1, v16")
        e(f"v_and_b32 v16, 8, {vL}")
        e(f"v_lshlrev_b32 v29, 2, v16")
        e(f"v_lshlrev_b32 v16, 5, v16")
        e(f"v_and_b32 v18, 3, {vL}")
        e(f"v_lshlrev_b32 v18, 6, v18")
        e(f"v_and_b32 v17, 0x30, {vL}")
        e(f"v_add3_u32 v27, v16, v17, v18")

        def issue():
            for r in range(4):
                e(f"v_mov_b32 {v(44+r)}, {v(TG[r])}")
            e(f"buffer_load_dwordx4 v[32:35], v28, {WS}, s9 offen sc1")
            e(f"buffer_load_dwordx4 v[36:39], v28, {WS}, s11 offen sc1")
            e("s_mov_b64 exec, 0xffff")
            e(f"buffer_load_dwordx4 v[44:47], v28, {WS}, s64 offen sc1")
            e("s_mov_b64 exec, -1")
        e(f"s_lshl_b32 s8, {sW}, 2")
        e(f"v_add_u32 v30, s8, v29")
        e(f"v_and_b32 v16, 32, {vL}")
        e(f"v_lshlrev_b32 v16, 2, v16")
        e(f"v_and_b32 v17, 12, {vL}")
        e(f"v_lshlrev_b32 v17, 3, v17")
        e(f"v_and_b32 v18, 19, {vL}")
        e(f"v_add3_u32 v22, v16, v17, v18")
        e(f"s_mul_i32 s8, {sW}, 1152")
        e(f"s_add_u32 s10, s8, {L_ACCO}")
        e(f"v_lshl_add_u32 v22, v22, 2, s10")
        e(f"v_and_b32 v16, 8, {vL}")
        e(f"v_add_u32 v31, s8, v16")
        e(f"v_lshrrev_b32 v16, 3, {vL}")
        e(f"v_mul_u32_u24 v24, 1152, v16")
        e(f"v_and_b32 v17, 0x70, {vL16}")
        e(f"s_lshl_b32 s8, {sW}, 7")
        e(f"v_add3_u32 v23, v24, v17, s8")
        e(f"v_and_b32 v16, 0x30, {vL}")
        e(f"v_lshrrev_b32 v19, 2, v16")
        e(f"v_lshrrev_b32 v17, 2, v17")
        e(f"v_lshl_add_u32 v20, v16, 1, v17")
        self.off_p4("s12")
        e(f"s_add_u32 s13, s12, s8")
        S.run(qidx)
        cen = self.force is None
        if cen:
            e(f"s_lshl_b32 s10, {sX}, 9")
            e(f"s_add_u32 s10, s10, {CEN}")
            e(f"v_and_b32 v16, 0x1f0, {vL16}")
            e(f"buffer_load_dwordx4 v[40:43], v16, {WS}, s10 offen sc1")
            S.extra("cen")
        issue()
        S.extra("q0")
        S.extra("q1")
        S.extra("q")
        S.run(min(stop, S.index("V7") + 1, qidx + qlag + self.qlx) if self.qlx else min(stop, qidx + qlag))
        S.wait_for("q")
        if cen:
            self.census_eval(40, sLOC)
        chk = self.g4(32) + self.g4(36) + self.g4(44)
        self.tagcheck(chk, "v21")
        e(f"v_cmp_ne_u32 vcc, 0, v21")
        ok = self.lab("qok")
        e(f"s_cbranch_vccz {ok}")
        self.stamp(13)
        self.poll(issue, chk)
        e.label(ok)
        self.stamp(5)

        def vstep():
            S.step(stop=stop)
        vstep()
        e("v_pk_add_f32 v[32:33], v[32:33], v[44:45]")
        e("v_pk_add_f32 v[34:35], v[34:35], v[46:47]")
        self.sumrows([32])
        e(f"v_add_f32_dpp v32, v32, v32 row_ror:8 {DPF}")
        e("v_cvt_pk_bf16_f32 v32, v32, v32")
        e(f"ds_write_b16 v26, v32 offset:{L_Q}")
        for _ in range(self.pre1):
            S.step(stop=min(stop, S.index("V7") + 1))
        e("s_waitcnt lgkmcnt(0)")
        e("s_barrier")
        e(f"ds_read_b128 v[32:35], v27 offset:{L_Q}")
        v7 = S.index("V7") + 1
        if self.vburst:
            while S.step(wait=False, stop=stop if self.wb == 1 else min(stop, v7)):
                pass
        else:
            vstep()
        e("s_waitcnt lgkmcnt(0)")
        for k in range(4):
            e(f"v_cndmask_b32 {v(36+k)}, {v(32+k)}, 0, {mT2}")
        for k in range(4):
            e(f"v_cndmask_b32 {v(32+k)}, 0, {v(32+k)}, {mT2}")
        for u in range(4):
            e(f"v_mfma_f32_16x16x32_bf16 {v(40+4*u,4)}, {v(RK+8*u+4,4)}, v[36:39], 0")
        for u in range(4):
            e(f"v_mfma_f32_16x16x32_bf16 {v(40+4*u,4)}, {v(RK+8*u,4)}, v[32:35], {v(40+4*u,4)}")
        e(f"s_lshl_b32 s12, {sX}, 5")
        e(f"s_add_u32 s12, s12, {sJ}")
        e(f"s_lshl_b32 s12, s12, 4")
        e(f"s_add_u32 s12, s12, {P4S}")
        e(f"s_lshl_b32 s8, {sW}, 3")
        e("s_mov_b32 s10, 0x00010001"); e("s_mov_b32 s11, 0x00010001")
        for u in range(4):
            e(f"v_mov_b32_dpp {v(56+u)}, {v(40+4*u)} quad_perm:[0,0,0,0] {DPF}")
            for i in range(1, 4):
                e(f"v_add_f32_dpp {v(56+u)}, {v(40+4*u+i)}, {v(56+u)} quad_perm:[{i},{i},{i},{i}] {DPF}")
        self.rb2("v56", "v57", "v60")
        self.rb2("v58", "v59", "v61")
        for u in range(4):
            e(f"v_mul_f32 {v(56+u)}, 0x3db504f3, {v(56+u)}")
        self.rb2("v56", "v57", "v60")
        self.rb2("v58", "v59", "v61")
        e("v_max3_f32 v60, v56, v57, v58")
        e("v_max_f32 v60, v60, v59")
        e(f"v_max_f32_dpp v60, v60, v60 row_half_mirror {DPF}")
        e("v_mov_b32 v61, v60")
        e("v_permlane16_swap_b32 v60, v61")
        e("v_max_f32 v60, v60, v61")
        e("v_mov_b32 v61, v60")
        e("v_permlane32_swap_b32 v60, v61")
        e("v_max_f32 v60, v60, v61")
        if not self.vburst:
            vstep()
        if self.wb == 2:
            while S.step(wait=False, stop=stop):
                pass
        for u in range(4):
            e(f"v_sub_f32 {v(56+u)}, {v(56+u)}, v60")
        for u in range(4):
            e(f"v_mul_f32 {v(56+u)}, {sL2E}, {v(56+u)}")
        for u in range(4):
            e(f"v_exp_f32 {v(56+u)}, {v(56+u)}")
        for u in range(4):
            e(f"v_cvt_pk_bf16_f32 {v(56+u)}, {v(56+u)}, {v(56+u)}")
        dp = DPF + " bound_ctrl:0"

        def aprep(t):
            p = v(56 + (t >> 1))
            a = RK + 4 * t
            for k in range(4):
                if (k >= 2) if (t & 1) == 0 else (k < 2):
                    sh = "row_shr:4" if (t & 1) == 0 else "row_shl:4"
                    e(f"v_and_b32_dpp {v(a+k)}, {p}, {v(MK[k])} {sh} {dp}")
                else:
                    e(f"v_and_b32 {v(a+k)}, {p}, {v(MK[k])}")
        for u in range(4):
            e(f"v_and_b32 {v(44+u)}, {sHI}, {v(56+u)}")
        e("v_add_f32 v44, v44, v45")
        e("v_add_f32 v46, v46, v47")
        e("v_add_f32 v61, v44, v46")
        aprep(0)
        e(f"v_add_f32_dpp v61, v61, v61 row_half_mirror {DPF}")
        e("v_mov_b32 v44, v61")
        aprep(1)
        e("v_permlane16_swap_b32 v61, v44")
        e("v_add_f32 v61, v61, v44")
        e("v_mov_b32 v44, v61")
        aprep(2)
        e("v_permlane32_swap_b32 v61, v44")
        e("v_add_f32 v61, v61, v44")
        e("s_mov_b64 exec, 0x101")
        e(f"ds_write_b64 v31, v[60:61] offset:{L_ACCO+1024}")
        e("s_mov_b64 exec, -1")
        for t in range(3, 8):
            aprep(t)
        while not S.issued("V7"):
            vstep()
        e("s_waitcnt lgkmcnt(0)")
        e("s_barrier")
        e(f"ds_read_b128 v[44:47], v24 offset:{L_ACCO+1024}")

        def pv(t):
            S.wait_for(f"V{t}")
            c = "0" if t == 0 else "v[40:43]"
            e(f"v_mfma_f32_16x16x32_bf16 v[40:43], {v(RK+4*t,4)}, {v(RV+4*t,4)}, {c}")
            if t < 7 and S.pos < min(stop, len(S.items)) and S.pos - 1 - S.index(f"V{t}") <= S.items[S.pos][2]:
                S.step(wait=False, stop=stop)
        for t in range(3):
            pv(t)
        e("s_waitcnt lgkmcnt(0)")
        for r in (44, 46):
            e(f"v_max_f32_dpp {v(r+4)}, {v(r)}, {v(r)} row_ror:8 {DPF}")
        for sw in ("16", "32"):
            for r in (48, 50):
                e(f"v_mov_b32 {v(r+1)}, {v(r)}")
            for r in (48, 50):
                e(f"v_permlane{sw}_swap_b32 {v(r)}, {v(r+1)}")
            for r in (48, 50):
                e(f"v_max_f32 {v(r)}, {v(r)}, {v(r+1)}")
        for r in (44, 46):
            e(f"v_sub_f32 {v(r+5)}, {v(r)}, {v(r+4)}")
        for r in (49, 51):
            e(f"v_mul_f32 {v(r)}, {sL2E}, {v(r)}")
        for r in (49, 51):
            e(f"v_exp_f32 {v(r)}, {v(r)}")
        for r in (44, 46):
            e(f"v_mul_f32 {v(r)}, 0x3e000000, {v(r+4)}")
        for r in (45, 47):
            e(f"v_mul_f32 {v(r)}, {v(r)}, {v(r+4)}")
        e("v_readlane_b32 s9, v49, s8")
        e("v_readlane_b32 s8, v51, s8")
        self.reduce4(44)
        e("v_mov_b32 v48, s9")
        e("v_mov_b32 v49, s8")
        e(f"v_add_f32_dpp v44, v44, v44 row_ror:8 {DPF}")
        e(f"v_cndmask_b32 v48, v48, v49, {mHI}")
        e(f"v_bfi_b32 v44, {sM10}, {vTs}, v44")
        e("s_mov_b64 exec, s[10:11]")
        self.lstore(f"buffer_store_dword v44, v19, {WS}, s12 offen")
        S.extra("st")
        e("s_mov_b64 exec, -1")
        self.stamp(6)
        for t in range(3, 8):
            pv(t)
        for r in range(4):
            e(f"v_mul_f32 {v(40+r)}, {v(40+r)}, v48")
        self.stamp(7)
        e(f"ds_write2_b32 v22, v40, v41 offset0:0 offset1:4")
        e(f"ds_write2_b32 v22, v42, v43 offset0:8 offset1:12")
        e("s_waitcnt lgkmcnt(0)")
        e("s_barrier")
        e(f"ds_read_b128 v[40:43], v23 offset:{L_ACCO}")
        e("s_waitcnt lgkmcnt(0)")
        self.reduce4(40)
        e(f"v_add_f32_dpp v40, v40, v40 row_ror:8 {DPF}")
        e(f"v_bfi_b32 v40, {sM10}, {vTq}, v40")
        e(f"s_mov_b64 exec, {mJ8}")
        self.lstore(f"buffer_store_dword v40, v20, {WS}, s13 offen")
        S.extra("p4")
        e("s_mov_b64 exec, -1")
        self.stamp(8)

    def build(self):
        e = self.e
        k0 = self.k0
        e("s_cmp_ge_u32 s2, 256")
        e("s_cbranch_scc1 L_end")
        e("s_load_dwordx16 s[16:31], s[0:1], 0")
        e("s_load_dwordx8 s[32:39], s[0:1], 64")
        e("s_load_dwordx4 s[40:43], s[0:1], 96")
        if self.stamps or self.hold:
            e("s_memrealtime s[98:99]")
        e("v_lshrrev_b32 v16, 6, v0")
        e("v_and_b32 v0, 63, v0")
        e(f"v_readfirstlane_b32 {sW}, v16")
        e(f"v_lshlrev_b32 {vL16}, 4, v0")
        e(f"s_and_b32 {sX}, s2, 7")
        e(f"s_lshr_b32 {sJ}, s2, 3")
        if self.prefetch:
            sk = self.lab("pf")
            e(f"s_cmp_lg_u32 {sW}, {self.pfw}")
            e(f"s_cbranch_scc1 {sk}")
            e("s_getpc_b64 s[8:9]")
            e.label("L_pc")
            e(f"v_lshlrev_b32 v16, 7, v0")
            e.raw("    .set CODE_LEFT, L_code_end - L_pc")
            for k in range(3):
                e(f"v_cmp_gt_u32 vcc, CODE_LEFT-4, v16")
                e("s_and_saveexec_b64 s[10:11], vcc")
                e(f"s_cbranch_execz L_pfx{k}")
                e(f"global_load_dword {vDUM}, v16, s[8:9]")
                e.label(f"L_pfx{k}")
                e("s_mov_b64 exec, -1")
                e("v_add_u32 v16, 0x2000, v16")
            e.label(sk)
        e(f"s_lshl_b32 s12, {sX}, 1")
        e(f"s_lshr_b32 s13, {sJ}, 4")
        e(f"s_add_u32 s12, s12, s13")
        e(f"s_lshl_b32 s12, s12, 24")
        e(f"s_add_u32 s12, s12, {61440*256}")
        e(f"s_and_b32 s13, {sJ}, 15")
        e(f"s_mul_i32 s94, s13, {((8*self.rm) % 128)*0x2000 if self.rm else 0x22000}")
        e("s_mov_b32 s50, 0x100000"); e("s_mov_b32 s51, 0x20000")
        e(f"s_lshl_b32 s95, {sW}, 10")
        e(f"v_and_b32 v16, 15, {vL}")
        e(f"v_lshlrev_b32 v16, 6, v16")
        e(f"v_and_b32 v17, 0x30, {vL}")
        e(f"v_add3_u32 {vKO}, v16, v17, s95")
        e(f"s_cmp_lt_u32 {sJ}, 18")
        e(f"s_cselect_b32 s15, {sW}, 1")
        e("s_cmp_lg_u32 s15, 0")
        e("s_cbranch_scc1 L_nomod")
        self.voff9(6912)
        e(f"v_lshlrev_b32 v18, 1, {vL}")
        e(f"v_lshrrev_b32 v19, 3, {vL}")
        e(f"v_lshlrev_b32 v19, 1, v19")
        e(f"s_mul_i32 s14, {sX}, {72*6912}")
        e(f"s_lshl_b32 s8, {sJ}, 7")
        e(f"s_add_u32 s14, s14, s8")
        e(f"s_mul_i32 s8, {sX}, 144")
        e("s_mov_b32 s66, 1152"); e("s_mov_b32 s67, 0x20000")
        e(f"s_mov_b32 s58, {576*6912}"); e("s_mov_b32 s59, 0x20000")
        e("s_waitcnt lgkmcnt(0)")
        e("s_mov_b32 s64, s34"); e("s_mov_b32 s65, s35")
        e("s_mov_b32 s56, s36"); e("s_mov_b32 s57, s37")
        e(f"buffer_load_ushort v30, v18, {SS1}, s8 offen")
        e(f"buffer_load_ushort v31, v19, {SS1}, s8 offen offset:128")
        self.wloads(RW1, SW1, "s14", 6912, 0, 9)
        e.label("L_nomod")
        e("s_waitcnt lgkmcnt(0)")
        e("s_add_u32 s48, s18, s12"); e("s_addc_u32 s49, s19, 0")
        if self.hold:
            e("v_mov_b32 v250, s98")
        if self.holdg:
            e("s_and_b32 s8, s98, 0x7fffffff")
            e("s_not_b32 s8, s8")
            e("v_mov_b32 v251, s8")
            e("v_mov_b32 v252, 0")
            e("s_mov_b32 s96, s40"); e("s_mov_b32 s97, s41")
            hg = self.lab("hg")
            e(f"s_cmp_lg_u32 {sW}, 0")
            e(f"s_cbranch_scc1 {hg}")
            e("s_mov_b64 exec, 1")
            e("global_atomic_umax v252, v251, s[40:41] sc1")
            e("s_mov_b64 exec, -1")
            e.label(hg)
        e("s_load_dwordx2 s[26:27], s[42:43], 0")
        if self.tlbw:
            e.c("one wave starts the address translations of every buffer used later (values are ignored)")
            tw = self.lab("tw")
            e(f"s_cmp_lg_u32 {sW}, 2")
            e(f"s_cbranch_scc1 {tw}")
            e("s_add_u32 s8, s20, s12"); e("s_addc_u32 s9, s21, 0")
            e(f"v_lshlrev_b32 v16, 21, {vL}")
            e("s_mov_b64 exec, 1")
            for p in ("s[8:9]", "s[42:43]", "s[16:17]", "s[34:35]", "s[38:39]"):
                e(f"global_load_dword {vDUM}, v16, {p}")
            e("s_mov_b64 exec, 3")
            e(f"global_load_dword {vDUM}, v16, s[36:37]")
            e("s_mov_b64 exec, 7")
            for p in ("s[22:23]", "s[24:25]", "s[28:29]", "s[30:31]", "s[32:33]"):
                e(f"global_load_dword {vDUM}, v16, {p}")
            e("s_mov_b64 exec, -1")
            e.label(tw)
        if not self.kdelay:
            self.kvloads(RK, vKO, SK, 0, k0)
        if self.stamps:
            e(f"v_mov_b32 {vST}, 0")
            e(f"v_writelane_b32 {vST}, s98, 0")
        e(f"s_mov_b32 {sM10}, 0x3ff")
        e(f"s_mov_b32 {sHI}, 0xffff0000")
        e(f"s_mov_b32 {sLOC}, 0")
        e(f"v_add_u32 {vVO}, s95, {vL16}")
        self.srd(WS, "s42", "s43", WS_BYTES)
        e("s_add_u32 s52, s20, s12"); e("s_addc_u32 s53, s21, 0"); e("s_mov_b32 s54, 0x100000"); e("s_mov_b32 s55, 0x20000")
        self.consts()
        if self.kdelay:
            self.kvloads(RK, vKO, SK, 0, k0)
        self.tags()
        e(f"s_cmp_ge_u32 {sJ}, 27")
        e("s_cbranch_scc1 L_MR")
        e(f"s_cmp_ge_u32 {sJ}, 18")
        e("s_cbranch_scc1 L_WD")
        self.role_gu()
        self.role_wd()
        self.role_mr()
        e.label("L_fin")
        if self.hold:
            if self.holdg:
                e.label("L_hold")
                e("s_sleep 32")
                e("global_load_dword v250, v252, s[40:41] sc1")
                e("s_waitcnt vmcnt(0)")
                e("v_readfirstlane_b32 s10, v250")
                e("s_memrealtime s[8:9]")
                e("s_not_b32 s10, s10")
                e("s_waitcnt lgkmcnt(0)")
                e("s_and_b32 s8, s8, 0x7fffffff")
                e("s_sub_u32 s8, s8, s10")
                e(f"s_cmp_lt_u32 s8, {self.hold - 300}")
                e("s_cbranch_scc1 L_hold")
                e.label("L_hold2")
                e("s_sleep 4")
                e("s_memrealtime s[8:9]")
                e("s_waitcnt lgkmcnt(0)")
                e("s_and_b32 s8, s8, 0x7fffffff")
                e("s_sub_u32 s8, s8, s10")
                e(f"s_cmp_lt_u32 s8, {self.hold}")
                e("s_cbranch_scc1 L_hold2")
                e("s_branch L_end")
            e("v_readfirstlane_b32 s10, v250")
            e.label("L_hold" if not self.holdg else "L_holdx")
            e("s_sleep 4")
            e("s_memrealtime s[8:9]")
            e("s_waitcnt lgkmcnt(0)")
            e("s_sub_u32 s8, s8, s10")
            e(f"s_cmp_lt_u32 s8, {self.hold}")
            e("s_cbranch_scc1 L_hold")
        if self.stamps:
            e(f"s_lshl_b32 s8, s2, 3")
            e(f"s_add_u32 s8, s8, {sW}")
            e(f"s_lshl_b32 s8, s8, 8")
            e(f"s_add_u32 s8, s8, {STAMP}")
            e(f"v_lshlrev_b32 v16, 2, {vL}")
            e(f"buffer_store_dword {vST}, v16, {WS}, s8 offen")
        e.label("L_end")
        return e

    def role_mr(self):
        e = self.e
        thr = self.thr_mr
        npre = self.mr_pre
        e.label("L_MR")
        e.c("================ MR ================")
        e(f"s_sub_u32 {sR}, {sJ}, 27")
        e(f"s_lshl_b32 {sR}, {sR}, 3")
        e(f"s_add_u32 {sR}, {sR}, {sX}")

        def off_x(base):
            def f(d):
                e(f"s_mul_i32 {d}, {sX}, 2304")
                e(f"s_add_u32 {d}, {d}, {base}")
            return f
        self.srd(SS1, "s34", "s35", 1152)
        self.srd(SW1, "s36", "s37", 576 * 6912)
        e(f"s_cmp_ge_u32 {sR}, 36")
        e(f"s_cselect_b32 s58, 0, s58")
        e(f"v_lshrrev_b32 v16, 3, {vL}")
        e(f"v_mul_u32_u24 v17, 10, v16")
        e(f"v_and_b32 v18, 7, {vL}")
        e(f"v_lshl_add_u32 v17, v18, 1, v17")
        e(f"s_mul_i32 s8, {sW}, 80")
        e(f"buffer_load_ushort v30, v17, {SS1}, s8 offen")
        e(f"v_mul_u32_u24 v16, {5*6912}, v16")
        e(f"v_lshl_add_u32 {vWA}, v18, 4, v16")
        e(f"s_mul_i32 s14, {sW}, {40*6912}")
        e(f"s_lshl_b32 s8, {sR}, 7")
        e(f"s_add_u32 s14, s14, s8")
        e(f"s_add_u32 s14, s14, {18*128}")
        S = self.stream(self.it_w(RW1, SW1, "s14", 6912, 0, 5, thr) + self.it_kv("K", self.k0, 8, thr) + self.it_kv("V", 0, 8, thr))
        S.extra("c")
        S.run(self.k0 + thr + 1)
        S.wait_for("c")
        self.silu1("v30")
        self.swz(48, "v30", 5)

        def off_p11(d):
            e(f"s_mul_i32 {d}, {sX}, {3*2304}")
            e(f"s_add_u32 {d}, {d}, {P11}")
        self.touch([(self.off_p4, 8), (off_x(P9), 18), (off_p11, 45)])
        e("s_waitcnt lgkmcnt(0)")
        S.run(self.k0 + 5 + thr + 1)
        S.wait_for("W4")
        self.core(48, RW1, 5, 40, 32)
        self.acc_add(40, L_ACC1)
        sk = self.lab("mri")
        e(f"s_cmp_ge_u32 {sR}, 36")
        e(f"s_cbranch_scc1 {sk}")
        e(f"s_lshl_b32 s8, {sR}, 8")
        e(f"s_add_u32 s8, s8, {P6}")
        self.acc_publish(L_ACC1, "s8", False, False)
        e.label(sk)
        self.stamp(4)
        self.attention(S, 13 + self.qpos, thr, 21)
        e.c("================ reducers: one wave per 64-column slice ================")
        e(f"s_sub_u32 s8, {sJ}, 27")
        e(f"s_lshl_b32 s8, s8, 1")
        e(f"s_add_u32 s8, s8, {sW}")
        e(f"s_cmp_gt_u32 {sW}, 1")
        e("s_cbranch_scc1 L_pfs" if self.slowpf else "s_cbranch_scc1 L_fin")
        e("s_cmp_gt_u32 s8, 8")
        e("s_cbranch_scc1 L_fin")
        self.srd(SS2, "s16", "s17", 1152)
        e("s_lshl_b32 s9, s8, 7")
        e(f"v_lshlrev_b32 v25, 1, {vL}")
        e(f"buffer_load_ushort v62, v25, {SS2}, s9 offen")
        e(f"s_mul_i32 s12, {sX}, {3*2304}")
        e(f"s_add_u32 s12, s12, {P11}")
        if self.cstat:
            e("s_lshl_b32 s13, s8, 4")
            e("s_add_u32 s13, s13, s12")
        else:
            e(f"s_add_u32 s13, s12, s9")
        e(f"s_add_u32 s13, s13, 4608")
        e("s_lshl_b32 s8, s8, 8")
        e("s_add_u32 s12, s12, s8")
        e(f"s_add_u32 s10, s8, {P6}")
        e(f"s_add_u32 s11, s10, 4608")
        e(f"v_lshrrev_b32 v16, 4, {vL}")
        e(f"v_lshlrev_b32 v26, 2, v16")
        e(f"v_mul_u32_u24 v16, 2304, v16")
        e(f"v_and_b32 v17, 0xf0, {vL16}")
        e(f"v_add_u32 v27, v16, v17")
        e(f"s_add_u32 s14, s8, {P5}")
        e(f"s_add_u32 s15, s14, {4*2304}")
        off_x(P9)("s64")
        e("s_add_u32 s64, s64, s8")
        e("s_mov_b32 s66, 0x00010001"); e("s_mov_b32 s67, 0x00010001")
        e("s_movk_i32 s68, 9216")
        l5 = [(f"buffer_load_dwordx4 {v(32+4*m,4)}, v27, {WS}, {so} offen sc1", 32 + 4 * m) for m, so in enumerate(("s14", "s15"))]
        e(f"v_lshrrev_b32 v16, 4, {vL}")
        e(f"v_mul_u32_u24 v16, 9216, v16")
        e(f"v_add3_u32 v24, v16, v17, s68")

        def issue6():
            for k, (so, off) in enumerate((("s10", 0), ("s10", 2304), ("s11", 0), ("s11", 2304))):
                e(f"buffer_load_dword {v(56+k)}, {vL4}, {WS}, {so} offen offset:{off} sc1")
                e(f"buffer_load_dwordx4 {v(40+4*k,4)}, v24, {WS}, {so} offen offset:{off} sc1")
        self.poll(issue6, [(v(56 + k), vTq) for k in range(4)] + self.g4(40) + self.g4(44) + self.g4(48) + self.g4(52))
        for k in range(4):
            self.reduce4(40 + 4 * k)
            e(f"v_add_f32 {v(56+k)}, {v(56+k)}, {v(40+4*k)}")
            self.rb1(v(56 + k))
        e("v_add_f32 v58, 1.0, v58")
        self.rb1("v58")
        e(f"v_or_b32 v60, v58, {vTq}")
        e(f"v_or_b32 v61, v57, {vTq}")
        e("v_lshlrev_b32 v62, 16, v62")
        self.lstore_multi([f"buffer_store_dword v60, {vL4}, {WS}, s12 offen",
                           f"buffer_store_dword v61, {vL4}, {WS}, s12 offen offset:2304"])
        self.stamp(9)
        self.mpoll(l5)
        self.stamp(10)
        self.sumrows([32])
        e("v_fma_f32 v62, v32, v56, v62")
        e("v_mov_b32 v36, v62")
        e("v_mul_f32 v37, v62, v62")
        e("v_mul_f32 v33, v62, v58")
        e(f"v_bfi_b32 v33, {sM10}, {vTq}, v33")
        e("v_permlane32_swap_b32 v36, v37")
        e("v_add_f32 v36, v36, v37")
        for r in (8, 4, 2, 1):
            e(f"v_add_f32_dpp v36, v36, v36 row_ror:{r} {DPF}")
        e(f"v_bfi_b32 v36, {sM10}, {vTs}, v36")
        self.lstore_multi([f"buffer_store_dword v33, {vL4}, {WS}, s64 offen",
                           "s_mov_b64 exec, s[66:67]",
                           f"buffer_store_dword v36, v26, {WS}, s13 offen",
                           "s_mov_b64 exec, -1"])
        self.stamp(11)
        e.c("---- output: the reducer of slice s in slot s&7 ----")
        e("s_lshr_b32 s10, s8, 8")
        e("s_and_b32 s10, s10, 7")
        e(f"s_cmp_lg_u32 s10, {sX}")
        e("s_cbranch_scc1 L_fin")
        self.srd(SS1, "s38", "s39", 1152)
        e(f"s_add_u32 s14, s8, {P8}")
        e(f"s_add_u32 s15, s14, {4*2304}")
        self.mpoll(l5)
        self.sumrows([32])
        e("v_fma_f32 v32, v32, v59, v62")
        e("v_cvt_pk_bf16_f32 v32, v32, v32")
        e(f"buffer_store_short v32, v25, {SS1}, s9 offen")
        self.stamp(16)
        e("s_cmp_lg_u32 s8, 0")
        e("s_cbranch_scc1 L_fin")
        e("s_mov_b64 exec, 1")
        e(f"buffer_store_dwordx2 {v(vE0,2)}, off, {WS}, 0 sc1")
        e("s_mov_b64 exec, -1")
        if self.slowpf:
            e("s_branch L_fin")
            e.label("L_pfs")
            e.c("idle waves: pull the gate/up column slice whose lines stream slowest into this slot's L2")
            NT = self.slowpf
            e(f"s_sub_u32 s8, {sW}, 2")
            e("s_mul_i32 s8, s8, 5")
            e(f"s_add_u32 s8, s8, {sJ}")
            e("s_sub_u32 s8, s8, 27")
            e(f"s_cmp_ge_u32 s8, {4*NT}")
            e("s_cbranch_scc1 L_fin")
            e("s_bitcmp1_b32 s8, 0")
            e("s_cselect_b32 s60, s30, s28")
            e("s_cselect_b32 s61, s31, s29")
            e(f"s_mov_b32 s62, {576*9216}")
            e("s_mov_b32 s63, 0x20000")
            e(f"s_mul_i32 s10, {sX}, 1152")
            e("s_add_u32 s9, s10, s60")
            e("s_sub_u32 s9, 0x180, s9")
            e("s_and_b32 s9, s9, 0x380")
            e("s_lshr_b32 s8, s8, 1")
            sk = self.lab("pf2")
            e(f"s_cmp_lt_u32 s8, {NT}")
            e(f"s_cbranch_scc1 {sk}")
            e("s_cmp_lg_u32 s9, 0")
            e("s_cbranch_scc1 L_fin")
            e(f"s_sub_u32 s8, s8, {NT}")
            e("s_movk_i32 s9, 1024")
            e.label(sk)
            e("s_sub_u32 s8, 7, s8")
            e("s_mul_i32 s8, s8, 9216")
            e("s_add_u32 s8, s8, s9")
            e("s_add_u32 s8, s8, s10")
            e(f"v_lshrrev_b32 v17, 3, {vL}")
            e(f"v_add_u32 v16, {vL}, v17")
            e(f"v_mul_u32_u24 v16, {8*9216}, v16")
            e(f"buffer_load_dword {vDUM}, v16, {SW2}, s8 offen")

    def role_wd(self):
        e = self.e
        thr = self.thr
        e.label("L_WD")
        e.c("================ WD ================")
        e(f"s_sub_u32 {sR}, {sJ}, 18")
        self.srd(SW1, "s24", "s25", 4096 * 1152)
        self.srd(SW2, "s32", "s33", 4608 * 1152)
        e(f"v_and_b32 v16, 8, {vL}")
        e(f"v_lshlrev_b32 v16, 2, v16")
        e(f"v_lshrrev_b32 v17, 4, {vL}")
        e(f"v_add_u32 v16, v16, v17")
        e(f"v_mul_u32_u24 v16, 1152, v16")
        e(f"v_and_b32 v17, 0x70, {vL16}")
        e(f"v_add_u32 {vWA}, v16, v17")
        e(f"s_lshl_b32 s14, {sX}, 3")
        e(f"s_add_u32 s14, s14, {sW}")
        e(f"s_mul_i32 s15, s14, {72*1152}")
        e(f"s_mul_i32 s14, s14, {64*1152}")
        e(f"s_lshl_b32 s8, {sR}, 7")
        e(f"s_add_u32 s14, s14, s8")
        e(f"s_add_u32 s15, s15, s8")
        wp = self.wd_pre
        S = self.stream(self.it_w(RW1, SW1, "s14", 4 * 1152, 0, wp, thr) + self.it_kv("K", self.k0, 8, thr) + self.it_kv("V", 0, 8, thr)
                        + self.it_w(RW1, SW1, "s14", 4 * 1152, wp, 8, thr))
        self.touch([(self.off_p4, 8)])
        self.attention(S, wp + 8 + self.qpos_wd, thr, 24)
        S.run(24)
        self.voff9(1152)
        ne = self.n_early_wd
        self.wloads(RW2, SW2, "s15", 1152, 0, ne, self.thr_w)
        e.c("---- combine: gather P4 ----")
        e(f"s_lshl_b32 s8, {sX}, 5")
        e(f"s_lshr_b32 s9, {sW}, 2")
        e(f"s_lshl_b32 s9, s9, 4")
        e(f"s_add_u32 s8, s8, s9")
        e(f"s_mul_i32 s8, s8, 1152")
        e(f"s_add_u32 s8, s8, {P4}")
        e(f"s_and_b32 s9, {sW}, 3")
        e(f"s_lshl_b32 s9, s9, 8")
        e(f"s_add_u32 s9, s9, s8")
        e(f"v_lshrrev_b32 v16, 4, {vL}")
        e(f"v_mul_u32_u24 v17, {4*1152}, v16")
        e(f"v_and_b32 v18, 0xf0, {vL16}")
        e(f"v_add_u32 v26, v17, v18")
        e(f"v_lshl_add_u32 v17, v16, 2, {vL}")
        e(f"v_and_b32 v17, 15, v17")
        e(f"v_lshlrev_b32 v27, 4, v17")
        e(f"s_lshl_b32 s68, {sX}, 1")
        e(f"s_lshr_b32 s69, {sW}, 2")
        e(f"s_add_u32 s68, s68, s69")
        e(f"s_lshl_b32 s68, s68, 8")
        e(f"s_add_u32 s68, s68, {P4S}")
        e(f"s_mul_i32 s10, {sX}, 2304")
        e(f"s_lshl_b32 s11, {sR}, 8")
        e(f"s_add_u32 s13, s10, s11")
        e(f"s_add_u32 s12, s13, {P5}")
        e(f"s_mov_b32 s64, s8")
        self.acc_addr("T")
        e(f"s_mov_b32 s8, s64")
        e(f"s_bitcmp1_b32 {sW}, 1")
        e("s_cselect_b64 s[10:11], -1, 0")

        l4 = [(f"buffer_load_dwordx4 {v(32+4*m,4)}, v26, {WS}, s9 offen offset:{1152*m} sc1", 32 + 4 * m) for m in range(4)]
        self.mpoll(l4 + [(f"buffer_load_dwordx4 v[48:51], v27, {WS}, s68 offen sc1", 48)], until=4)
        self.stamp(17)
        e("v_cndmask_b32 v28, v48, v50, s[10:11]")
        e("v_cndmask_b32 v29, v49, v51, s[10:11]")
        e(f"v_max_f32_dpp v30, v28, v28 row_ror:8 {DPF}")
        for r in (4, 2, 1):
            e(f"v_max_f32_dpp v30, v30, v30 row_ror:{r} {DPF}")
        e("v_sub_f32 v28, v28, v30")
        e(f"v_mul_f32 v28, {sL2E}, v28")
        e("v_exp_f32 v28, v28")
        e("v_mul_f32 v29, v28, v29")
        for r in (8, 4, 2, 1):
            e(f"v_add_f32_dpp v29, v29, v29 row_ror:{r} {DPF}")
        e("v_rcp_f32 v29, v29")
        e("v_mul_f32 v28, v28, v29")
        self.mpoll(l4, init=False)
        self.stamp(9)
        for m in range(4):
            for r in range(4):
                op = "v_mul_f32_dpp" if m == 0 else "v_fmac_f32_dpp"
                e(f"{op} {v(52+r)}, v28, {v(32+4*m+r)} row_newbcast:{m} {DPF}")
        self.reduce4(52)
        e("v_cvt_pk_bf16_f32 v52, v52, v52")
        self.swz(56, "v52")
        self.core(56, RW1, 8, 40, 32, lgkm=8)
        self.acc_add(40, L_ACC1)
        self.acc_publish(L_ACC1, "s12", False, False)
        self.stamp(10)
        e("s_barrier")
        self.wloads(RW2, SW2, "s15", 1152, ne, 9, self.thr_dn)
        e.c("---- gather P7, gelu ----")
        e(f"s_mul_i32 s8, {sX}, 9216")
        e(f"s_mul_i32 s9, {sW}, 576")
        e(f"s_add_u32 s8, s8, s9")
        e(f"s_add_u32 s8, s8, {P7}")
        e(f"s_add_u32 s9, s8, 4608")
        e(f"v_lshlrev_b32 v26, 3, {vL}")
        e(f"v_and_b32 v27, 0x38, {vL}")
        e(f"v_mov_b32 v38, 0x3d372713")
        e(f"s_add_u32 s12, s13, {P8}")

        if not self.pair:
            e(f"s_mul_i32 s8, {sX}, 9216")
            e(f"s_mul_i32 s9, {sW}, 288")
            e(f"s_add_u32 s8, s8, s9")
            e(f"s_add_u32 s8, s8, {P7}")
            e(f"v_lshrrev_b32 v27, 1, v27")

            def issue2():
                e(f"buffer_load_dword v64, {vL4}, {WS}, s8 offen sc1")
                e(f"buffer_load_dword v65, v27, {WS}, s8 offen offset:256 sc1")
                e(f"buffer_load_dword v66, {vL4}, {WS}, s8 offen offset:2304 sc1")
                e(f"buffer_load_dword v67, v27, {WS}, s8 offen offset:2560 sc1")
            self.poll(issue2, [("v64", vTq), ("v65", vTg), ("v66", vTq), ("v67", vTg)], clean=False)
            self.stamp(11)
            for r in range(4):
                e(f"v_and_b32 {v(32+r)}, {sHI}, {v(64+r)}")
        else:
            def issue2():
                e(f"buffer_load_dwordx2 v[64:65], v26, {WS}, s8 offen sc1")
                e(f"buffer_load_dwordx2 v[66:67], v27, {WS}, s8 offen offset:512 sc1")
                e(f"buffer_load_dwordx2 v[68:69], v26, {WS}, s9 offen sc1")
                e(f"buffer_load_dwordx2 v[70:71], v27, {WS}, s9 offen offset:512 sc1")
            self.poll(issue2, [(v(64 + r), vTq if (r >> 1) % 2 == 0 else vTg) for r in range(8)])
            self.stamp(11)
            for r in range(4):
                e(f"v_add_f32 {v(32+r)}, {v(64+2*r)}, {v(65+2*r)}")
        pr = (("v32", "v36"), ("v33", "v37"))
        for a, t in pr:
            e(f"v_mul_f32 {t}, {a}, {a}")
        for a, t in pr:
            e(f"v_fma_f32 {t}, {t}, v38, 1.0")
        for a, t in pr:
            e(f"v_mul_f32 {t}, {t}, {a}")
        for a, t in pr:
            e(f"v_mul_f32 {t}, 0xc0135761, {t}")
        e("v_exp_f32 v36, v36"); e("v_exp_f32 v37, v37")
        e("v_mul_f32 v32, v32, v34"); e("v_mul_f32 v33, v33, v35")
        e("v_add_f32 v36, 1.0, v36"); e("v_add_f32 v37, 1.0, v37")
        e("v_rcp_f32 v36, v36"); e("v_rcp_f32 v37, v37")
        e("v_mul_f32 v32, v32, v36"); e("v_mul_f32 v33, v33, v37")
        e("v_cvt_pk_bf16_f32 v47, v32, v32")
        self.swz(48, "v47")
        e("v_cvt_pk_bf16_f32 v56, v33, v33")
        self.core(48, RW2, 9, 40, 32, lgkm=8, order=[8, 0, 1, 2, 3, 4, 5, 6, 7])
        self.acc_add(40, L_ACC2)
        self.acc_publish(L_ACC2, "s12", False, False)
        self.stamp(12)
        e("s_branch L_fin")

    def role_gu(self):
        e = self.e
        thr = self.thr_gu
        e.c("================ GU ================")
        e(f"s_mov_b32 {sR}, {sJ}")
        self.srd(SW2, "s22", "s23", 576 * 8192)
        w1 = self.lab("w1")
        e(f"s_cmp_lg_u32 {sW}, 1")
        e(f"s_cbranch_scc1 {w1}")
        self.srd(SS2, "s16", "s17", 1152)
        e(f"buffer_load_dwordx4 v[32:35], {vL16}, {SS2}, 0 offen")
        e(f"buffer_load_dwordx4 v[36:39], {vL16}, {SS2}, 0 offen offset:1024")
        e(f"v_and_b32 v16, 7, {vL}")
        e(f"v_lshrrev_b32 v17, 4, {vL}")
        e(f"v_lshl_add_u32 v28, v16, 2, v17")
        e(f"v_lshlrev_b32 v16, 1, v28")
        e(f"s_lshl_b32 s8, {sR}, 6")
        e(f"buffer_load_ushort v40, v16, {SS2}, s8 offen")
        e.label(w1)
        n0 = self.lab("n0")
        e(f"s_cmp_lg_u32 {sW}, 0")
        e(f"s_cbranch_scc1 {n0}")
        e(f"s_waitcnt vmcnt({9+self.k0})")
        self.silu2(48)
        self.core(48, RW1, 9, 40, 32, vm_after=self.k0, lgkm=8)
        e(f"s_lshl_b32 s8, {sR}, 3")
        e(f"s_add_u32 s8, s8, {sX}")
        e(f"s_lshl_b32 s8, s8, 9")
        e(f"s_add_u32 s8, s8, {P1}")
        self.bsum(40)
        for k in range(2):
            e(f"v_bfi_b32 {v(42+k)}, {sM10}, 0, {v(40+k)}")
            e(f"v_sub_f32 {v(42+k)}, {v(40+k)}, {v(42+k)}")
        for k, t in enumerate((vTb0, vTb1, vTb0, vTb1)):
            e(f"v_bfi_b32 {v(40+k)}, {sM10}, {t}, {v(40+k)}")
        e(f"s_mov_b64 exec, {mJ8}")
        e(f"buffer_store_dwordx2 v[40:41], {vBO}, {WS}, s8 offen sc1")
        e(f"buffer_store_dwordx2 v[42:43], {vBO}, {WS}, s8 offen offset:256 sc1")
        e("s_mov_b64 exec, -1")
        self.stamp(1)
        e.label(n0)
        self.srd(SS1, "s34", "s35", 1152)
        self.srd(SW1, "s36", "s37", 576 * 6912)
        e(f"s_mul_i32 s12, {sX}, 18")
        e(f"s_add_u32 s12, s12, {sR}")
        e(f"s_and_b32 s13, s12, 3")
        e(f"s_lshr_b32 s12, s12, 2")
        e(f"s_lshl_b32 s8, s13, 3")
        e(f"s_add_u32 s8, s8, {sW}")
        e(f"s_add_u32 s8, s8, 40")
        e(f"s_lshl_b32 s9, s8, 4")
        e(f"v_lshrrev_b32 v16, 3, {vL}")
        e(f"v_lshlrev_b32 v17, 1, v16")
        e(f"buffer_load_ushort v62, v17, {SS1}, s9 offen")
        e(f"s_mul_i32 s8, s8, {8*6912}")
        e(f"s_lshl_b32 s9, s12, 7")
        e(f"s_add_u32 s8, s8, s9")
        e(f"s_add_u32 s8, s8, {18*128}")
        e(f"v_mul_u32_u24 v16, 6912, v16")
        e(f"v_and_b32 v17, 0x70, {vL16}")
        e(f"v_add_u32 v16, v16, v17")
        e(f"buffer_load_dwordx4 {v(RW1,4)}, v16, {SW1}, s8 offen {self.wf}")
        e(f"s_add_u32 s13, s13, 1")
        e(f"s_mul_i32 s13, s13, 9216")
        e(f"s_lshl_b32 s12, s12, 8")
        e(f"s_add_u32 s13, s13, s12")
        e(f"s_add_u32 s13, s13, {P6}")
        self.acc_addr("T")
        e(f"v_lshrrev_b32 v16, 3, {vL}")
        e(f"v_lshlrev_b32 v16, 15, v16")
        e(f"v_and_b32 v17, 0x70, {vL16}")
        e(f"v_add_u32 {vWA}, v16, v17")
        e(f"s_lshl_b32 s14, {sR}, 18")
        e(f"s_lshl_b32 s8, {sX}, 10")
        e(f"s_add_u32 s14, s14, s8")
        e(f"s_lshl_b32 s8, {sW}, 7")
        e(f"s_add_u32 s14, s14, s8")

        def off_p2(d):
            e(f"s_mul_i32 {d}, {sX}, 18")
            e(f"s_add_u32 {d}, {d}, {sR}")
            e(f"s_lshl_b32 {d}, {d}, 11")
            e(f"s_add_u32 {d}, {d}, {P2}")

        def off_p3(d):
            e(f"s_lshl_b32 {d}, {sX}, 4")
            e(f"s_add_u32 {d}, {d}, {sR}")
            e(f"s_lshl_b32 {d}, {d}, 7")
            e(f"s_add_u32 {d}, {d}, {P3}")

        def off_p7(d):
            e(f"s_mul_i32 {d}, {sX}, 18")
            e(f"s_add_u32 {d}, {d}, {sR}")
            e(f"s_lshl_b32 {d}, {d}, 9")
            e(f"s_add_u32 {d}, {d}, {P7}")
        self.touch([(off_p2, 16), (self.off_p4, 8), (off_p7, 4)])
        e(f"s_cmp_eq_u32 {sW}, 1")
        e(f"s_cbranch_scc1 L_GU_w1")
        e(f"s_waitcnt vmcnt({thr})")
        self.wloads(RW2, SW2, "s14", 8192, 0, 3, thr)
        self.wloads(RW2, SW2, "s14", 8192, 3, 4, thr if self.kpre > self.k0 else None)
        e("s_waitcnt vmcnt(4)")
        self.silu1("v62")
        self.core(62, RW1, 1, 56, 52)
        self.bsum(56)
        e(f"s_mov_b64 exec, {mJ8}")
        e(f"ds_write_b32 {vA0}, v56 offset:{L_ACC2}")
        e(f"ds_write_b32 {vA1}, v57 offset:{L_ACC2}")
        e("s_mov_b64 exec, -1")
        if self.force is None:
            nc = self.lab("nc")
            e(f"s_cmp_lg_u32 {sW}, 2")
            e(f"s_cbranch_scc1 {nc}")
            self.census_load(44)
            e.label(nc)
        self.kvloads(RK, vKO, SK, self.k0, self.kpre - 1, thr)
        self.kvloads(RK, vKO, SK, self.kpre - 1, self.kpre)
        if self.force is None:
            e(f"s_cmp_lg_u32 {sW}, 2")
            e(f"s_cbranch_scc1 L_GU_b1")
            e(f"s_waitcnt vmcnt({self.kpre - self.k0})")
            self.census_eval(44, "s10")
            e("v_mov_b32 v44, s10")
            e("v_mov_b32 v45, 0")
            e(f"ds_write_b32 v45, v44 offset:{L_H32+128}")
        e(f"s_branch L_GU_b1")
        e.label("L_GU_w1")
        self.wloads(RW2, SW2, "s14", 8192, 0, 4)
        e(f"s_waitcnt vmcnt(4)")
        e("v_mov_b32 v41, 0x3f803f80")
        e("v_mov_b32 v42, 0")
        e("v_mov_b32 v43, 0")
        for r in range(8):
            e(f"v_dot2_f32_bf16 v42, {v(32+r)}, v41, v42")
        for r in range(8):
            e(f"v_dot2_f32_bf16 v43, {v(32+r)}, {v(32+r)}, v43")
        e("v_permlane32_swap_b32 v42, v43")
        e("v_add_f32 v42, v42, v43")
        e("v_mov_b32 v43, v42")
        e("v_permlane16_swap_b32 v42, v43")
        e("v_add_f32 v42, v42, v43")
        for r in (8, 4, 2, 1):
            e(f"v_add_f32_dpp v42, v42, v42 row_ror:{r} {DPF}")
        e("v_mov_b32 v43, v42")
        e("v_permlane32_swap_b32 v42, v43")
        S1, S2, mb, rinv = "v42", "v43", "v44", "v45"
        e(f"v_mul_f32 {S1}, 0x3ae38e39, {S1}")
        e(f"v_mul_f32 {S2}, 0x3ae38e39, {S2}")
        e(f"v_fma_f32 {S2}, -{S1}, {S1}, {S2}")
        e(f"v_max_f32 {S2}, 0, {S2}")
        e(f"v_cvt_pk_bf16_f32 {rinv}, {S1}, {S2}")
        e(f"v_lshlrev_b32 {mb}, 16, {rinv}")
        e(f"v_and_b32 {S2}, {sHI}, {rinv}")
        e(f"v_add_f32 {S2}, 0x3727c5ac, {S2}")
        self.rb1(S2)
        e(f"v_sqrt_f32 {S2}, {S2}")
        self.rb1(S2)
        e("v_lshlrev_b32 v40, 16, v40")
        e("v_sub_f32 v40, v40, v44")
        self.rb1("v40")
        self.div("v40", "v40", S2, "v45", "v46")
        self.rb1("v40")
        e("v_lshlrev_b32 v28, 2, v28")
        self.silu1("v62")
        self.core(62, RW1, 1, 56, 52)
        self.bsum(56)
        e(f"s_mov_b64 exec, {mJ8}")
        e(f"ds_write_b32 {vA0}, v56 offset:{L_ACC2}")
        e(f"ds_write_b32 {vA1}, v57 offset:{L_ACC2}")
        e("s_mov_b64 exec, -1")
        e(f"v_lshrrev_b32 v16, 3, {vL}")
        e(f"v_lshlrev_b32 v16, 9, v16")
        e(f"v_and_b32 v17, 0x70, {vL16}")
        e(f"v_add_u32 v26, v16, v17")
        e(f"s_lshr_b32 s8, {sR}, 1")
        e(f"s_lshl_b32 s8, s8, 12")
        e(f"s_and_b32 s9, {sR}, 1")
        e(f"s_lshl_b32 s9, s9, 7")
        e(f"s_add_u32 s8, s8, s9")
        e(f"s_add_u32 s8, s8, {P1}")
        e(f"s_add_u32 s9, s8, {9*4096}")
        cen = self.force is None
        p1k = self.kpre if self.p1k is None else self.p1k
        self.kvloads(RK, vKO, SK, self.k0, p1k, thr)

        def issue():
            e(f"buffer_load_dwordx4 v[32:35], v26, {WS}, s8 offen sc1")
            e(f"buffer_load_dwordx4 v[36:39], v26, {WS}, s9 offen sc1")
            e(f"buffer_load_dwordx4 v[44:47], v26, {WS}, s8 offen offset:256 sc1")
            e(f"buffer_load_dwordx4 v[48:51], v26, {WS}, s9 offen offset:256 sc1")
        self.stamp(17)
        c1 = self.g4(32) + self.g4(36) + self.g4(44) + self.g4(48)
        if p1k < self.kpre:
            issue()
            self.kvloads(RK, vKO, SK, p1k, self.kpre)
            e(f"s_waitcnt vmcnt({self.kpre - p1k})")
            self.tagcheck(c1, "v21")
            e("v_cmp_ne_u32 vcc, 0, v21")
            ok1 = self.lab("p1ok")
            e(f"s_cbranch_vccz {ok1}")
            self.stamp(18)
            self.poll(issue, c1)
            e.label(ok1)
        else:
            self.poll(issue, c1)
        self.stamp(2)
        for k in range(4):
            e(f"v_pk_add_f32 {v(32+2*k,2)}, {v(32+2*k,2)}, {v(44+2*k,2)}")
        if self.stamps:
            e(f"v_writelane_b32 {vST}, {sSP}, 40")
        self.reduce4(32)
        self.reduce4(36)
        e(f"v_add_f32_dpp v32, v32, v32 row_ror:8 {DPF}")
        e(f"v_add_f32_dpp v36, v36, v36 row_ror:8 {DPF}")
        self.rb2("v32", "v36", "v33")
        e("v_add_f32 v36, 1.0, v36")
        self.rb1("v36")
        e("v_mul_f32 v36, v36, v40")
        self.rb1("v36")
        e("v_add_f32 v36, v36, v32")
        e("v_cvt_pk_bf16_f32 v36, v36, v36")
        e(f"ds_write_b32 v28, v36 offset:{L_H32}")
        e.label("L_GU_b1")
        e(f"v_lshrrev_b32 v25, 3, {vL}")
        e(f"v_lshlrev_b32 v26, 4, v25")
        e("v_mov_b32 v27, 0")
        e(f"v_and_b32 v16, 7, {vL}")
        e(f"v_and_b32 v17, 0x30, {vL}")
        e(f"v_lshrrev_b32 v17, 1, v17")
        e(f"v_add_lshl_u32 v24, v16, v17, 3")
        off_p2("s9")
        e(f"s_lshl_b32 s10, {sW}, 8")
        e(f"s_add_u32 s9, s9, s10")
        e("s_waitcnt lgkmcnt(0)")
        e("s_barrier")
        e(f"ds_read_b128 v[48:51], v26 offset:{L_H32}")
        if cen:
            e(f"ds_read_b32 v52, v27 offset:{L_H32+128}")
        e("s_waitcnt lgkmcnt(0)")
        if cen:
            e(f"v_readfirstlane_b32 {sLOC}, v52")
        e(f"s_waitcnt vmcnt({self.kpre - self.k0})")
        self.core(48, RW2, 4, 40, 32)
        self.bsum_store(40, "s9", True, lin="v24")
        self.stamp(3)
        self.acc_publish(L_ACC2, "s13", False, False)
        e.label("L_GU_b2")
        if not self.resume:
            e("s_barrier")

        t2 = self.thr_gu2
        S = Stream(e, self.it_kv("K", self.kpre, 8, t2) + self.it_kv("V", 0, 8, t2)
                   + self.it_w(RW2, SW2, "s14", 9216, 0, self.n_early_gu, t2)
                   + self.it_w(RW2, SW2, "s14", 9216, self.n_early_gu, 9, self.thr_post))
        nk = 8 - self.kpre
        if self.resume:
            S.log = [(f"k{t}", True) for t in range(self.kpre - self.k0)] + [("p2", False)]
        S.run(min(nk, (1 if self.resume else t2 + 1)))
        self.acc_addr("N")
        e(f"s_add_u32 s15, {sR}, 2")
        e(f"s_cmp_ge_u32 s15, 18")
        e(f"s_cselect_b32 s8, 18, 0")
        e(f"s_sub_u32 s15, s15, s8")
        e(f"s_cmp_ge_u32 {sW}, {4 if self.pair else 99}")
        e(f"s_cselect_b32 s9, s15, {sR}")
        e(f"s_cmp_ge_u32 s9, 9")
        e("s_cselect_b32 s60, s30, s28")
        e("s_cselect_b32 s61, s31, s29")
        e("s_cselect_b32 s8, 9, 0")
        e(f"s_mov_b32 s62, {576*9216}")
        e(f"s_sub_u32 s8, s9, s8")
        e(f"s_lshl_b32 s8, s8, 7")
        e(f"s_mul_i32 s14, {sX}, 1152")
        e(f"s_add_u32 s14, s14, s8")
        e(f"s_mul_i32 s8, {sW}, {72*9216}")
        e(f"s_add_u32 s14, s14, s8")
        self.voff9(9216)
        self.attention(S, nk + self.qpos_gu, t2, nk + 8 + self.n_early_gu)
        if self.gate_n:
            e.c("hold the FFN weight stream until most attention partials of this slot are out")
            gd, gt = self.lab("gd"), self.lab("gt")
            e(f"s_cmp_lg_u32 {sW}, 0")
            e(f"s_cbranch_scc1 {gd}")
            e(f"s_mul_i32 s8, {sX}, {32*1152}")
            e(f"s_add_u32 s8, s8, {P4}")
            e(f"v_mul_u32_u24 v26, 1152, {vL}")
            e(f"s_mov_b32 {sSP}, 0")
            e("s_mov_b32 exec_hi, 0")
            e.label(gt)
            e(f"s_add_u32 {sSP}, {sSP}, 1")
            e(f"s_cmp_gt_u32 {sSP}, {SPIN}")
            e("s_cbranch_scc1 L_end")
            e(f"buffer_load_dword v32, v26, {WS}, s8 offen offset:1024 sc1")
            e("s_waitcnt vmcnt(0)")
            e(f"v_and_b32 v32, {sM10}, v32")
            e(f"v_cmp_eq_u32 vcc, v32, {v(TG[0])}")
            e("s_bcnt1_i32_b64 s9, vcc")
            e(f"s_cmp_lt_u32 s9, {self.gate_n}")
            e(f"s_cbranch_scc1 {gt}")
            e("s_mov_b64 exec, -1")
            e.label(gd)
        e("s_barrier")
        S.run(99)
        e.c("---- gather u = x1*(1+cb), stats, finish the LayerNorm ----")
        e(f"s_mul_i32 s8, {sX}, 2304")
        e(f"s_mul_i32 s9, {sW}, 288")
        e(f"s_add_u32 s8, s8, s9")
        e(f"s_add_u32 s8, s8, {P9}")
        e(f"s_mul_i32 s10, {sX}, {3*2304}")
        e(f"s_add_u32 s10, s10, {P11}")
        e(f"s_add_u32 s11, s10, 4608")
        e(f"s_add_u32 s10, s10, s9")
        e(f"v_lshrrev_b32 v16, 3, {vL}")
        e(f"v_lshlrev_b32 v27, 2, v16")
        e(f"v_and_b32 v16, 15, {vL}")
        e(f"v_min_u32 v17, 8, v16")
        e(f"v_lshlrev_b32 v26, {4 if self.cstat else 7}, v17")
        e(f"v_cmp_gt_u32 vcc, 9, v16")
        e(f"v_mov_b32 v16, 0x3ae38e39")
        e(f"v_cndmask_b32 v28, 0, v16, vcc")
        off_p7("s12")
        e(f"s_sub_u32 s13, s15, {sR}")
        e(f"s_lshl_b32 s13, s13, 9")
        e(f"s_add_u32 s13, s13, s12")
        e(f"s_add_u32 s13, s13, 4")
        e(f"s_cmp_eq_u32 {sW}, 1")
        e(f"s_cselect_b32 s12, s13, s12")
        e(f"s_cselect_b32 s13, {4*ACCS}, 0")
        e(f"v_add_u32 v25, s13, {vAR}")
        e(f"v_lshlrev_b32 v24, 3, {vL}")

        def issue11():
            e(f"buffer_load_dword v58, {vL4}, {WS}, s10 offen sc1")
            e(f"buffer_load_dword v59, v27, {WS}, s10 offen offset:256 sc1")
            e(f"buffer_load_dword v60, {vL4}, {WS}, s10 offen offset:2304 sc1")
            e(f"buffer_load_dword v61, v27, {WS}, s10 offen offset:2560 sc1")

        def issue9():
            e(f"buffer_load_dwordx4 v[44:47], v26, {WS}, s11 offen sc1")
            e(f"buffer_load_dword v62, {vL4}, {WS}, s8 offen sc1")
            e(f"buffer_load_dword v63, v27, {WS}, s8 offen offset:256 sc1")
        c11 = [("v58", vTq), ("v59", vTg), ("v60", vTq), ("v61", vTg)]
        c9 = self.g4(44) + [("v62", vTq), ("v63", vTg)]
        self.poll(issue11, c11)
        self.poll(issue9, c9)
        self.stamp(10)
        e("v_add_f32 v44, v44, v45")
        e("v_add_f32 v46, v46, v47")
        e("v_mul_f32 v44, v44, v28")
        e("v_mul_f32 v46, v46, v28")
        for r in (8, 4, 2, 1):
            e(f"v_add_f32_dpp v44, v44, v44 row_ror:{r} {DPF}")
            e(f"v_add_f32_dpp v46, v46, v46 row_ror:{r} {DPF}")
        e("v_fma_f32 v46, -v44, v44, v46")
        e("v_fma_f32 v62, -v44, v58, v62")
        e("v_max_f32 v46, 0, v46")
        e("v_fma_f32 v63, -v44, v59, v63")
        e("v_add_f32 v46, 0x3727c5ac, v46")
        e("v_rsq_f32 v46, v46")
        e("v_fma_f32 v62, v62, v46, v60")
        e("v_fma_f32 v63, v63, v46, v61")
        e("v_cvt_pk_bf16_f32 v47, v62, v62")
        self.swz(48, "v47")
        e("v_cvt_pk_bf16_f32 v56, v63, v63")
        self.core(48, RW2, 9, 40, 32, lgkm=8, order=[8, 0, 1, 2, 3, 4, 5, 6, 7])
        self.acc_add(40, L_ACC1)
        if not self.pair:
            e(f"s_mul_i32 s12, {sX}, 36")
            e(f"s_add_u32 s12, s12, {sR}")
            e(f"s_lshl_b32 s12, s12, 8")
            e(f"s_add_u32 s12, s12, {P7}")
            self.acc_publish(L_ACC1, "s12", True, True)
            self.stamp(11)
            e("s_branch L_fin")
            return
        e(f"s_cmp_gt_u32 {sW}, 1")
        e(f"s_cbranch_scc1 L_fin")
        e(f"ds_read_b128 v[16:19], v25 offset:{L_ACC1}")
        e("s_waitcnt lgkmcnt(0)")
        self.reduce4(16)
        e(f"v_bfi_b32 v16, {sM10}, {vTq}, v16")
        self.lstore(f"buffer_store_dword v16, v24, {WS}, s12 offen")
        self.stamp(11)
        e("s_branch L_fin")


def generate(fn, **kw):
    g = Gen(**kw)
    e = g.build()
    body = e.text()
    nv = max(e.maxv + 1, 136)
    txt = wrap(body, 256, 512, lds=LDS_BYTES, vgpr=nv, sgpr=max(e.maxs + 1, 96))
    txt = txt.replace("\ns_endpgm\n", "\n    s_endpgm\nL_code_end:\n")
    open(fn, "w").write(txt)
    return e


if __name__ == "__main__":
    import itertools
    names = []
    for spec in sys.argv[1:]:
        nm, _, kv = spec.partition(":")
        kw = {}
        for p in kv.split(","):
            if p:
                k, _, val = p.partition("=")
                kw[k] = eval(val)
        e = generate(nm, **kw)
        names.append(nm)
    print(" ".join(names))
```

```python
import sys
from emit import Em
from asmgen import wrap, NAME

P1 = 0x1D0000
P2 = 0x10000
P3 = 0x60000
P4 = 0x70000
P5 = 0xC0000
P6 = 0x1C0000
P7 = 0x180000
P8 = 0xE0000
P9 = 0xE8000
P10 = 0xEE000
P11 = 0x1A0000
P4S = 0xFA000
CEN = 0xF8000
STAMP = 0x100000
WS_BYTES = 0x200000
XS = 224

L_ACC1 = 0x0000
L_ACC2 = 0x0900
L_LNS = 0x1200
L_MX = 0x1280
L_H32 = 0x1300
L_ACCO = 0x1400
L_Q = 0x3800
LDS_BYTES = 0x3A00
ACCS = 272

sX, sJ, sW, sR, sSP = "s3", "s4", "s5", "s6", "s7"
WS, SK, SV, SW1, SW2, SS1, SS2 = "s[44:47]", "s[48:51]", "s[52:55]", "s[56:59]", "s[60:63]", "s[64:67]", "s[68:71]"
sM10, sHI, sLOC, sSEL, sL2E, sKV = "s72", "s73", "s74", "s75", "s76", "s77"
m36, mJ8, mT2, mODD, mHI = "s[82:83]", "s[84:85]", "s[86:87]", "s[88:89]", "s[90:91]"
vL, vL16 = "v0", "v1"
MK = [2, 3, 4, 5]
TG = [6, 7, 8, 9]
vTa0, vTa1 = "v10", "v11"
vWA, vWB = "v12", "v13"
vKO, vVO = "v14", "v210"
vST = "v15"
RK, RV, RW1, RW2 = 64, 96, 128, 164
vTb0, vTb1, vTs, vBO, vAA = "v200", "v201", "v202", "v203", "v204"
vDUM = "v205"
vE0, vE1 = 206, 207
vAR, vCO = "v208", "v209"
PS = [212, 213, 214, 215]
vA0, vA1, vL4 = "v204", "v211", "v234"
vTq, vTg = "v216", "v217"
KVO = ["s18", "s19", "s20", "s21", "s40", "s41", "s94", "s95"]
SPIN = 400000
DPF = "row_mask:0xf bank_mask:0xf"


def v(n, k=1):
    return f"v{n}" if k == 1 else f"v[{n}:{n+k-1}]"


class Stream:
    def __init__(self, e, items):
        self.e, self.items, self.pos, self.log = e, items, 0, []

    def step(self, wait=True, stop=None):
        if self.pos >= len(self.items) or (stop is not None and self.pos >= stop):
            return False
        name, fn, thr = self.items[self.pos]
        bulk = [i for i, (n, b) in enumerate(self.log) if b]
        if wait and thr is not None and len(bulk) > thr:
            self.e(f"s_waitcnt vmcnt({len(self.log) - 1 - bulk[-(thr + 1)]})")
        fn()
        self.log.append((name, True))
        self.pos += 1
        return True

    def run(self, stop):
        while self.step(stop=stop):
            pass

    def extra(self, name):
        self.log.append((name, False))

    def issued(self, name):
        return any(n == name for n, _ in self.log)

    def wait_for(self, name):
        idx = max(i for i, (n, _) in enumerate(self.log) if n == name)
        self.e(f"s_waitcnt vmcnt({len(self.log) - 1 - idx})")

    def index(self, name):
        return [n for n, _, _ in self.items].index(name)


class Gen:
    def __init__(self, stamps=False, force=None, thr=3, thr_gu=4, n_early_gu=2, n_early_wd=0, prefetch=2,
                 pretouch=True, kpre=4, thr_gu2=4, kvf='nt', wf='nt', qpos=2, qpos_gu=0, resume=False, mr_pre=3, late_first=True, thr_mr=3, thr_post=None, p1wait=False, thr_w=1, wd_pre=6, qpos_wd=3, gate_n=0, mod_on_gu=False, pipe4=False, pipe79=False, thr_dn=None, l2pf=0, kvmap='contig', pair=False, rotc=3, slp=0, k0=2, pfw=1, kdelay=False, tlbw=False, hold=0, holdg=False, rm=45, joint=False, dn_late=False, merge=False, ad_n=0, ad_steps=2, ad_per=2, cskip=True, estat=True, nobsum=True, slowpf=0, cstat=True, p1k=None, qlx=0, pre1=0, vburst=True, wb=2, tr=True, npv=3, dnpf=0):
        self.e = Em()
        self.stamps = stamps
        self.force = force
        self.thr = thr
        self.thr_gu = thr_gu
        self.n_early_gu = n_early_gu
        self.n_early_wd = n_early_wd
        self.prefetch = prefetch
        self.pretouch = pretouch
        self.kpre = kpre
        self.kvf = kvf
        self.qpos = qpos
        self.pv_steps = 0
        self.thr_w = thr_w
        self.pipe4 = pipe4
        self.kvmap = 'rot'
        self.k0 = k0
        self.pfw = pfw
        self.hold = hold
        self.rm = rm
        self.dnpf = dnpf
        self.npv = npv
        self.tr = tr
        self.wb = wb
        self.vburst = vburst
        self.qlx = qlx
        self.pre1 = pre1
        self.p1k = p1k
        self.cstat = cstat
        self.slowpf = slowpf
        self.estat = estat
        self.nobsum = nobsum
        self.cskip = cskip
        self.ad_n, self.ad_steps, self.ad_per = ad_n, ad_steps, ad_per
        self.merge = merge
        self.dn_late = dn_late
        self.joint = joint
        self.holdg = holdg
        self.tlbw = tlbw
        self.kdelay = kdelay
        self.rotc = rotc
        self.slp = slp
        self.pair = pair
        self.l2pf = l2pf
        self.pipe79 = pipe79
        self.thr_dn = thr_dn
        self.gate_n = gate_n
        self.mod_on_gu = mod_on_gu
        self.qpos_wd = qpos_wd
        self.wd_pre = wd_pre
        self.p1wait = p1wait
        self.thr_post = thr_post
        self.qpos_gu = qpos_gu
        self.resume = resume
        self.mr_pre = mr_pre
        self.late_first = late_first
        self.thr_mr = thr if thr_mr is None else thr_mr
        self.wf = wf
        self.thr_gu2 = thr_gu2
        self.uid = 0

    def lab(self, p):
        self.uid += 1
        return f"L_{p}{self.uid}"

    def stamp(self, k):
        if self.stamps:
            e = self.e
            e("s_memrealtime s[92:93]")
            e("s_waitcnt lgkmcnt(0)")
            e(f"v_writelane_b32 {vST}, s92, {k}")

    def srd(self, srd, lo, hi, nbytes):
        b = int(srd[2:].split(":")[0])
        e = self.e
        e(f"s_mov_b32 s{b}, {lo}")
        e(f"s_mov_b32 s{b+1}, {hi}")
        e(f"s_mov_b32 s{b+2}, {nbytes}")
        e(f"s_mov_b32 s{b+3}, 0x20000")

    def lstore(self, text):
        e = self.e
        if self.force is not None:
            e(f"{text} {self.force}")
            return
        a, b = self.lab("ls"), self.lab("le")
        e(f"s_cmp_eq_u32 {sLOC}, 0")
        e(f"s_cbranch_scc1 {a}")
        e(text)
        e(f"s_branch {b}")
        e.label(a)
        e(f"{text} sc1")
        e.label(b)

    def lstore_multi(self, lines):
        e = self.e

        def emit(flag):
            for t in lines:
                e(f"{t} {flag}" if t.startswith("buffer_store") else t)
        if self.force is not None:
            emit(self.force)
            return
        a, b = self.lab("ls"), self.lab("le")
        e(f"s_cmp_eq_u32 {sLOC}, 0")
        e(f"s_cbranch_scc1 {a}")
        emit("")
        e(f"s_branch {b}")
        e.label(a)
        emit("sc1")
        e.label(b)

    def voff9(self, stride):
        e = self.e
        e(f"v_lshrrev_b32 v16, 3, {vL}")
        e(f"v_and_b32 v17, 0x70, {vL16}")
        e(f"v_mul_u32_u24 v16, {stride}, v16")
        e(f"v_lshl_add_u32 {vWA}, v16, 3, v17")
        e(f"v_add_u32 v16, {56*stride}, v16")
        e(f"v_add_u32 {vWB}, v16, v17")

    def wloads(self, base, srd, soff, step, t0, t1, thr=None):
        e = self.e
        for t in range(t0, t1):
            vo = vWB if t == 8 else vWA
            e(f"buffer_load_dwordx4 {v(base+4*t,4)}, {vo}, {srd}, {soff} offen {self.wf}")
            e(f"s_add_u32 {soff}, {soff}, {step}")
            if thr is not None:
                e(f"s_waitcnt vmcnt({thr})")

    def kvloads(self, base, vo, srd, t0, t1, thr=None):
        e = self.e
        for t in range(t0, t1):
            if self.kvmap == "rot2":
                e(f"buffer_load_dwordx4 {v(base+4*t,4)}, {vo}, {srd}, {KVO[t]} offen {self.kvf}")
                if thr is not None:
                    e(f"s_waitcnt vmcnt({thr})")
                continue
            if self.kvmap == "contig":
                e(f"s_mov_b32 {sKV}, {t*8192}")
            else:
                e(f"s_add_u32 {sKV}, s94, {t*(self.rm*0x2000 if self.rm else 0x20000)}")
                e(f"s_and_b32 {sKV}, {sKV}, 0xfffff")
            e(f"buffer_load_dwordx4 {v(base+4*t,4)}, {vo}, {srd}, {sKV} offen {self.kvf}")
            if thr is not None:
                e(f"s_waitcnt vmcnt({thr})")

    def stream(self, items):
        S = Stream(self.e, self.it_kv("K", 0, self.k0, None) + items)
        S.pos = self.k0
        S.log = [(f"K{t}", True) for t in range(self.k0)]
        return S

    def it_kv(self, kind, t0, t1, thr):
        base, vo, srd = (RK, vKO, SK) if kind == "K" else (RV, vVO, SV)
        return [(f"{kind}{t}", (lambda t=t: self.kvloads(base, vo, srd, t, t + 1)), thr) for t in range(t0, t1)]

    def it_w(self, base, srd, soff, step, t0, t1, thr):
        return [(f"W{t}", (lambda t=t: self.wloads(base, srd, soff, step, t, t + 1)), thr) for t in range(t0, t1)]

    def rb2(self, a, b, t):
        e = self.e
        e(f"v_cvt_pk_bf16_f32 {t}, {a}, {b}")
        e(f"v_lshlrev_b32 {a}, 16, {t}")
        e(f"v_and_b32 {b}, {sHI}, {t}")

    def rb1(self, a):
        e = self.e
        e(f"v_cvt_pk_bf16_f32 {a}, {a}, {a}")
        e(f"v_and_b32 {a}, {sHI}, {a}")

    def swz(self, X, src, n=8):
        for t in range(n):
            self.e(f"ds_swizzle_b32 {v(X+t)}, {src} offset:{(t << 5) | 0x18}")

    def core(self, X, W, T, D, A, vm_after=None, lgkm=None, perm=False, order=None):
        e = self.e
        seq = list(order or range(T))

        def prep(n):
            t = seq[n]
            a = A + 4 * (n & 1)
            if lgkm is not None and t < lgkm:
                e(f"s_waitcnt lgkmcnt({lgkm-1-t})")
            for k in range(4):
                if perm:
                    e(f"v_perm_b32 {v(a+k)}, {v(X+t)}, {v(X+t)}, {v(PS[k])}")
                else:
                    e(f"v_and_b32 {v(a+k)}, {v(X+t)}, {v(MK[k])}")
        prep(0)
        for n, t in enumerate(seq):
            a = A + 4 * (n & 1)
            if n == 0 and len(seq) > 1:
                prep(1)
            if vm_after is not None:
                e(f"s_waitcnt vmcnt({T-1-t+vm_after})")
            c = "0" if n == 0 else v(D, 4)
            e(f"v_mfma_f32_16x16x32_bf16 {v(D,4)}, {v(a,4)}, {v(W+4*t,4)}, {c}")
            if n + 2 < len(seq):
                prep(n + 2)

    def transpose(self, W, after):
        e = self.e
        e("s_mov_b32 s70, 0x05040100")
        e("s_mov_b32 s82, 0xffff0000"); e("s_mov_b32 s83, 0xffff0000")
        for p in range(4):
            e(f"s_waitcnt vmcnt({6-2*p+after})")
            for d in range(4):
                a, b = v(W + 4 * (2 * p + 1) + d), v(W + 4 * (2 * p) + d)
                e(f"v_perm_b32 {v(RK+8*d+p)}, {a}, {b}, s70")
                e(f"v_perm_b32 {v(RK+8*d+4+p)}, {a}, {b}, {sSEL}")

    def tcore(self, xa, xb, W8, D):
        e = self.e
        e(f"v_mov_b32_dpp v46, {xa} quad_perm:[1,0,3,2] {DPF}")
        if xb:
            e(f"v_cvt_pk_bf16_f32 v56, {xb}, {xb}")
        e(f"v_cvt_pk_bf16_f32 v47, {xa}, v46")
        for p in range(4):
            e(f"ds_swizzle_b32 {v(48+p)}, v47 offset:{(2*p << 5) | 0x18}")
        c = "0"
        if xb:
            for k in range(4):
                e(f"v_and_b32 {v(52+k)}, v56, {v(MK[k])}")
            e(f"v_mfma_f32_16x16x32_bf16 {v(D,4)}, v[52:55], {v(W8,4)}, 0")
            c = v(D, 4)
        e("s_waitcnt lgkmcnt(0)")
        for u in (0, 4, 2, 6, 1, 5, 3, 7):
            e(f"v_mfma_f32_16x16x32_bf16 {v(RV+4*u,4)}, v[48:51], {v(RK+4*u,4)}, {c}")
        for r in (0, 2, 1, 3):
            e(f"v_cndmask_b32 {v(D+r)}, {v(RV+4*r+r)}, {v(RV+4*(4+r)+r)}, s[82:83]")

    def bsum(self, D):
        e = self.e
        e(f"v_permlane32_swap_b32 {v(D)}, {v(D+2)}")
        e(f"v_permlane32_swap_b32 {v(D+1)}, {v(D+3)}")
        e(f"v_add_f32_dpp {v(D)}, {v(D+2)}, {v(D)} row_ror:8 {DPF}")
        e(f"v_add_f32_dpp {v(D+1)}, {v(D+3)}, {v(D+1)} row_ror:8 {DPF}")

    def bsum_store(self, D, soff, local, lin=False):
        e = self.e
        self.bsum(D)
        e(f"v_add_u32 {v(D)}, 0x200, {v(D)}")
        e(f"v_add_u32 {v(D+1)}, 0x200, {v(D+1)}")
        e(f"v_bfi_b32 {v(D)}, {sM10}, {vTa0 if lin else vTb0}, {v(D)}")
        e(f"v_bfi_b32 {v(D+1)}, {sM10}, {vTa1 if lin else vTb1}, {v(D+1)}")
        e(f"s_mov_b64 exec, {mJ8}")
        t = f"buffer_store_dwordx2 {v(D,2)}, {lin or vBO}, {WS}, {soff} offen"
        if local:
            self.lstore(t)
        else:
            e(t + " sc1")
        e("s_mov_b64 exec, -1")

    def acc_addr(self, mode):
        e = self.e
        e(f"s_mul_i32 s8, {sW}, {ACCS}")
        if mode == "N":
            e(f"v_and_b32 v16, 1, {vL}")
            e(f"v_lshlrev_b32 v16, 5, v16")
            e(f"v_and_b32 v17, 16, {vL}")
            e(f"v_lshrrev_b32 v18, 5, {vL}")
            e(f"v_lshlrev_b32 v18, 3, v18")
            e(f"v_add3_u32 v16, v16, v17, v18")
            e(f"v_bfe_u32 v17, {vL}, 1, 2")
            e(f"v_add_lshl_u32 v16, v16, v17, 2")
            e(f"v_add_u32 {vA0}, s8, v16")
            e(f"v_add_u32 {vA1}, 16, {vA0}")
        else:
            e(f"v_and_b32 v16, 32, {vL}")
            e(f"v_and_b32 v17, 7, {vL}")
            e(f"v_lshl_add_u32 v16, v17, 1, v16")
            e(f"v_bfe_u32 v17, {vL}, 4, 1")
            e(f"v_add_lshl_u32 v16, v16, v17, 2")
            e(f"v_add_u32 {vA0}, s8, v16")
            e(f"v_add_u32 {vA1}, 64, {vA0}")

    def acc_add(self, D, acc):
        e = self.e
        self.bsum(D)
        e(f"s_mov_b64 exec, {mJ8}")
        e(f"ds_write_b32 {vA0}, {v(D)} offset:{acc}")
        e(f"ds_write_b32 {vA1}, {v(D+1)} offset:{acc}")
        e("s_mov_b64 exec, -1")
        e("s_waitcnt lgkmcnt(0)")
        e("s_barrier")

    def acc_publish(self, acc, soff, local, round_bf16, D=16):
        e = self.e
        skip = self.lab("ap")
        e(f"s_cmp_lg_u32 {sW}, 0")
        e(f"s_cbranch_scc1 {skip}")
        e(f"ds_read_b128 {v(D,4)}, {vAR} offset:{acc}")
        e(f"ds_read_b128 {v(D+4,4)}, {vAR} offset:{acc+4*ACCS}")
        e("s_waitcnt lgkmcnt(0)")
        self.sumrows([D])
        if round_bf16:
            e(f"v_cvt_pk_bf16_f32 {v(D)}, {v(D)}, {v(D)}")
        e(f"v_bfi_b32 {v(D)}, {sM10}, {vTq}, {v(D)}")
        t = f"buffer_store_dword {v(D)}, {vL4}, {WS}, {soff} offen"
        if local:
            self.lstore(t)
        else:
            e(t + " sc1")
        e.label(skip)

    def poll(self, issue, lst, clean=True):
        e = self.e
        top = self.lab("poll")
        e(f"s_mov_b32 {sSP}, 0")
        e.label(top)
        issue()
        e(f"s_add_u32 {sSP}, {sSP}, 1")
        e(f"s_cmp_gt_u32 {sSP}, {SPIN}")
        e("s_cbranch_scc1 L_end")
        e("s_waitcnt vmcnt(0)")
        self.tagcheck(lst, "v21", clean)
        e("v_cmp_ne_u32 vcc, 0, v21")
        e(f"s_cbranch_vccnz {top}")

    def tagcheck(self, lst, dst, clean=True):
        e = self.e
        tmp, n = [], 0
        if clean:
            for r, t in lst:
                e(f"v_xor_b32 {r}, {r}, {t}")
            src = [r for r, _ in lst]
            while len(src) > 2:
                d = f"v{236+n}"
                n = (n + 1) % 8
                e(f"v_or3_b32 {d}, {src[0]}, {src[1]}, {src[2]}")
                src = src[3:] + [d]
            tmp = src
        else:
            by, rest = {}, []
            for r, t in lst:
                by.setdefault(t, []).append(r)
            for t, rs in by.items():
                while len(rs) >= 2:
                    a, b = rs.pop(), rs.pop()
                    d = f"v{236+n}"
                    n += 1
                    e(f"v_bitop3_b32 {d}, {a}, {b}, {t} bitop3:0x7e")
                    tmp.append(d)
                rest += [(r, t) for r in rs]
            if not tmp:
                r, t = rest.pop()
                e(f"v_xor_b32 v236, {r}, {t}")
                tmp = ["v236"]
            for k, (r, t) in enumerate(rest):
                d = tmp[k % len(tmp)]
                e(f"v_bitop3_b32 {d}, {r}, {t}, {d} bitop3:0xbe")
            while len(tmp) > 2:
                e(f"v_or3_b32 {tmp[0]}, {tmp[0]}, {tmp[1]}, {tmp[2]}")
                tmp = tmp[3:] + tmp[:1]
        if len(tmp) == 2:
            e(f"v_bitop3_b32 {dst}, {tmp[0]}, {tmp[1]}, {sM10} bitop3:0xa8")
        else:
            e(f"v_and_b32 {dst}, {sM10}, {tmp[0]}")

    def mpoll(self, loads, until=None, init=True):
        e = self.e
        regs = ["s[96:97]", "s[98:99]", "s[100:101]", "s[78:79]", "s[80:81]"]
        top = self.lab("mp")
        done = self.lab("md")
        if init:
            for m in range(len(loads)):
                e(f"s_mov_b64 {regs[m]}, -1")
        else:
            e(f"s_or_b64 vcc, {regs[0]}, {regs[1]}")
            for m in range(2, len(loads)):
                e(f"s_or_b64 vcc, vcc, {regs[m]}")
            e(f"s_cbranch_scc0 {done}")
        e(f"s_mov_b32 {sSP}, 0")
        e.label(top)
        for m, (txt, _) in enumerate(loads):
            sk = self.lab("ms")
            e(f"s_mov_b64 exec, {regs[m]}")
            e(f"s_cbranch_execz {sk}")
            e(txt)
            e.label(sk)
        e(f"s_add_u32 {sSP}, {sSP}, 1")
        e(f"s_cmp_gt_u32 {sSP}, {SPIN}")
        e("s_cbranch_scc1 L_end")
        e("s_waitcnt vmcnt(0)")
        for m, (_, r) in enumerate(loads):
            sk = self.lab("mc")
            e(f"s_mov_b64 exec, {regs[m]}")
            if self.cskip:
                e(f"s_cbranch_execz {sk}")
            self.tagcheck(self.g4(r), "v21")
            e(f"v_cmp_ne_u32 {regs[m]}, 0, v21")
            if self.cskip:
                e.label(sk)
        if until is not None:
            e(f"s_cmp_lg_u64 {regs[until]}, 0")
        else:
            e(f"s_or_b64 vcc, {regs[0]}, {regs[1]}")
            for m in range(2, len(loads)):
                e(f"s_or_b64 vcc, vcc, {regs[m]}")
        e("s_mov_b64 exec, -1")
        e(f"s_cbranch_scc1 {top}")
        e.label(done)

    def g4(self, base):
        return [(v(base + r), v(TG[r])) for r in range(4)]

    def reduce4(self, r):
        e = self.e
        e(f"v_permlane32_swap_b32 {v(r)}, {v(r+2)}")
        e(f"v_permlane32_swap_b32 {v(r+1)}, {v(r+3)}")
        e(f"v_add_f32 {v(r)}, {v(r)}, {v(r+2)}")
        e(f"v_add_f32 {v(r+1)}, {v(r+1)}, {v(r+3)}")
        e(f"v_permlane16_swap_b32 {v(r)}, {v(r+1)}")
        e(f"v_add_f32 {v(r)}, {v(r)}, {v(r+1)}")

    def c_loads(self, soff):
        e = self.e
        e(f"v_lshlrev_b32 v18, 1, {vL}")
        e(f"v_lshrrev_b32 v19, 3, {vL}")
        e(f"v_lshlrev_b32 v19, 1, v19")
        e(f"buffer_load_ushort v30, v18, {SS1}, {soff} offen")
        e(f"buffer_load_ushort v31, v19, {SS1}, {soff} offen offset:128")

    def div(self, dst, n, d, t1, t2):
        e = self.e
        e(f"v_min_f32 {d}, 0x7e800000, {d}")
        e(f"v_rcp_f32 {t1}, {d}")
        e(f"v_mul_f32 {t2}, {n}, {t1}")
        e(f"v_fma_f32 {d}, -{d}, {t2}, {n}")
        e(f"v_fma_f32 {dst}, {d}, {t1}, {t2}")

    def silu1(self, a):
        e = self.e
        e(f"v_lshlrev_b32 {a}, 16, {a}")
        e(f"v_mul_f32 v33, 0xbfb8aa3b, {a}")
        e("v_exp_f32 v33, v33")
        e("v_add_f32 v33, 1.0, v33")
        self.div(a, a, "v33", "v34", "v35")
        e(f"v_cvt_pk_bf16_f32 {a}, {a}, {a}")

    def silu2(self, X):
        e = self.e
        e(f"v_lshlrev_b32 v30, 16, v30")
        e(f"v_lshlrev_b32 v31, 16, v31")
        e(f"v_mul_f32 v33, 0xbfb8aa3b, v30")
        e(f"v_mul_f32 v34, 0xbfb8aa3b, v31")
        e("v_exp_f32 v33, v33")
        e("v_exp_f32 v34, v34")
        e("v_add_f32 v33, 1.0, v33")
        e("v_add_f32 v34, 1.0, v34")
        self.div("v30", "v30", "v33", "v35", "v36")
        self.div("v31", "v31", "v34", "v35", "v36")
        e("v_cvt_pk_bf16_f32 v30, v30, v30")
        e(f"v_cvt_pk_bf16_f32 {v(X+8)}, v31, v31")
        self.swz(X, "v30")

    def consts(self, perm=False):
        e = self.e
        e.c("constants")
        e(f"s_mov_b32 {sSEL}, 0x07060302")
        e(f"s_mov_b32 {sL2E}, 0x3fb8aa3b")
        e("s_mov_b32 s82, -1"); e("s_mov_b32 s83, 15")
        e("s_mov_b32 s84, 0x00ff00ff"); e("s_mov_b32 s85, 0x00ff00ff")
        e("s_mov_b32 s86, 0x0f0f0f0f"); e("s_mov_b32 s87, 0x0f0f0f0f")
        e("s_mov_b32 s88, 0xaaaaaaaa"); e("s_mov_b32 s89, 0xaaaaaaaa")
        e("s_mov_b32 s90, 0"); e("s_mov_b32 s91, -1")
        e(f"v_mov_b32 v16, 0xffff")
        e(f"v_mov_b32 v17, {sHI}")
        e(f"v_cndmask_b32 v16, v16, v17, {mODD}")
        e(f"v_bfe_u32 v17, {vL}, 1, 2")
        if perm:
            e(f"v_mov_b32 v18, 0x0c0c0302")
            e(f"v_mov_b32 v19, 0x03020c0c")
            e(f"v_cndmask_b32 v18, v18, v19, {mODD}")
            e(f"v_mov_b32 v19, 0x0c0c0c0c")
        for k in range(4):
            e(f"v_cmp_eq_u32 vcc, {k}, v17")
            e(f"v_cndmask_b32 {v(MK[k])}, 0, v16, vcc")
            if perm:
                e(f"v_cndmask_b32 {v(PS[k])}, v19, v18, vcc")
        e(f"v_and_b32 v16, 15, {vL}")
        e(f"v_lshlrev_b32 v16, 5, v16")
        e(f"v_and_b32 v17, 16, {vL}")
        e(f"v_lshrrev_b32 v18, 5, {vL}")
        e(f"v_lshlrev_b32 v18, 3, v18")
        e(f"v_add3_u32 {vBO}, v16, v17, v18")
        e(f"v_lshlrev_b32 {vL4}, 2, {vL}")
        e(f"v_lshrrev_b32 v16, 4, {vL}")
        e(f"v_mul_u32_u24 v17, {ACCS}, v16")
        e(f"v_and_b32 v18, 0xf0, {vL16}")
        e(f"v_add_u32 {vAR}, v17, v18")
        e(f"v_lshl_add_u32 {vCO}, v16, 2, v18")
        self.acc_addr("N")

    def tags(self, touch=()):
        e = self.e
        e.c("tags from epoch+1")
        e("s_waitcnt lgkmcnt(0)")
        self.stamp(15)
        e("s_add_u32 s26, s26, 0x40100401")
        e("s_addc_u32 s27, s27, 0")
        e(f"v_mov_b32 {v(vE0)}, s26")
        e(f"v_mov_b32 {v(vE1)}, s27")
        e(f"v_and_b32 {v(TG[0])}, {sM10}, {v(vE0)}")
        e(f"v_bfe_u32 {v(TG[1])}, {v(vE0)}, 10, 10")
        e(f"v_bfe_u32 {v(TG[2])}, {v(vE0)}, 20, 10")
        e(f"v_alignbit_b32 {v(TG[3])}, {v(vE1)}, {v(vE0)}, 30")
        e(f"v_and_b32 {v(TG[3])}, {sM10}, {v(TG[3])}")
        e(f"v_cndmask_b32 {vTa0}, {v(TG[0])}, {v(TG[2])}, {mODD}")
        e(f"v_cndmask_b32 {vTa1}, {v(TG[1])}, {v(TG[3])}, {mODD}")
        e(f"v_cndmask_b32 {vTb0}, {v(TG[0])}, {v(TG[2])}, {mHI}")
        e(f"v_cndmask_b32 {vTb1}, {v(TG[1])}, {v(TG[3])}, {mHI}")
        e(f"v_and_b32 v16, 16, {vL}")
        e(f"v_cmp_ne_u32 vcc, 0, v16")
        e(f"v_cndmask_b32 {vTs}, {vTb0}, {vTb1}, vcc")
        e(f"v_and_b32 v16, 3, {vL}")
        e(f"v_mul_u32_u24 v16, 10, v16")
        e(f"v_lshrrev_b64 v[18:19], v16, {v(vE0,2)}")
        e(f"v_and_b32 {vTq}, {sM10}, v18")
        e(f"v_bfe_u32 v16, {vL}, 3, 2")
        e(f"v_mul_u32_u24 v16, 10, v16")
        e(f"v_lshrrev_b64 v[18:19], v16, {v(vE0,2)}")
        e(f"v_and_b32 {vTg}, {sM10}, v18")
        if self.force is None:
            sk = self.lab("cen")
            e(f"s_cmp_lg_u32 {sW}, 2")
            e(f"s_cbranch_scc1 {sk}")
            e("s_getreg_b32 s8, hwreg(HW_REG_XCC_ID)")
            e("s_and_b32 s8, s8, 0xff")
            e("s_lshl_b32 s8, s8, 16")
            e(f"v_or_b32 v16, s8, {vTq}")
            e(f"s_lshl_b32 s8, {sX}, 5")
            e(f"s_add_u32 s8, s8, {sJ}")
            e(f"s_lshl_b32 s8, s8, 4")
            e(f"s_add_u32 s8, s8, {CEN}")
            e(f"v_lshlrev_b32 v17, 2, {vL}")
            e("s_mov_b64 exec, 15")
            e(f"buffer_store_dword v16, v17, {WS}, s8 offen")
            e("s_mov_b64 exec, -1")
            e.label(sk)

    def touch(self, items):
        if not self.pretouch:
            return
        e = self.e
        sk = self.lab("tch")
        e(f"s_cmp_lg_u32 {sW}, 3")
        e(f"s_cbranch_scc1 {sk}")
        e(f"v_lshlrev_b32 v17, 7, {vL}")
        for fn, n in items:
            fn("s8")
            e(f"s_mov_b32 exec_lo, {min((1 << n) - 1, 0xffffffff)}")
            e(f"s_mov_b32 exec_hi, {((1 << n) - 1) >> 32}")
            e(f"buffer_load_dword {vDUM}, v17, {WS}, s8 offen sc1")
        e("s_mov_b64 exec, -1")
        e.label(sk)

    def census_load(self, r):
        e = self.e
        e(f"s_lshl_b32 s10, {sX}, 9")
        e(f"s_add_u32 s10, s10, {CEN}")
        e(f"v_and_b32 v16, 0x1f0, {vL16}")
        e(f"buffer_load_dwordx4 {v(r,4)}, v16, {WS}, s10 offen sc1")

    def sumrows(self, regs):
        e = self.e
        for r in regs:
            e(f"v_pk_add_f32 {v(r,2)}, {v(r,2)}, {v(r+4,2)}")
            e(f"v_pk_add_f32 {v(r+2,2)}, {v(r+2,2)}, {v(r+6,2)}")
        for r in regs:
            e(f"v_permlane32_swap_b32 {v(r)}, {v(r+2)}")
            e(f"v_permlane32_swap_b32 {v(r+1)}, {v(r+3)}")
        for r in regs:
            e(f"v_pk_add_f32 {v(r,2)}, {v(r,2)}, {v(r+2,2)}")
        for r in regs:
            e(f"v_permlane16_swap_b32 {v(r)}, {v(r+1)}")
        for r in regs:
            e(f"v_add_f32 {v(r)}, {v(r)}, {v(r+1)}")

    def census_eval(self, r, dst):
        e = self.e
        e(f"v_readfirstlane_b32 s10, {v(r)}")
        e(f"v_xor_b32 v17, {v(r)}, {v(TG[0])}")
        for k in range(1, 4):
            e(f"v_bitop3_b32 v17, {v(r+k)}, {v(TG[k])}, v17 bitop3:0xbe")
        e(f"v_and_b32 v17, {sM10}, v17")
        e(f"v_xor_b32 v18, s10, {v(r)}")
        e(f"v_or_b32 v17, v17, v18")
        e(f"v_cmp_ne_u32 vcc, 0, v17")
        e("s_cmp_eq_u64 vcc, 0")
        e(f"s_cselect_b32 {dst}, 1, 0")

    def off_p4(self, d):
        e = self.e
        e(f"s_lshl_b32 {d}, {sX}, 5")
        e(f"s_add_u32 {d}, {d}, {sJ}")
        e(f"s_mul_i32 {d}, {d}, 1152")
        e(f"s_add_u32 {d}, {d}, {P4}")

    def attention(self, S, qidx, qlag, stop):
        e = self.e
        e.c("==== attention ====")
        S.step(stop=qidx)
        S.step(stop=qidx)
        e(f"s_mul_i32 s9, {sX}, {18*2048}")
        e(f"s_lshr_b32 s10, {sJ}, 4")
        e(f"s_lshl_b32 s10, s10, 10")
        e(f"s_add_u32 s9, s9, s10")
        e(f"s_lshl_b32 s10, {sW}, 7")
        e(f"s_add_u32 s9, s9, s10")
        e(f"s_add_u32 s9, s9, {P2}")
        e(f"s_add_u32 s11, s9, {8*2048}")
        e(f"s_add_u32 s64, s9, {16*2048}")
        e(f"v_lshrrev_b32 v16, 3, {vL}")
        e(f"v_lshlrev_b32 v16, 11, v16")
        e(f"v_and_b32 v17, 0x70, {vL16}")
        e(f"v_add_u32 v28, v16, v17")
        e(f"v_and_b32 v16, 3, {vL}")
        e(f"v_lshlrev_b32 v16, 4, v16")
        e(f"v_and_b32 v17, 4, {vL}")
        e(f"v_lshrrev_b32 v18, 5, {vL}")
        e(f"v_lshlrev_b32 v18, 3, v18")
        e(f"v_add3_u32 v16, v16, v17, v18")
        e(f"v_bfe_u32 v17, {vL}, 4, 1")
        e(f"s_lshr_b32 s10, {sW}, 1")
        e(f"s_lshl_b32 s10, s10, 6")
        e(f"s_and_b32 s8, {sW}, 1")
        e(f"s_lshl_b32 s8, s8, 1")
        e(f"s_add_u32 s10, s10, s8")
        e(f"v_add3_u32 v16, v16, v17, s10")
        e(f"v_lshlrev_b32 v26, 1, v16")
        e(f"v_and_b32 v16, 8, {vL}")
        e(f"v_lshlrev_b32 v29, 2, v16")
        e(f"v_lshlrev_b32 v16, 5, v16")
        e(f"v_and_b32 v18, 3, {vL}")
        e(f"v_lshlrev_b32 v18, 6, v18")
        e(f"v_and_b32 v17, 0x30, {vL}")
        e(f"v_add3_u32 v27, v16, v17, v18")

        def issue():
            for r in range(4):
                e(f"v_mov_b32 {v(44+r)}, {v(TG[r])}")
            e(f"buffer_load_dwordx4 v[32:35], v28, {WS}, s9 offen sc1")
            e(f"buffer_load_dwordx4 v[36:39], v28, {WS}, s11 offen sc1")
            e("s_mov_b64 exec, 0xffff")
            e(f"buffer_load_dwordx4 v[44:47], v28, {WS}, s64 offen sc1")
            e("s_mov_b64 exec, -1")
        e(f"s_lshl_b32 s8, {sW}, 2")
        e(f"v_add_u32 v30, s8, v29")
        e(f"v_and_b32 v16, 32, {vL}")
        e(f"v_lshlrev_b32 v16, 2, v16")
        e(f"v_and_b32 v17, 12, {vL}")
        e(f"v_lshlrev_b32 v17, 3, v17")
        e(f"v_and_b32 v18, 19, {vL}")
        e(f"v_add3_u32 v22, v16, v17, v18")
        e(f"s_mul_i32 s8, {sW}, 1152")
        e(f"s_add_u32 s10, s8, {L_ACCO}")
        e(f"v_lshl_add_u32 v22, v22, 2, s10")
        e(f"v_and_b32 v16, 8, {vL}")
        e(f"v_add_u32 v31, s8, v16")
        e(f"v_lshrrev_b32 v16, 3, {vL}")
        e(f"v_mul_u32_u24 v24, 1152, v16")
        e(f"v_and_b32 v17, 0x70, {vL16}")
        e(f"s_lshl_b32 s8, {sW}, 7")
        e(f"v_add3_u32 v23, v24, v17, s8")
        e(f"v_and_b32 v16, 0x30, {vL}")
        e(f"v_lshrrev_b32 v19, 2, v16")
        e(f"v_lshrrev_b32 v17, 2, v17")
        e(f"v_lshl_add_u32 v20, v16, 1, v17")
        self.off_p4("s12")
        e(f"s_add_u32 s13, s12, s8")
        S.run(qidx)
        cen = self.force is None
        if cen:
            e(f"s_lshl_b32 s10, {sX}, 9")
            e(f"s_add_u32 s10, s10, {CEN}")
            e(f"v_and_b32 v16, 0x1f0, {vL16}")
            e(f"buffer_load_dwordx4 v[40:43], v16, {WS}, s10 offen sc1")
            S.extra("cen")
        issue()
        S.extra("q0")
        S.extra("q1")
        S.extra("q")
        S.run(min(stop, S.index("V7") + 1, qidx + qlag + self.qlx) if self.qlx else min(stop, qidx + qlag))
        S.wait_for("q")
        if cen:
            self.census_eval(40, sLOC)
        chk = self.g4(32) + self.g4(36) + self.g4(44)
        self.tagcheck(chk, "v21")
        e(f"v_cmp_ne_u32 vcc, 0, v21")
        ok = self.lab("qok")
        e(f"s_cbranch_vccz {ok}")
        self.stamp(13)
        self.poll(issue, chk)
        e.label(ok)
        self.stamp(5)

        def vstep():
            S.step(stop=stop)
        vstep()
        e("v_pk_add_f32 v[32:33], v[32:33], v[44:45]")
        e("v_pk_add_f32 v[34:35], v[34:35], v[46:47]")
        self.sumrows([32])
        e(f"v_add_f32_dpp v32, v32, v32 row_ror:8 {DPF}")
        e("v_cvt_pk_bf16_f32 v32, v32, v32")
        e(f"ds_write_b16 v26, v32 offset:{L_Q}")
        for _ in range(self.pre1):
            S.step(stop=min(stop, S.index("V7") + 1))
        e("s_waitcnt lgkmcnt(0)")
        e("s_barrier")
        e(f"ds_read_b128 v[32:35], v27 offset:{L_Q}")
        v7 = S.index("V7") + 1
        if self.vburst:
            while S.step(wait=False, stop=stop if self.wb == 1 else min(stop, v7)):
                pass
        else:
            vstep()
        e("s_waitcnt lgkmcnt(0)")
        for k in range(4):
            e(f"v_cndmask_b32 {v(36+k)}, {v(32+k)}, 0, {mT2}")
        for k in range(4):
            e(f"v_cndmask_b32 {v(32+k)}, 0, {v(32+k)}, {mT2}")
        for u in range(4):
            e(f"v_mfma_f32_16x16x32_bf16 {v(40+4*u,4)}, {v(RK+8*u+4,4)}, v[36:39], 0")
        for u in range(4):
            e(f"v_mfma_f32_16x16x32_bf16 {v(40+4*u,4)}, {v(RK+8*u,4)}, v[32:35], {v(40+4*u,4)}")
        e(f"s_lshl_b32 s12, {sX}, 5")
        e(f"s_add_u32 s12, s12, {sJ}")
        e(f"s_lshl_b32 s12, s12, 4")
        e(f"s_add_u32 s12, s12, {P4S}")
        e(f"s_lshl_b32 s8, {sW}, 3")
        e("s_mov_b32 s10, 0x00010001"); e("s_mov_b32 s11, 0x00010001")
        for u in range(4):
            e(f"v_mov_b32_dpp {v(56+u)}, {v(40+4*u)} quad_perm:[0,0,0,0] {DPF}")
            for i in range(1, 4):
                e(f"v_add_f32_dpp {v(56+u)}, {v(40+4*u+i)}, {v(56+u)} quad_perm:[{i},{i},{i},{i}] {DPF}")
        self.rb2("v56", "v57", "v60")
        self.rb2("v58", "v59", "v61")
        for u in range(4):
            e(f"v_mul_f32 {v(56+u)}, 0x3db504f3, {v(56+u)}")
        self.rb2("v56", "v57", "v60")
        self.rb2("v58", "v59", "v61")
        e("v_max3_f32 v60, v56, v57, v58")
        e("v_max_f32 v60, v60, v59")
        e(f"v_max_f32_dpp v60, v60, v60 row_half_mirror {DPF}")
        e("v_mov_b32 v61, v60")
        e("v_permlane16_swap_b32 v60, v61")
        e("v_max_f32 v60, v60, v61")
        e("v_mov_b32 v61, v60")
        e("v_permlane32_swap_b32 v60, v61")
        e("v_max_f32 v60, v60, v61")
        if not self.vburst:
            vstep()
        if self.wb == 2:
            while S.step(wait=False, stop=stop):
                pass
        for u in range(4):
            e(f"v_sub_f32 {v(56+u)}, {v(56+u)}, v60")
        for u in range(4):
            e(f"v_mul_f32 {v(56+u)}, {sL2E}, {v(56+u)}")
        for u in range(4):
            e(f"v_exp_f32 {v(56+u)}, {v(56+u)}")
        for u in range(4):
            e(f"v_cvt_pk_bf16_f32 {v(56+u)}, {v(56+u)}, {v(56+u)}")
        dp = DPF + " bound_ctrl:0"

        def aprep(t):
            p = v(56 + (t >> 1))
            a = RK + 4 * t
            for k in range(4):
                if (k >= 2) if (t & 1) == 0 else (k < 2):
                    sh = "row_shr:4" if (t & 1) == 0 else "row_shl:4"
                    e(f"v_and_b32_dpp {v(a+k)}, {p}, {v(MK[k])} {sh} {dp}")
                else:
                    e(f"v_and_b32 {v(a+k)}, {p}, {v(MK[k])}")
        for u in range(4):
            e(f"v_and_b32 {v(44+u)}, {sHI}, {v(56+u)}")
        e("v_add_f32 v44, v44, v45")
        e("v_add_f32 v46, v46, v47")
        e("v_add_f32 v61, v44, v46")
        aprep(0)
        e(f"v_add_f32_dpp v61, v61, v61 row_half_mirror {DPF}")
        e("v_mov_b32 v44, v61")
        aprep(1)
        e("v_permlane16_swap_b32 v61, v44")
        e("v_add_f32 v61, v61, v44")
        e("v_mov_b32 v44, v61")
        aprep(2)
        e("v_permlane32_swap_b32 v61, v44")
        e("v_add_f32 v61, v61, v44")
        e("s_mov_b64 exec, 0x101")
        e(f"ds_write_b64 v31, v[60:61] offset:{L_ACCO+1024}")
        e("s_mov_b64 exec, -1")
        for t in range(3, 8):
            aprep(t)
        while not S.issued("V7"):
            vstep()
        e("s_waitcnt lgkmcnt(0)")
        e("s_barrier")
        e(f"ds_read_b128 v[44:47], v24 offset:{L_ACCO+1024}")

        def pv(t):
            S.wait_for(f"V{t}")
            c = "0" if t == 0 else "v[40:43]"
            e(f"v_mfma_f32_16x16x32_bf16 v[40:43], {v(RK+4*t,4)}, {v(RV+4*t,4)}, {c}")
            if t < 7 and S.pos < min(stop, len(S.items)) and S.pos - 1 - S.index(f"V{t}") <= S.items[S.pos][2]:
                S.step(wait=False, stop=stop)
        for t in range(self.npv):
            pv(t)
        e("s_waitcnt lgkmcnt(0)")
        for r in (44, 46):
            e(f"v_max_f32_dpp {v(r+4)}, {v(r)}, {v(r)} row_ror:8 {DPF}")
        for sw in ("16", "32"):
            for r in (48, 50):
                e(f"v_mov_b32 {v(r+1)}, {v(r)}")
            for r in (48, 50):
                e(f"v_permlane{sw}_swap_b32 {v(r)}, {v(r+1)}")
            for r in (48, 50):
                e(f"v_max_f32 {v(r)}, {v(r)}, {v(r+1)}")
        for r in (44, 46):
            e(f"v_sub_f32 {v(r+5)}, {v(r)}, {v(r+4)}")
        for r in (49, 51):
            e(f"v_mul_f32 {v(r)}, {sL2E}, {v(r)}")
        for r in (49, 51):
            e(f"v_exp_f32 {v(r)}, {v(r)}")
        for r in (44, 46):
            e(f"v_mul_f32 {v(r)}, 0x3e000000, {v(r+4)}")
        for r in (45, 47):
            e(f"v_mul_f32 {v(r)}, {v(r)}, {v(r+4)}")
        e("v_readlane_b32 s9, v49, s8")
        e("v_readlane_b32 s8, v51, s8")
        self.reduce4(44)
        e("v_mov_b32 v48, s9")
        e("v_mov_b32 v49, s8")
        e(f"v_add_f32_dpp v44, v44, v44 row_ror:8 {DPF}")
        e(f"v_cndmask_b32 v48, v48, v49, {mHI}")
        e(f"v_bfi_b32 v44, {sM10}, {vTs}, v44")
        e("s_mov_b64 exec, s[10:11]")
        self.lstore(f"buffer_store_dword v44, v19, {WS}, s12 offen")
        S.extra("st")
        e("s_mov_b64 exec, -1")
        self.stamp(6)
        for t in range(self.npv, 8):
            pv(t)
        for r in range(4):
            e(f"v_mul_f32 {v(40+r)}, {v(40+r)}, v48")
        self.stamp(7)
        e(f"ds_write2_b32 v22, v40, v41 offset0:0 offset1:4")
        e(f"ds_write2_b32 v22, v42, v43 offset0:8 offset1:12")
        e("s_waitcnt lgkmcnt(0)")
        e("s_barrier")
        e(f"ds_read_b128 v[40:43], v23 offset:{L_ACCO}")
        e("s_waitcnt lgkmcnt(0)")
        self.reduce4(40)
        e(f"v_add_f32_dpp v40, v40, v40 row_ror:8 {DPF}")
        e(f"v_bfi_b32 v40, {sM10}, {vTq}, v40")
        e(f"s_mov_b64 exec, {mJ8}")
        self.lstore(f"buffer_store_dword v40, v20, {WS}, s13 offen")
        S.extra("p4")
        e("s_mov_b64 exec, -1")
        self.stamp(8)

    def build(self):
        e = self.e
        k0 = self.k0
        e("s_cmp_ge_u32 s2, 256")
        e("s_cbranch_scc1 L_end")
        e("s_load_dwordx16 s[16:31], s[0:1], 0")
        if self.prefetch == 2:
            e.c("thread t touches line t of this kernel's code so that later instruction fetches hit L2")
            e("s_getpc_b64 s[8:9]")
            e.label("L_pc")
            e.raw("    .set CODE_LEFT, L_code_end - L_pc")
            e("v_lshlrev_b32 v16, 7, v0")
            e("v_min_u32 v16, CODE_LEFT-4, v16")
            e("v_mov_b32 v17, s9")
            e("v_add_co_u32 v16, vcc, s8, v16")
            e("v_addc_co_u32 v17, vcc, 0, v17, vcc")
            e(f"global_load_dword {vDUM}, v[16:17], off")
        e("s_load_dwordx8 s[32:39], s[0:1], 64")
        e("s_load_dwordx4 s[40:43], s[0:1], 96")
        if self.stamps or self.hold:
            e("s_memrealtime s[98:99]")
        e("v_lshrrev_b32 v16, 6, v0")
        e("v_and_b32 v0, 63, v0")
        e(f"v_readfirstlane_b32 {sW}, v16")
        e(f"v_lshlrev_b32 {vL16}, 4, v0")
        e(f"s_and_b32 {sX}, s2, 7")
        e(f"s_lshr_b32 {sJ}, s2, 3")
        if self.prefetch == 1:
            sk = self.lab("pf")
            e(f"s_cmp_lg_u32 {sW}, {self.pfw}")
            e(f"s_cbranch_scc1 {sk}")
            e("s_getpc_b64 s[8:9]")
            e.label("L_pc")
            e(f"v_lshlrev_b32 v16, 7, v0")
            e.raw("    .set CODE_LEFT, L_code_end - L_pc")
            for k in range(3):
                e(f"v_cmp_gt_u32 vcc, CODE_LEFT-4, v16")
                e("s_and_saveexec_b64 s[10:11], vcc")
                e(f"s_cbranch_execz L_pfx{k}")
                e(f"global_load_dword {vDUM}, v16, s[8:9]")
                e.label(f"L_pfx{k}")
                e("s_mov_b64 exec, -1")
                e("v_add_u32 v16, 0x2000, v16")
            e.label(sk)
        e(f"s_lshl_b32 s12, {sX}, 1")
        e(f"s_lshr_b32 s13, {sJ}, 4")
        e(f"s_add_u32 s12, s12, s13")
        e(f"s_lshl_b32 s12, s12, 24")
        e(f"s_add_u32 s12, s12, {61440*256}")
        e(f"s_and_b32 s13, {sJ}, 15")
        e(f"s_mul_i32 s94, s13, {((8*self.rm) % 128)*0x2000 if self.rm else 0x22000}")
        e("s_mov_b32 s50, 0x100000"); e("s_mov_b32 s51, 0x20000")
        e(f"s_lshl_b32 s95, {sW}, 10")
        e(f"v_and_b32 v16, 15, {vL}")
        e(f"v_lshlrev_b32 v16, 6, v16")
        e(f"v_and_b32 v17, 0x30, {vL}")
        e(f"v_add3_u32 {vKO}, v16, v17, s95")
        e(f"s_cmp_lt_u32 {sJ}, 18")
        e(f"s_cselect_b32 s15, {sW}, 1")
        e("s_cmp_lg_u32 s15, 0")
        e("s_cbranch_scc1 L_nomod")
        self.voff9(6912)
        e(f"v_lshlrev_b32 v18, 1, {vL}")
        e(f"v_lshrrev_b32 v19, 3, {vL}")
        e(f"v_lshlrev_b32 v19, 1, v19")
        e(f"s_mul_i32 s14, {sX}, {72*6912}")
        e(f"s_lshl_b32 s8, {sJ}, 7")
        e(f"s_add_u32 s14, s14, s8")
        e(f"s_mul_i32 s8, {sX}, 144")
        e("s_mov_b32 s66, 1152"); e("s_mov_b32 s67, 0x20000")
        e(f"s_mov_b32 s58, {576*6912}"); e("s_mov_b32 s59, 0x20000")
        e("s_waitcnt lgkmcnt(0)")
        e("s_mov_b32 s64, s34"); e("s_mov_b32 s65, s35")
        e("s_mov_b32 s56, s36"); e("s_mov_b32 s57, s37")
        e(f"buffer_load_ushort v30, v18, {SS1}, s8 offen")
        e(f"buffer_load_ushort v31, v19, {SS1}, s8 offen offset:128")
        self.wloads(RW1, SW1, "s14", 6912, 0, 9)
        e.label("L_nomod")
        e("s_waitcnt lgkmcnt(0)")
        e("s_add_u32 s48, s18, s12"); e("s_addc_u32 s49, s19, 0")
        if self.hold:
            e("v_mov_b32 v250, s98")
        if self.holdg:
            e("s_and_b32 s8, s98, 0x7fffffff")
            e("s_not_b32 s8, s8")
            e("v_mov_b32 v251, s8")
            e("v_mov_b32 v252, 0")
            e("s_mov_b32 s96, s40"); e("s_mov_b32 s97, s41")
            hg = self.lab("hg")
            e(f"s_cmp_lg_u32 {sW}, 0")
            e(f"s_cbranch_scc1 {hg}")
            e("s_mov_b64 exec, 1")
            e("global_atomic_umax v252, v251, s[40:41] sc1")
            e("s_mov_b64 exec, -1")
            e.label(hg)
        e("s_load_dwordx2 s[26:27], s[42:43], 0")
        if self.tlbw:
            e.c("one wave starts the address translations of every buffer used later (values are ignored)")
            tw = self.lab("tw")
            e(f"s_cmp_lg_u32 {sW}, 2")
            e(f"s_cbranch_scc1 {tw}")
            e("s_add_u32 s8, s20, s12"); e("s_addc_u32 s9, s21, 0")
            e(f"v_lshlrev_b32 v16, 21, {vL}")
            e("s_mov_b64 exec, 1")
            for p in ("s[8:9]", "s[42:43]", "s[16:17]", "s[34:35]", "s[38:39]"):
                e(f"global_load_dword {vDUM}, v16, {p}")
            e("s_mov_b64 exec, 3")
            e(f"global_load_dword {vDUM}, v16, s[36:37]")
            e("s_mov_b64 exec, 7")
            for p in ("s[22:23]", "s[24:25]", "s[28:29]", "s[30:31]", "s[32:33]"):
                e(f"global_load_dword {vDUM}, v16, {p}")
            e("s_mov_b64 exec, -1")
            e.label(tw)
        if not self.kdelay:
            self.kvloads(RK, vKO, SK, 0, k0)
        if self.stamps:
            e(f"v_mov_b32 {vST}, 0")
            e(f"v_writelane_b32 {vST}, s98, 0")
        e(f"s_mov_b32 {sM10}, 0x3ff")
        e(f"s_mov_b32 {sHI}, 0xffff0000")
        e(f"s_mov_b32 {sLOC}, 0")
        e(f"v_add_u32 {vVO}, s95, {vL16}")
        self.srd(WS, "s42", "s43", WS_BYTES)
        e("s_add_u32 s52, s20, s12"); e("s_addc_u32 s53, s21, 0"); e("s_mov_b32 s54, 0x100000"); e("s_mov_b32 s55, 0x20000")
        self.consts()
        if self.kdelay:
            self.kvloads(RK, vKO, SK, 0, k0)
        self.tags()
        e(f"s_cmp_ge_u32 {sJ}, 27")
        e("s_cbranch_scc1 L_MR")
        e(f"s_cmp_ge_u32 {sJ}, 18")
        e("s_cbranch_scc1 L_WD")
        self.role_gu()
        self.role_wd()
        self.role_mr()
        e.label("L_fin")
        if self.hold:
            if self.holdg:
                e.label("L_hold")
                e("s_sleep 32")
                e("global_load_dword v250, v252, s[40:41] sc1")
                e("s_waitcnt vmcnt(0)")
                e("v_readfirstlane_b32 s10, v250")
                e("s_memrealtime s[8:9]")
                e("s_not_b32 s10, s10")
                e("s_waitcnt lgkmcnt(0)")
                e("s_and_b32 s8, s8, 0x7fffffff")
                e("s_sub_u32 s8, s8, s10")
                e(f"s_cmp_lt_u32 s8, {self.hold - 300}")
                e("s_cbranch_scc1 L_hold")
                e.label("L_hold2")
                e("s_sleep 4")
                e("s_memrealtime s[8:9]")
                e("s_waitcnt lgkmcnt(0)")
                e("s_and_b32 s8, s8, 0x7fffffff")
                e("s_sub_u32 s8, s8, s10")
                e(f"s_cmp_lt_u32 s8, {self.hold}")
                e("s_cbranch_scc1 L_hold2")
                e("s_branch L_end")
            e("v_readfirstlane_b32 s10, v250")
            e.label("L_hold" if not self.holdg else "L_holdx")
            e("s_sleep 4")
            e("s_memrealtime s[8:9]")
            e("s_waitcnt lgkmcnt(0)")
            e("s_sub_u32 s8, s8, s10")
            e(f"s_cmp_lt_u32 s8, {self.hold}")
            e("s_cbranch_scc1 L_hold")
        if self.stamps:
            e(f"s_lshl_b32 s8, s2, 3")
            e(f"s_add_u32 s8, s8, {sW}")
            e(f"s_lshl_b32 s8, s8, 8")
            e(f"s_add_u32 s8, s8, {STAMP}")
            e(f"v_lshlrev_b32 v16, 2, {vL}")
            e(f"buffer_store_dword {vST}, v16, {WS}, s8 offen")
        e.label("L_end")
        return e

    def role_mr(self):
        e = self.e
        thr = self.thr_mr
        npre = self.mr_pre
        e.label("L_MR")
        e.c("================ MR ================")
        e(f"s_sub_u32 {sR}, {sJ}, 27")
        e(f"s_lshl_b32 {sR}, {sR}, 3")
        e(f"s_add_u32 {sR}, {sR}, {sX}")

        def off_x(base):
            def f(d):
                e(f"s_mul_i32 {d}, {sX}, 2304")
                e(f"s_add_u32 {d}, {d}, {base}")
            return f
        self.srd(SS1, "s34", "s35", 1152)
        self.srd(SW1, "s36", "s37", 576 * 6912)
        e(f"s_cmp_ge_u32 {sR}, 36")
        e(f"s_cselect_b32 s58, 0, s58")
        e(f"v_lshrrev_b32 v16, 3, {vL}")
        e(f"v_mul_u32_u24 v17, 10, v16")
        e(f"v_and_b32 v18, 7, {vL}")
        e(f"v_lshl_add_u32 v17, v18, 1, v17")
        e(f"s_mul_i32 s8, {sW}, 80")
        e(f"buffer_load_ushort v30, v17, {SS1}, s8 offen")
        e(f"v_mul_u32_u24 v16, {5*6912}, v16")
        e(f"v_lshl_add_u32 {vWA}, v18, 4, v16")
        e(f"s_mul_i32 s14, {sW}, {40*6912}")
        e(f"s_lshl_b32 s8, {sR}, 7")
        e(f"s_add_u32 s14, s14, s8")
        e(f"s_add_u32 s14, s14, {18*128}")
        S = self.stream(self.it_w(RW1, SW1, "s14", 6912, 0, 5, thr) + self.it_kv("K", self.k0, 8, thr) + self.it_kv("V", 0, 8, thr))
        S.extra("c")
        S.run(self.k0 + thr + 1)
        S.wait_for("c")
        self.silu1("v30")
        self.swz(48, "v30", 5)

        def off_p11(d):
            e(f"s_mul_i32 {d}, {sX}, {3*2304}")
            e(f"s_add_u32 {d}, {d}, {P11}")
        self.touch([(self.off_p4, 8), (off_x(P9), 18), (off_p11, 45)])
        e("s_waitcnt lgkmcnt(0)")
        S.run(self.k0 + 5 + thr + 1)
        S.wait_for("W4")
        self.core(48, RW1, 5, 40, 32)
        self.acc_add(40, L_ACC1)
        sk = self.lab("mri")
        e(f"s_cmp_ge_u32 {sR}, 36")
        e(f"s_cbranch_scc1 {sk}")
        e(f"s_lshl_b32 s8, {sR}, 8")
        e(f"s_add_u32 s8, s8, {P6}")
        self.acc_publish(L_ACC1, "s8", False, False)
        e.label(sk)
        self.stamp(4)
        self.attention(S, 13 + self.qpos, thr, 21)
        e.c("================ reducers: one wave per 64-column slice ================")
        e(f"s_sub_u32 s8, {sJ}, 27")
        e(f"s_lshl_b32 s8, s8, 1")
        e(f"s_add_u32 s8, s8, {sW}")
        e(f"s_cmp_gt_u32 {sW}, 1")
        e("s_cbranch_scc1 L_pfs" if (self.slowpf or self.dnpf) else "s_cbranch_scc1 L_fin")
        e("s_cmp_gt_u32 s8, 8")
        e("s_cbranch_scc1 L_fin")
        self.srd(SS2, "s16", "s17", 1152)
        e("s_lshl_b32 s9, s8, 7")
        e(f"v_lshlrev_b32 v25, 1, {vL}")
        e(f"buffer_load_ushort v62, v25, {SS2}, s9 offen")
        e(f"s_mul_i32 s12, {sX}, {3*2304}")
        e(f"s_add_u32 s12, s12, {P11}")
        if self.cstat:
            e("s_lshl_b32 s13, s8, 4")
            e("s_add_u32 s13, s13, s12")
        else:
            e(f"s_add_u32 s13, s12, s9")
        e(f"s_add_u32 s13, s13, 4608")
        e("s_lshl_b32 s8, s8, 8")
        e("s_add_u32 s12, s12, s8")
        e(f"s_add_u32 s10, s8, {P6}")
        e(f"s_add_u32 s11, s10, 4608")
        e(f"v_lshrrev_b32 v16, 4, {vL}")
        e(f"v_lshlrev_b32 v26, 2, v16")
        e(f"v_mul_u32_u24 v16, 2304, v16")
        e(f"v_and_b32 v17, 0xf0, {vL16}")
        e(f"v_add_u32 v27, v16, v17")
        e(f"s_add_u32 s14, s8, {P5}")
        e(f"s_add_u32 s15, s14, {4*2304}")
        off_x(P9)("s64")
        e("s_add_u32 s64, s64, s8")
        e("s_mov_b32 s66, 0x00010001"); e("s_mov_b32 s67, 0x00010001")
        e("s_movk_i32 s68, 9216")
        l5 = [(f"buffer_load_dwordx4 {v(32+4*m,4)}, v27, {WS}, {so} offen sc1", 32 + 4 * m) for m, so in enumerate(("s14", "s15"))]
        e(f"v_lshrrev_b32 v16, 4, {vL}")
        e(f"v_mul_u32_u24 v16, 9216, v16")
        e(f"v_add3_u32 v24, v16, v17, s68")

        def issue6():
            for k, (so, off) in enumerate((("s10", 0), ("s10", 2304), ("s11", 0), ("s11", 2304))):
                e(f"buffer_load_dword {v(56+k)}, {vL4}, {WS}, {so} offen offset:{off} sc1")
                e(f"buffer_load_dwordx4 {v(40+4*k,4)}, v24, {WS}, {so} offen offset:{off} sc1")
        self.poll(issue6, [(v(56 + k), vTq) for k in range(4)] + self.g4(40) + self.g4(44) + self.g4(48) + self.g4(52))
        for k in range(4):
            self.reduce4(40 + 4 * k)
            e(f"v_add_f32 {v(56+k)}, {v(56+k)}, {v(40+4*k)}")
            self.rb1(v(56 + k))
        e("v_add_f32 v58, 1.0, v58")
        self.rb1("v58")
        e(f"v_or_b32 v60, v58, {vTq}")
        e(f"v_or_b32 v61, v57, {vTq}")
        e("v_lshlrev_b32 v62, 16, v62")
        self.lstore_multi([f"buffer_store_dword v60, {vL4}, {WS}, s12 offen",
                           f"buffer_store_dword v61, {vL4}, {WS}, s12 offen offset:2304"])
        self.stamp(9)
        self.mpoll(l5)
        self.stamp(10)
        self.sumrows([32])
        e("v_fma_f32 v62, v32, v56, v62")
        e("v_mov_b32 v36, v62")
        e("v_mul_f32 v37, v62, v62")
        e("v_mul_f32 v33, v62, v58")
        e(f"v_bfi_b32 v33, {sM10}, {vTq}, v33")
        e("v_permlane32_swap_b32 v36, v37")
        e("v_add_f32 v36, v36, v37")
        for r in (8, 4, 2, 1):
            e(f"v_add_f32_dpp v36, v36, v36 row_ror:{r} {DPF}")
        e(f"v_bfi_b32 v36, {sM10}, {vTs}, v36")
        self.lstore_multi([f"buffer_store_dword v33, {vL4}, {WS}, s64 offen",
                           "s_mov_b64 exec, s[66:67]",
                           f"buffer_store_dword v36, v26, {WS}, s13 offen",
                           "s_mov_b64 exec, -1"])
        self.stamp(11)
        e.c("---- output: the reducer of slice s in slot s&7 ----")
        e("s_lshr_b32 s10, s8, 8")
        e("s_and_b32 s10, s10, 7")
        e(f"s_cmp_lg_u32 s10, {sX}")
        e("s_cbranch_scc1 L_fin")
        self.srd(SS1, "s38", "s39", 1152)
        e(f"s_add_u32 s14, s8, {P8}")
        e(f"s_add_u32 s15, s14, {4*2304}")
        self.mpoll(l5)
        self.sumrows([32])
        e("v_fma_f32 v32, v32, v59, v62")
        e("v_cvt_pk_bf16_f32 v32, v32, v32")
        e(f"buffer_store_short v32, v25, {SS1}, s9 offen")
        self.stamp(16)
        e("s_cmp_lg_u32 s8, 0")
        e("s_cbranch_scc1 L_fin")
        e("s_mov_b64 exec, 1")
        e(f"buffer_store_dwordx2 {v(vE0,2)}, off, {WS}, 0 sc1")
        e("s_mov_b64 exec, -1")
        if self.dnpf:
            e("s_branch L_fin")
            e.label("L_pfs")
            e.c("idle waves: pull the w_down rows that are loaded last into this slot's L2")
            e(f"s_sub_u32 s8, {sW}, 2")
            e("s_mul_i32 s8, s8, 5")
            e(f"s_add_u32 s8, s8, {sJ}")
            e("s_sub_u32 s8, s8, 27")
            e(f"s_cmp_ge_u32 s8, {9*self.dnpf}")
            e("s_cbranch_scc1 L_fin")
            self.srd(SW2, "s32", "s33", 4608 * 1152)
            e("s_lshl_b32 s8, s8, 7")
            e(f"s_mul_i32 s9, {sX}, {576*1152}")
            e("s_add_u32 s8, s8, s9")
            e(f"s_add_u32 s8, s8, {(8-self.dnpf)*1152}")
            e(f"v_lshrrev_b32 v17, 3, {vL}")
            e(f"v_add_u32 v16, {vL}, v17")
            e(f"v_mul_u32_u24 v16, {8*1152}, v16")
            e(f"buffer_load_dword {vDUM}, v16, {SW2}, s8 offen")
        if self.slowpf:
            e("s_branch L_fin")
            e.label("L_pfs")
            e.c("idle waves: pull the gate/up column slice whose lines stream slowest into this slot's L2")
            NT = self.slowpf
            e(f"s_sub_u32 s8, {sW}, 2")
            e("s_mul_i32 s8, s8, 5")
            e(f"s_add_u32 s8, s8, {sJ}")
            e("s_sub_u32 s8, s8, 27")
            e(f"s_cmp_ge_u32 s8, {4*NT}")
            e("s_cbranch_scc1 L_fin")
            e("s_bitcmp1_b32 s8, 0")
            e("s_cselect_b32 s60, s30, s28")
            e("s_cselect_b32 s61, s31, s29")
            e(f"s_mov_b32 s62, {576*9216}")
            e("s_mov_b32 s63, 0x20000")
            e(f"s_mul_i32 s10, {sX}, 1152")
            e("s_add_u32 s9, s10, s60")
            e("s_sub_u32 s9, 0x180, s9")
            e("s_and_b32 s9, s9, 0x380")
            e("s_lshr_b32 s8, s8, 1")
            sk = self.lab("pf2")
            e(f"s_cmp_lt_u32 s8, {NT}")
            e(f"s_cbranch_scc1 {sk}")
            e("s_cmp_lg_u32 s9, 0")
            e("s_cbranch_scc1 L_fin")
            e(f"s_sub_u32 s8, s8, {NT}")
            e("s_movk_i32 s9, 1024")
            e.label(sk)
            e("s_sub_u32 s8, 7, s8")
            e("s_mul_i32 s8, s8, 9216")
            e("s_add_u32 s8, s8, s9")
            e("s_add_u32 s8, s8, s10")
            e(f"v_lshrrev_b32 v17, 3, {vL}")
            e(f"v_add_u32 v16, {vL}, v17")
            e(f"v_mul_u32_u24 v16, {8*9216}, v16")
            e(f"buffer_load_dword {vDUM}, v16, {SW2}, s8 offen")

    def role_wd(self):
        e = self.e
        thr = self.thr
        e.label("L_WD")
        e.c("================ WD ================")
        e(f"s_sub_u32 {sR}, {sJ}, 18")
        self.srd(SW1, "s24", "s25", 4096 * 1152)
        self.srd(SW2, "s32", "s33", 4608 * 1152)
        e(f"v_and_b32 v16, 8, {vL}")
        e(f"v_lshlrev_b32 v16, 2, v16")
        e(f"v_lshrrev_b32 v17, 4, {vL}")
        e(f"v_add_u32 v16, v16, v17")
        e(f"v_mul_u32_u24 v16, 1152, v16")
        e(f"v_and_b32 v17, 0x70, {vL16}")
        e(f"v_add_u32 {vWA}, v16, v17")
        e(f"s_lshl_b32 s14, {sX}, 3")
        e(f"s_add_u32 s14, s14, {sW}")
        e(f"s_mul_i32 s15, s14, {72*1152}")
        e(f"s_mul_i32 s14, s14, {64*1152}")
        e(f"s_lshl_b32 s8, {sR}, 7")
        e(f"s_add_u32 s14, s14, s8")
        e(f"s_add_u32 s15, s15, s8")
        wp = self.wd_pre
        S = self.stream(self.it_w(RW1, SW1, "s14", 4 * 1152, 0, wp, thr) + self.it_kv("K", self.k0, 8, thr) + self.it_kv("V", 0, 8, thr)
                        + self.it_w(RW1, SW1, "s14", 4 * 1152, wp, 8, thr))
        self.touch([(self.off_p4, 8)])
        self.attention(S, wp + 8 + self.qpos_wd, thr, 24)
        S.run(24)
        if self.tr:
            self.transpose(RW1, 0)
        self.voff9(1152)
        ne = self.n_early_wd
        self.wloads(RW2, SW2, "s15", 1152, 0, ne, self.thr_w)
        e.c("---- combine: gather P4 ----")
        e(f"s_lshl_b32 s8, {sX}, 5")
        e(f"s_lshr_b32 s9, {sW}, 2")
        e(f"s_lshl_b32 s9, s9, 4")
        e(f"s_add_u32 s8, s8, s9")
        e(f"s_mul_i32 s8, s8, 1152")
        e(f"s_add_u32 s8, s8, {P4}")
        e(f"s_and_b32 s9, {sW}, 3")
        e(f"s_lshl_b32 s9, s9, 8")
        e(f"s_add_u32 s9, s9, s8")
        e(f"v_lshrrev_b32 v16, 4, {vL}")
        e(f"v_mul_u32_u24 v17, {4*1152}, v16")
        e(f"v_and_b32 v18, 0xf0, {vL16}")
        e(f"v_add_u32 v26, v17, v18")
        e(f"v_lshl_add_u32 v17, v16, 2, {vL}")
        e(f"v_and_b32 v17, 15, v17")
        e(f"v_lshlrev_b32 v27, 4, v17")
        e(f"s_lshl_b32 s68, {sX}, 1")
        e(f"s_lshr_b32 s69, {sW}, 2")
        e(f"s_add_u32 s68, s68, s69")
        e(f"s_lshl_b32 s68, s68, 8")
        e(f"s_add_u32 s68, s68, {P4S}")
        e(f"s_mul_i32 s10, {sX}, 2304")
        e(f"s_lshl_b32 s11, {sR}, 8")
        e(f"s_add_u32 s13, s10, s11")
        e(f"s_add_u32 s12, s13, {P5}")
        e(f"s_mov_b32 s64, s8")
        self.acc_addr("T")
        e(f"s_mov_b32 s8, s64")
        e(f"s_bitcmp1_b32 {sW}, 1")
        e("s_cselect_b64 s[10:11], -1, 0")

        l4 = [(f"buffer_load_dwordx4 {v(32+4*m,4)}, v26, {WS}, s9 offen offset:{1152*m} sc1", 32 + 4 * m) for m in range(4)]
        self.mpoll(l4 + [(f"buffer_load_dwordx4 v[48:51], v27, {WS}, s68 offen sc1", 48)], until=4)
        self.stamp(17)
        e("v_cndmask_b32 v28, v48, v50, s[10:11]")
        e("v_cndmask_b32 v29, v49, v51, s[10:11]")
        e(f"v_max_f32_dpp v30, v28, v28 row_ror:8 {DPF}")
        for r in (4, 2, 1):
            e(f"v_max_f32_dpp v30, v30, v30 row_ror:{r} {DPF}")
        e("v_sub_f32 v28, v28, v30")
        e(f"v_mul_f32 v28, {sL2E}, v28")
        e("v_exp_f32 v28, v28")
        e("v_mul_f32 v29, v28, v29")
        for r in (8, 4, 2, 1):
            e(f"v_add_f32_dpp v29, v29, v29 row_ror:{r} {DPF}")
        e("v_rcp_f32 v29, v29")
        e("v_mul_f32 v28, v28, v29")
        self.mpoll(l4, init=False)
        self.stamp(9)
        for m in range(4):
            for r in range(4):
                op = "v_mul_f32_dpp" if m == 0 else "v_fmac_f32_dpp"
                e(f"{op} {v(52+r)}, v28, {v(32+4*m+r)} row_newbcast:{m} {DPF}")
        self.reduce4(52)
        if self.tr:
            self.tcore("v52", None, None, 40)
        else:
            e("v_cvt_pk_bf16_f32 v52, v52, v52")
            self.swz(56, "v52")
            self.core(56, RW1, 8, 40, 32, lgkm=8)
        self.acc_add(40, L_ACC1)
        self.acc_publish(L_ACC1, "s12", False, False)
        self.stamp(10)
        e("s_barrier")
        self.wloads(RW2, SW2, "s15", 1152, ne, 9, self.thr_dn)
        if self.tr:
            self.transpose(RW2, 1)
        e.c("---- gather P7, gelu ----")
        e(f"s_mul_i32 s8, {sX}, 9216")
        e(f"s_mul_i32 s9, {sW}, 576")
        e(f"s_add_u32 s8, s8, s9")
        e(f"s_add_u32 s8, s8, {P7}")
        e(f"s_add_u32 s9, s8, 4608")
        e(f"v_lshlrev_b32 v26, 3, {vL}")
        e(f"v_and_b32 v27, 0x38, {vL}")
        e(f"v_mov_b32 v38, 0x3d372713")
        e(f"s_add_u32 s12, s13, {P8}")

        if not self.pair:
            e(f"s_mul_i32 s8, {sX}, 9216")
            e(f"s_mul_i32 s9, {sW}, 288")
            e(f"s_add_u32 s8, s8, s9")
            e(f"s_add_u32 s8, s8, {P7}")
            e(f"v_lshrrev_b32 v27, 1, v27")

            def issue2():
                e(f"buffer_load_dword v58, {vL4}, {WS}, s8 offen sc1")
                e(f"buffer_load_dword v59, v27, {WS}, s8 offen offset:256 sc1")
                e(f"buffer_load_dword v60, {vL4}, {WS}, s8 offen offset:2304 sc1")
                e(f"buffer_load_dword v61, v27, {WS}, s8 offen offset:2560 sc1")
            self.poll(issue2, [("v58", vTq), ("v59", vTg), ("v60", vTq), ("v61", vTg)], clean=False)
            self.stamp(11)
            for r in range(4):
                e(f"v_and_b32 {v(32+r)}, {sHI}, {v(58+r)}")
        else:
            def issue2():
                e(f"buffer_load_dwordx2 v[64:65], v26, {WS}, s8 offen sc1")
                e(f"buffer_load_dwordx2 v[66:67], v27, {WS}, s8 offen offset:512 sc1")
                e(f"buffer_load_dwordx2 v[68:69], v26, {WS}, s9 offen sc1")
                e(f"buffer_load_dwordx2 v[70:71], v27, {WS}, s9 offen offset:512 sc1")
            self.poll(issue2, [(v(64 + r), vTq if (r >> 1) % 2 == 0 else vTg) for r in range(8)])
            self.stamp(11)
            for r in range(4):
                e(f"v_add_f32 {v(32+r)}, {v(64+2*r)}, {v(65+2*r)}")
        pr = (("v32", "v36"), ("v33", "v37"))
        for a, t in pr:
            e(f"v_mul_f32 {t}, {a}, {a}")
        for a, t in pr:
            e(f"v_fma_f32 {t}, {t}, v38, 1.0")
        for a, t in pr:
            e(f"v_mul_f32 {t}, {t}, {a}")
        for a, t in pr:
            e(f"v_mul_f32 {t}, 0xc0135761, {t}")
        e("v_exp_f32 v36, v36"); e("v_exp_f32 v37, v37")
        e("v_mul_f32 v32, v32, v34"); e("v_mul_f32 v33, v33, v35")
        e("v_add_f32 v36, 1.0, v36"); e("v_add_f32 v37, 1.0, v37")
        e("v_rcp_f32 v36, v36"); e("v_rcp_f32 v37, v37")
        e("v_mul_f32 v32, v32, v36"); e("v_mul_f32 v33, v33, v37")
        if self.tr:
            self.tcore("v32", "v33", RW2 + 32, 40)
        else:
            e("v_cvt_pk_bf16_f32 v47, v32, v32")
            self.swz(48, "v47")
            e("v_cvt_pk_bf16_f32 v56, v33, v33")
            self.core(48, RW2, 9, 40, 32, lgkm=8, order=[8, 0, 1, 2, 3, 4, 5, 6, 7])
        self.acc_add(40, L_ACC2)
        self.acc_publish(L_ACC2, "s12", False, False)
        self.stamp(12)
        e("s_branch L_fin")

    def role_gu(self):
        e = self.e
        thr = self.thr_gu
        e.c("================ GU ================")
        e(f"s_mov_b32 {sR}, {sJ}")
        self.srd(SW2, "s22", "s23", 576 * 8192)
        w1 = self.lab("w1")
        e(f"s_cmp_lg_u32 {sW}, 1")
        e(f"s_cbranch_scc1 {w1}")
        self.srd(SS2, "s16", "s17", 1152)
        e(f"buffer_load_dwordx4 v[32:35], {vL16}, {SS2}, 0 offen")
        e(f"buffer_load_dwordx4 v[36:39], {vL16}, {SS2}, 0 offen offset:1024")
        e(f"v_and_b32 v16, 7, {vL}")
        e(f"v_lshrrev_b32 v17, 4, {vL}")
        e(f"v_lshl_add_u32 v28, v16, 2, v17")
        e(f"v_lshlrev_b32 v16, 1, v28")
        e(f"s_lshl_b32 s8, {sR}, 6")
        e(f"buffer_load_ushort v40, v16, {SS2}, s8 offen")
        e.label(w1)
        n0 = self.lab("n0")
        e(f"s_cmp_lg_u32 {sW}, 0")
        e(f"s_cbranch_scc1 {n0}")
        e(f"s_waitcnt vmcnt({9+self.k0})")
        self.silu2(48)
        self.core(48, RW1, 9, 40, 32, vm_after=self.k0, lgkm=8)
        e(f"s_lshl_b32 s8, {sR}, 3")
        e(f"s_add_u32 s8, s8, {sX}")
        e(f"s_lshl_b32 s8, s8, 9")
        e(f"s_add_u32 s8, s8, {P1}")
        self.bsum(40)
        for k in range(2):
            e(f"v_bfi_b32 {v(42+k)}, {sM10}, 0, {v(40+k)}")
            e(f"v_sub_f32 {v(42+k)}, {v(40+k)}, {v(42+k)}")
        for k, t in enumerate((vTb0, vTb1, vTb0, vTb1)):
            e(f"v_bfi_b32 {v(40+k)}, {sM10}, {t}, {v(40+k)}")
        e(f"s_mov_b64 exec, {mJ8}")
        e(f"buffer_store_dwordx2 v[40:41], {vBO}, {WS}, s8 offen sc1")
        e(f"buffer_store_dwordx2 v[42:43], {vBO}, {WS}, s8 offen offset:256 sc1")
        e("s_mov_b64 exec, -1")
        self.stamp(1)
        e.label(n0)
        self.srd(SS1, "s34", "s35", 1152)
        self.srd(SW1, "s36", "s37", 576 * 6912)
        e(f"s_mul_i32 s12, {sX}, 18")
        e(f"s_add_u32 s12, s12, {sR}")
        e(f"s_and_b32 s13, s12, 3")
        e(f"s_lshr_b32 s12, s12, 2")
        e(f"s_lshl_b32 s8, s13, 3")
        e(f"s_add_u32 s8, s8, {sW}")
        e(f"s_add_u32 s8, s8, 40")
        e(f"s_lshl_b32 s9, s8, 4")
        e(f"v_lshrrev_b32 v16, 3, {vL}")
        e(f"v_lshlrev_b32 v17, 1, v16")
        e(f"buffer_load_ushort v62, v17, {SS1}, s9 offen")
        e(f"s_mul_i32 s8, s8, {8*6912}")
        e(f"s_lshl_b32 s9, s12, 7")
        e(f"s_add_u32 s8, s8, s9")
        e(f"s_add_u32 s8, s8, {18*128}")
        e(f"v_mul_u32_u24 v16, 6912, v16")
        e(f"v_and_b32 v17, 0x70, {vL16}")
        e(f"v_add_u32 v16, v16, v17")
        e(f"buffer_load_dwordx4 {v(RW1,4)}, v16, {SW1}, s8 offen {self.wf}")
        e(f"s_add_u32 s13, s13, 1")
        e(f"s_mul_i32 s13, s13, 9216")
        e(f"s_lshl_b32 s12, s12, 8")
        e(f"s_add_u32 s13, s13, s12")
        e(f"s_add_u32 s13, s13, {P6}")
        self.acc_addr("T")
        e(f"v_lshrrev_b32 v16, 3, {vL}")
        e(f"v_lshlrev_b32 v16, 15, v16")
        e(f"v_and_b32 v17, 0x70, {vL16}")
        e(f"v_add_u32 {vWA}, v16, v17")
        e(f"s_lshl_b32 s14, {sR}, 18")
        e(f"s_lshl_b32 s8, {sX}, 10")
        e(f"s_add_u32 s14, s14, s8")
        e(f"s_lshl_b32 s8, {sW}, 7")
        e(f"s_add_u32 s14, s14, s8")

        def off_p2(d):
            e(f"s_mul_i32 {d}, {sX}, 18")
            e(f"s_add_u32 {d}, {d}, {sR}")
            e(f"s_lshl_b32 {d}, {d}, 11")
            e(f"s_add_u32 {d}, {d}, {P2}")

        def off_p3(d):
            e(f"s_lshl_b32 {d}, {sX}, 4")
            e(f"s_add_u32 {d}, {d}, {sR}")
            e(f"s_lshl_b32 {d}, {d}, 7")
            e(f"s_add_u32 {d}, {d}, {P3}")

        def off_p7(d):
            e(f"s_mul_i32 {d}, {sX}, 18")
            e(f"s_add_u32 {d}, {d}, {sR}")
            e(f"s_lshl_b32 {d}, {d}, 9")
            e(f"s_add_u32 {d}, {d}, {P7}")
        self.touch([(off_p2, 16), (self.off_p4, 8), (off_p7, 4)])
        e(f"s_cmp_eq_u32 {sW}, 1")
        e(f"s_cbranch_scc1 L_GU_w1")
        e(f"s_waitcnt vmcnt({thr})")
        self.wloads(RW2, SW2, "s14", 8192, 0, 3, thr)
        self.wloads(RW2, SW2, "s14", 8192, 3, 4, thr if self.kpre > self.k0 else None)
        e("s_waitcnt vmcnt(4)")
        self.silu1("v62")
        self.core(62, RW1, 1, 56, 52)
        self.bsum(56)
        e(f"s_mov_b64 exec, {mJ8}")
        e(f"ds_write_b32 {vA0}, v56 offset:{L_ACC2}")
        e(f"ds_write_b32 {vA1}, v57 offset:{L_ACC2}")
        e("s_mov_b64 exec, -1")
        if self.force is None:
            nc = self.lab("nc")
            e(f"s_cmp_lg_u32 {sW}, 2")
            e(f"s_cbranch_scc1 {nc}")
            self.census_load(44)
            e.label(nc)
        self.kvloads(RK, vKO, SK, self.k0, self.kpre - 1, thr)
        self.kvloads(RK, vKO, SK, self.kpre - 1, self.kpre)
        if self.force is None:
            e(f"s_cmp_lg_u32 {sW}, 2")
            e(f"s_cbranch_scc1 L_GU_b1")
            e(f"s_waitcnt vmcnt({self.kpre - self.k0})")
            self.census_eval(44, "s10")
            e("v_mov_b32 v44, s10")
            e("v_mov_b32 v45, 0")
            e(f"ds_write_b32 v45, v44 offset:{L_H32+128}")
        e(f"s_branch L_GU_b1")
        e.label("L_GU_w1")
        self.wloads(RW2, SW2, "s14", 8192, 0, 4)
        e(f"s_waitcnt vmcnt(4)")
        e("v_mov_b32 v41, 0x3f803f80")
        e("v_mov_b32 v42, 0")
        e("v_mov_b32 v43, 0")
        for r in range(8):
            e(f"v_dot2_f32_bf16 v42, {v(32+r)}, v41, v42")
        for r in range(8):
            e(f"v_dot2_f32_bf16 v43, {v(32+r)}, {v(32+r)}, v43")
        e("v_permlane32_swap_b32 v42, v43")
        e("v_add_f32 v42, v42, v43")
        e("v_mov_b32 v43, v42")
        e("v_permlane16_swap_b32 v42, v43")
        e("v_add_f32 v42, v42, v43")
        for r in (8, 4, 2, 1):
            e(f"v_add_f32_dpp v42, v42, v42 row_ror:{r} {DPF}")
        e("v_mov_b32 v43, v42")
        e("v_permlane32_swap_b32 v42, v43")
        S1, S2, mb, rinv = "v42", "v43", "v44", "v45"
        e(f"v_mul_f32 {S1}, 0x3ae38e39, {S1}")
        e(f"v_mul_f32 {S2}, 0x3ae38e39, {S2}")
        e(f"v_fma_f32 {S2}, -{S1}, {S1}, {S2}")
        e(f"v_max_f32 {S2}, 0, {S2}")
        e(f"v_cvt_pk_bf16_f32 {rinv}, {S1}, {S2}")
        e(f"v_lshlrev_b32 {mb}, 16, {rinv}")
        e(f"v_and_b32 {S2}, {sHI}, {rinv}")
        e(f"v_add_f32 {S2}, 0x3727c5ac, {S2}")
        self.rb1(S2)
        e(f"v_sqrt_f32 {S2}, {S2}")
        self.rb1(S2)
        e("v_lshlrev_b32 v40, 16, v40")
        e("v_sub_f32 v40, v40, v44")
        self.rb1("v40")
        self.div("v40", "v40", S2, "v45", "v46")
        self.rb1("v40")
        e("v_lshlrev_b32 v28, 2, v28")
        self.silu1("v62")
        self.core(62, RW1, 1, 56, 52)
        self.bsum(56)
        e(f"s_mov_b64 exec, {mJ8}")
        e(f"ds_write_b32 {vA0}, v56 offset:{L_ACC2}")
        e(f"ds_write_b32 {vA1}, v57 offset:{L_ACC2}")
        e("s_mov_b64 exec, -1")
        e(f"v_lshrrev_b32 v16, 3, {vL}")
        e(f"v_lshlrev_b32 v16, 9, v16")
        e(f"v_and_b32 v17, 0x70, {vL16}")
        e(f"v_add_u32 v26, v16, v17")
        e(f"s_lshr_b32 s8, {sR}, 1")
        e(f"s_lshl_b32 s8, s8, 12")
        e(f"s_and_b32 s9, {sR}, 1")
        e(f"s_lshl_b32 s9, s9, 7")
        e(f"s_add_u32 s8, s8, s9")
        e(f"s_add_u32 s8, s8, {P1}")
        e(f"s_add_u32 s9, s8, {9*4096}")
        cen = self.force is None
        p1k = self.kpre if self.p1k is None else self.p1k
        self.kvloads(RK, vKO, SK, self.k0, p1k, thr)

        def issue():
            e(f"buffer_load_dwordx4 v[32:35], v26, {WS}, s8 offen sc1")
            e(f"buffer_load_dwordx4 v[36:39], v26, {WS}, s9 offen sc1")
            e(f"buffer_load_dwordx4 v[44:47], v26, {WS}, s8 offen offset:256 sc1")
            e(f"buffer_load_dwordx4 v[48:51], v26, {WS}, s9 offen offset:256 sc1")
        self.stamp(17)
        c1 = self.g4(32) + self.g4(36) + self.g4(44) + self.g4(48)
        if p1k < self.kpre:
            issue()
            self.kvloads(RK, vKO, SK, p1k, self.kpre)
            e(f"s_waitcnt vmcnt({self.kpre - p1k})")
            self.tagcheck(c1, "v21")
            e("v_cmp_ne_u32 vcc, 0, v21")
            ok1 = self.lab("p1ok")
            e(f"s_cbranch_vccz {ok1}")
            self.stamp(18)
            self.poll(issue, c1)
            e.label(ok1)
        else:
            self.poll(issue, c1)
        self.stamp(2)
        for k in range(4):
            e(f"v_pk_add_f32 {v(32+2*k,2)}, {v(32+2*k,2)}, {v(44+2*k,2)}")
        if self.stamps:
            e(f"v_writelane_b32 {vST}, {sSP}, 40")
        self.reduce4(32)
        self.reduce4(36)
        e(f"v_add_f32_dpp v32, v32, v32 row_ror:8 {DPF}")
        e(f"v_add_f32_dpp v36, v36, v36 row_ror:8 {DPF}")
        self.rb2("v32", "v36", "v33")
        e("v_add_f32 v36, 1.0, v36")
        self.rb1("v36")
        e("v_mul_f32 v36, v36, v40")
        self.rb1("v36")
        e("v_add_f32 v36, v36, v32")
        e("v_cvt_pk_bf16_f32 v36, v36, v36")
        e(f"ds_write_b32 v28, v36 offset:{L_H32}")
        e.label("L_GU_b1")
        e(f"v_lshrrev_b32 v25, 3, {vL}")
        e(f"v_lshlrev_b32 v26, 4, v25")
        e("v_mov_b32 v27, 0")
        e(f"v_and_b32 v16, 7, {vL}")
        e(f"v_and_b32 v17, 0x30, {vL}")
        e(f"v_lshrrev_b32 v17, 1, v17")
        e(f"v_add_lshl_u32 v24, v16, v17, 3")
        off_p2("s9")
        e(f"s_lshl_b32 s10, {sW}, 8")
        e(f"s_add_u32 s9, s9, s10")
        e("s_waitcnt lgkmcnt(0)")
        e("s_barrier")
        e(f"ds_read_b128 v[48:51], v26 offset:{L_H32}")
        if cen:
            e(f"ds_read_b32 v52, v27 offset:{L_H32+128}")
        e("s_waitcnt lgkmcnt(0)")
        if cen:
            e(f"v_readfirstlane_b32 {sLOC}, v52")
        e(f"s_waitcnt vmcnt({self.kpre - self.k0})")
        self.core(48, RW2, 4, 40, 32)
        self.bsum_store(40, "s9", True, lin="v24")
        self.stamp(3)
        self.acc_publish(L_ACC2, "s13", False, False)
        e.label("L_GU_b2")
        if not self.resume:
            e("s_barrier")

        t2 = self.thr_gu2
        S = Stream(e, self.it_kv("K", self.kpre, 8, t2) + self.it_kv("V", 0, 8, t2)
                   + self.it_w(RW2, SW2, "s14", 9216, 0, self.n_early_gu, t2)
                   + self.it_w(RW2, SW2, "s14", 9216, self.n_early_gu, 9, self.thr_post))
        nk = 8 - self.kpre
        if self.resume:
            S.log = [(f"k{t}", True) for t in range(self.kpre - self.k0)] + [("p2", False)]
        S.run(min(nk, (1 if self.resume else t2 + 1)))
        self.acc_addr("N")
        e(f"s_add_u32 s15, {sR}, 2")
        e(f"s_cmp_ge_u32 s15, 18")
        e(f"s_cselect_b32 s8, 18, 0")
        e(f"s_sub_u32 s15, s15, s8")
        e(f"s_cmp_ge_u32 {sW}, {4 if self.pair else 99}")
        e(f"s_cselect_b32 s9, s15, {sR}")
        e(f"s_cmp_ge_u32 s9, 9")
        e("s_cselect_b32 s60, s30, s28")
        e("s_cselect_b32 s61, s31, s29")
        e("s_cselect_b32 s8, 9, 0")
        e(f"s_mov_b32 s62, {576*9216}")
        e(f"s_sub_u32 s8, s9, s8")
        e(f"s_lshl_b32 s8, s8, 7")
        e(f"s_mul_i32 s14, {sX}, 1152")
        e(f"s_add_u32 s14, s14, s8")
        e(f"s_mul_i32 s8, {sW}, {72*9216}")
        e(f"s_add_u32 s14, s14, s8")
        self.voff9(9216)
        self.attention(S, nk + self.qpos_gu, t2, nk + 8 + self.n_early_gu)
        if self.gate_n:
            e.c("hold the FFN weight stream until most attention partials of this slot are out")
            gd, gt = self.lab("gd"), self.lab("gt")
            e(f"s_cmp_lg_u32 {sW}, 0")
            e(f"s_cbranch_scc1 {gd}")
            e(f"s_mul_i32 s8, {sX}, {32*1152}")
            e(f"s_add_u32 s8, s8, {P4}")
            e(f"v_mul_u32_u24 v26, 1152, {vL}")
            e(f"s_mov_b32 {sSP}, 0")
            e("s_mov_b32 exec_hi, 0")
            e.label(gt)
            e(f"s_add_u32 {sSP}, {sSP}, 1")
            e(f"s_cmp_gt_u32 {sSP}, {SPIN}")
            e("s_cbranch_scc1 L_end")
            e(f"buffer_load_dword v32, v26, {WS}, s8 offen offset:1024 sc1")
            e("s_waitcnt vmcnt(0)")
            e(f"v_and_b32 v32, {sM10}, v32")
            e(f"v_cmp_eq_u32 vcc, v32, {v(TG[0])}")
            e("s_bcnt1_i32_b64 s9, vcc")
            e(f"s_cmp_lt_u32 s9, {self.gate_n}")
            e(f"s_cbranch_scc1 {gt}")
            e("s_mov_b64 exec, -1")
            e.label(gd)
        e("s_barrier")
        S.run(99)
        e.c("---- gather u = x1*(1+cb), stats, finish the LayerNorm ----")
        e(f"s_mul_i32 s8, {sX}, 2304")
        e(f"s_mul_i32 s9, {sW}, 288")
        e(f"s_add_u32 s8, s8, s9")
        e(f"s_add_u32 s8, s8, {P9}")
        e(f"s_mul_i32 s10, {sX}, {3*2304}")
        e(f"s_add_u32 s10, s10, {P11}")
        e(f"s_add_u32 s11, s10, 4608")
        e(f"s_add_u32 s10, s10, s9")
        e(f"v_lshrrev_b32 v16, 3, {vL}")
        e(f"v_lshlrev_b32 v27, 2, v16")
        e(f"v_and_b32 v16, 15, {vL}")
        e(f"v_min_u32 v17, 8, v16")
        e(f"v_lshlrev_b32 v26, {4 if self.cstat else 7}, v17")
        e(f"v_cmp_gt_u32 vcc, 9, v16")
        e(f"v_mov_b32 v16, 0x3ae38e39")
        e(f"v_cndmask_b32 v28, 0, v16, vcc")
        off_p7("s12")
        e(f"s_sub_u32 s13, s15, {sR}")
        e(f"s_lshl_b32 s13, s13, 9")
        e(f"s_add_u32 s13, s13, s12")
        e(f"s_add_u32 s13, s13, 4")
        e(f"s_cmp_eq_u32 {sW}, 1")
        e(f"s_cselect_b32 s12, s13, s12")
        e(f"s_cselect_b32 s13, {4*ACCS}, 0")
        e(f"v_add_u32 v25, s13, {vAR}")
        e(f"v_lshlrev_b32 v24, 3, {vL}")

        def issue11():
            e(f"buffer_load_dword v58, {vL4}, {WS}, s10 offen sc1")
            e(f"buffer_load_dword v59, v27, {WS}, s10 offen offset:256 sc1")
            e(f"buffer_load_dword v60, {vL4}, {WS}, s10 offen offset:2304 sc1")
            e(f"buffer_load_dword v61, v27, {WS}, s10 offen offset:2560 sc1")

        def issue9():
            e(f"buffer_load_dwordx4 v[44:47], v26, {WS}, s11 offen sc1")
            e(f"buffer_load_dword v62, {vL4}, {WS}, s8 offen sc1")
            e(f"buffer_load_dword v63, v27, {WS}, s8 offen offset:256 sc1")
        c11 = [("v58", vTq), ("v59", vTg), ("v60", vTq), ("v61", vTg)]
        c9 = self.g4(44) + [("v62", vTq), ("v63", vTg)]
        if self.tr:
            self.transpose(RW2, 1)
        self.poll(issue11, c11)
        self.poll(issue9, c9)
        self.stamp(10)
        e("v_add_f32 v44, v44, v45")
        e("v_add_f32 v46, v46, v47")
        e("v_mul_f32 v44, v44, v28")
        e("v_mul_f32 v46, v46, v28")
        for r in (8, 4, 2, 1):
            e(f"v_add_f32_dpp v44, v44, v44 row_ror:{r} {DPF}")
            e(f"v_add_f32_dpp v46, v46, v46 row_ror:{r} {DPF}")
        e("v_fma_f32 v46, -v44, v44, v46")
        e("v_fma_f32 v62, -v44, v58, v62")
        e("v_max_f32 v46, 0, v46")
        e("v_fma_f32 v63, -v44, v59, v63")
        e("v_add_f32 v46, 0x3727c5ac, v46")
        e("v_rsq_f32 v46, v46")
        e("v_fma_f32 v62, v62, v46, v60")
        e("v_fma_f32 v63, v63, v46, v61")
        if self.tr:
            self.tcore("v62", "v63", RW2 + 32, 40)
        else:
            e("v_cvt_pk_bf16_f32 v47, v62, v62")
            self.swz(48, "v47")
            e("v_cvt_pk_bf16_f32 v56, v63, v63")
            self.core(48, RW2, 9, 40, 32, lgkm=8, order=[8, 0, 1, 2, 3, 4, 5, 6, 7])
        self.acc_add(40, L_ACC1)
        if not self.pair:
            e(f"s_mul_i32 s12, {sX}, 36")
            e(f"s_add_u32 s12, s12, {sR}")
            e(f"s_lshl_b32 s12, s12, 8")
            e(f"s_add_u32 s12, s12, {P7}")
            self.acc_publish(L_ACC1, "s12", True, True)
            self.stamp(11)
            e("s_branch L_fin")
            return
        e(f"s_cmp_gt_u32 {sW}, 1")
        e(f"s_cbranch_scc1 L_fin")
        e(f"ds_read_b128 v[16:19], v25 offset:{L_ACC1}")
        e("s_waitcnt lgkmcnt(0)")
        self.reduce4(16)
        e(f"v_bfi_b32 v16, {sM10}, {vTq}, v16")
        self.lstore(f"buffer_store_dword v16, v24, {WS}, s12 offen")
        self.stamp(11)
        e("s_branch L_fin")


HEADER = """; Design (one persistent launch, 256 workgroups x 8 waves, one workgroup per CU; generated by own script):
"""


def generate(fn, **kw):
    g = Gen(**kw)
    e = g.build()
    body = e.text()
    nv = max(e.maxv + 1, 136)
    txt = wrap(body, 256, 512, lds=LDS_BYTES, vgpr=nv, sgpr=max(e.maxs + 1, 96), header_extra=HEADER)
    txt = txt.replace("\ns_endpgm\n", "\n    s_endpgm\nL_code_end:\n")
    open(fn, "w").write(txt)
    return e


if __name__ == "__main__":
    import itertools
    names = []
    for spec in sys.argv[1:]:
        nm, _, kv = spec.partition(":")
        kw = {}
        for p in kv.split(","):
            if p:
                k, _, val = p.partition("=")
                kw[k] = eval(val)
        e = generate(nm, **kw)
        names.append(nm)
    print(" ".join(names))
```

```python
import sys
from emit import Em
from asmgen import wrap, NAME

P1 = 0x1D0000
P2 = 0x10000
P3 = 0x60000
P4 = 0x70000
P5 = 0xC0000
P6 = 0x1C0000
P7 = 0x180000
P8 = 0xE0000
P9 = 0xE8000
P10 = 0xEE000
P11 = 0x1A0000
P4S = 0xFA000
CEN = 0xF8000
STAMP = 0x100000
WS_BYTES = 0x200000
XS = 224

L_ACC1 = 0x0000
L_ACC2 = 0x0900
L_LNS = 0x1200
L_MX = 0x1280
L_H32 = 0x1300
L_ACCO = 0x1400
L_Q = 0x3800
LDS_BYTES = 0x3A00
ACCS = 272

sX, sJ, sW, sR, sSP = "s3", "s4", "s5", "s6", "s7"
WS, SK, SV, SW1, SW2, SS1, SS2 = "s[44:47]", "s[48:51]", "s[52:55]", "s[56:59]", "s[60:63]", "s[64:67]", "s[68:71]"
sM10, sHI, sLOC, sSEL, sL2E, sKV = "s72", "s73", "s74", "s75", "s76", "s77"
m36, mJ8, mT2, mODD, mHI = "s[82:83]", "s[84:85]", "s[86:87]", "s[88:89]", "s[90:91]"
vL, vL16 = "v0", "v1"
MK = [2, 3, 4, 5]
TG = [6, 7, 8, 9]
vTa0, vTa1 = "v10", "v11"
vWA, vWB = "v12", "v13"
vKO, vVO = "v14", "v210"
vST = "v15"
RK, RV, RW1, RW2 = 64, 96, 128, 164
vTb0, vTb1, vTs, vBO, vAA = "v200", "v201", "v202", "v203", "v204"
vDUM = "v205"
vE0, vE1 = 206, 207
vAR, vCO = "v208", "v209"
PS = [212, 213, 214, 215]
vA0, vA1, vL4 = "v204", "v211", "v234"
vTq, vTg = "v216", "v217"
KVO = ["s18", "s19", "s20", "s21", "s40", "s41", "s94", "s95"]
SPIN = 400000
DPF = "row_mask:0xf bank_mask:0xf"


def v(n, k=1):
    return f"v{n}" if k == 1 else f"v[{n}:{n+k-1}]"


class Stream:
    def __init__(self, e, items):
        self.e, self.items, self.pos, self.log = e, items, 0, []

    def step(self, wait=True, stop=None):
        if self.pos >= len(self.items) or (stop is not None and self.pos >= stop):
            return False
        name, fn, thr = self.items[self.pos]
        bulk = [i for i, (n, b) in enumerate(self.log) if b]
        if wait and thr is not None and len(bulk) > thr:
            self.e(f"s_waitcnt vmcnt({len(self.log) - 1 - bulk[-(thr + 1)]})")
        fn()
        self.log.append((name, True))
        self.pos += 1
        return True

    def run(self, stop):
        while self.step(stop=stop):
            pass

    def extra(self, name):
        self.log.append((name, False))

    def issued(self, name):
        return any(n == name for n, _ in self.log)

    def wait_for(self, name):
        idx = max(i for i, (n, _) in enumerate(self.log) if n == name)
        self.e(f"s_waitcnt vmcnt({len(self.log) - 1 - idx})")

    def index(self, name):
        return [n for n, _, _ in self.items].index(name)


class Gen:
    def __init__(self, stamps=False, force=None, thr=3, thr_gu=4, n_early_gu=2, n_early_wd=0, prefetch=2,
                 pretouch=True, kpre=4, thr_gu2=4, kvf='nt', wf='nt', qpos=2, qpos_gu=0, resume=False, mr_pre=3, late_first=True, thr_mr=3, thr_post=None, p1wait=False, thr_w=1, wd_pre=6, qpos_wd=3, gate_n=0, mod_on_gu=False, pipe4=False, pipe79=False, thr_dn=None, l2pf=0, kvmap='contig', pair=False, rotc=3, slp=0, k0=2, pfw=1, kdelay=False, tlbw=True, hold=0, holdg=False, rm=45, joint=False, dn_late=False, merge=False, ad_n=0, ad_steps=2, ad_per=2, cskip=True, estat=True, nobsum=True, slowpf=0, cstat=True, p1k=None, qlx=0, pre1=0, vburst=True, wb=2, tr=True, npv=3, dnpf=0, hk=None):
        self.e = Em()
        self.stamps = stamps
        self.force = force
        self.thr = thr
        self.thr_gu = thr_gu
        self.n_early_gu = n_early_gu
        self.n_early_wd = n_early_wd
        self.prefetch = prefetch
        self.pretouch = pretouch
        self.kpre = kpre
        self.kvf = kvf
        self.qpos = qpos
        self.pv_steps = 0
        self.thr_w = thr_w
        self.pipe4 = pipe4
        self.kvmap = 'rot'
        self.k0 = k0
        self.pfw = pfw
        self.hold = hold
        self.rm = rm
        self.hk = hk
        self.dnpf = dnpf
        self.npv = npv
        self.tr = tr
        self.wb = wb
        self.vburst = vburst
        self.qlx = qlx
        self.pre1 = pre1
        self.p1k = p1k
        self.cstat = cstat
        self.slowpf = slowpf
        self.estat = estat
        self.nobsum = nobsum
        self.cskip = cskip
        self.ad_n, self.ad_steps, self.ad_per = ad_n, ad_steps, ad_per
        self.merge = merge
        self.dn_late = dn_late
        self.joint = joint
        self.holdg = holdg
        self.tlbw = tlbw
        self.kdelay = kdelay
        self.rotc = rotc
        self.slp = slp
        self.pair = pair
        self.l2pf = l2pf
        self.pipe79 = pipe79
        self.thr_dn = thr_dn
        self.gate_n = gate_n
        self.mod_on_gu = mod_on_gu
        self.qpos_wd = qpos_wd
        self.wd_pre = wd_pre
        self.p1wait = p1wait
        self.thr_post = thr_post
        self.qpos_gu = qpos_gu
        self.resume = resume
        self.mr_pre = mr_pre
        self.late_first = late_first
        self.thr_mr = thr if thr_mr is None else thr_mr
        self.wf = wf
        self.thr_gu2 = thr_gu2
        self.uid = 0

    def lab(self, p):
        self.uid += 1
        return f"L_{p}{self.uid}"

    def stamp(self, k):
        if self.hold and self.hk == k:
            self.e("s_memrealtime s[92:93]")
            self.e("s_waitcnt lgkmcnt(0)")
            self.e("v_mov_b32 v250, s92")
        if self.stamps:
            e = self.e
            e("s_memrealtime s[92:93]")
            e("s_waitcnt lgkmcnt(0)")
            e(f"v_writelane_b32 {vST}, s92, {k}")

    def srd(self, srd, lo, hi, nbytes):
        b = int(srd[2:].split(":")[0])
        e = self.e
        e(f"s_mov_b32 s{b}, {lo}")
        e(f"s_mov_b32 s{b+1}, {hi}")
        e(f"s_mov_b32 s{b+2}, {nbytes}")
        e(f"s_mov_b32 s{b+3}, 0x20000")

    def lstore(self, text):
        e = self.e
        if self.force is not None:
            e(f"{text} {self.force}")
            return
        a, b = self.lab("ls"), self.lab("le")
        e(f"s_cmp_eq_u32 {sLOC}, 0")
        e(f"s_cbranch_scc1 {a}")
        e(text)
        e(f"s_branch {b}")
        e.label(a)
        e(f"{text} sc1")
        e.label(b)

    def lstore_multi(self, lines):
        e = self.e

        def emit(flag):
            for t in lines:
                e(f"{t} {flag}" if t.startswith("buffer_store") else t)
        if self.force is not None:
            emit(self.force)
            return
        a, b = self.lab("ls"), self.lab("le")
        e(f"s_cmp_eq_u32 {sLOC}, 0")
        e(f"s_cbranch_scc1 {a}")
        emit("")
        e(f"s_branch {b}")
        e.label(a)
        emit("sc1")
        e.label(b)

    def voff9(self, stride):
        e = self.e
        e(f"v_lshrrev_b32 v16, 3, {vL}")
        e(f"v_and_b32 v17, 0x70, {vL16}")
        e(f"v_mul_u32_u24 v16, {stride}, v16")
        e(f"v_lshl_add_u32 {vWA}, v16, 3, v17")
        e(f"v_add_u32 v16, {56*stride}, v16")
        e(f"v_add_u32 {vWB}, v16, v17")

    def wloads(self, base, srd, soff, step, t0, t1, thr=None):
        e = self.e
        for t in range(t0, t1):
            vo = vWB if t == 8 else vWA
            e(f"buffer_load_dwordx4 {v(base+4*t,4)}, {vo}, {srd}, {soff} offen {self.wf}")
            e(f"s_add_u32 {soff}, {soff}, {step}")
            if thr is not None:
                e(f"s_waitcnt vmcnt({thr})")

    def kvloads(self, base, vo, srd, t0, t1, thr=None):
        e = self.e
        for t in range(t0, t1):
            if self.kvmap == "rot2":
                e(f"buffer_load_dwordx4 {v(base+4*t,4)}, {vo}, {srd}, {KVO[t]} offen {self.kvf}")
                if thr is not None:
                    e(f"s_waitcnt vmcnt({thr})")
                continue
            if self.kvmap == "contig":
                e(f"s_mov_b32 {sKV}, {t*8192}")
            else:
                e(f"s_add_u32 {sKV}, s94, {t*(self.rm*0x2000 if self.rm else 0x20000)}")
                e(f"s_and_b32 {sKV}, {sKV}, 0xfffff")
            e(f"buffer_load_dwordx4 {v(base+4*t,4)}, {vo}, {srd}, {sKV} offen {self.kvf}")
            if thr is not None:
                e(f"s_waitcnt vmcnt({thr})")

    def stream(self, items):
        S = Stream(self.e, self.it_kv("K", 0, self.k0, None) + items)
        S.pos = self.k0
        S.log = [(f"K{t}", True) for t in range(self.k0)]
        return S

    def it_kv(self, kind, t0, t1, thr):
        base, vo, srd = (RK, vKO, SK) if kind == "K" else (RV, vVO, SV)
        return [(f"{kind}{t}", (lambda t=t: self.kvloads(base, vo, srd, t, t + 1)), thr) for t in range(t0, t1)]

    def it_w(self, base, srd, soff, step, t0, t1, thr):
        return [(f"W{t}", (lambda t=t: self.wloads(base, srd, soff, step, t, t + 1)), thr) for t in range(t0, t1)]

    def rb2(self, a, b, t):
        e = self.e
        e(f"v_cvt_pk_bf16_f32 {t}, {a}, {b}")
        e(f"v_lshlrev_b32 {a}, 16, {t}")
        e(f"v_and_b32 {b}, {sHI}, {t}")

    def rb1(self, a):
        e = self.e
        e(f"v_cvt_pk_bf16_f32 {a}, {a}, {a}")
        e(f"v_and_b32 {a}, {sHI}, {a}")

    def swz(self, X, src, n=8):
        for t in range(n):
            self.e(f"ds_swizzle_b32 {v(X+t)}, {src} offset:{(t << 5) | 0x18}")

    def core(self, X, W, T, D, A, vm_after=None, lgkm=None, perm=False, order=None):
        e = self.e
        seq = list(order or range(T))

        def prep(n):
            t = seq[n]
            a = A + 4 * (n & 1)
            if lgkm is not None and t < lgkm:
                e(f"s_waitcnt lgkmcnt({lgkm-1-t})")
            for k in range(4):
                if perm:
                    e(f"v_perm_b32 {v(a+k)}, {v(X+t)}, {v(X+t)}, {v(PS[k])}")
                else:
                    e(f"v_and_b32 {v(a+k)}, {v(X+t)}, {v(MK[k])}")
        prep(0)
        for n, t in enumerate(seq):
            a = A + 4 * (n & 1)
            if n == 0 and len(seq) > 1:
                prep(1)
            if vm_after is not None:
                e(f"s_waitcnt vmcnt({T-1-t+vm_after})")
            c = "0" if n == 0 else v(D, 4)
            e(f"v_mfma_f32_16x16x32_bf16 {v(D,4)}, {v(a,4)}, {v(W+4*t,4)}, {c}")
            if n + 2 < len(seq):
                prep(n + 2)

    def transpose(self, W, after):
        e = self.e
        e("s_mov_b32 s70, 0x05040100")
        e("s_mov_b32 s82, 0xffff0000"); e("s_mov_b32 s83, 0xffff0000")
        for p in range(4):
            e(f"s_waitcnt vmcnt({6-2*p+after})")
            for d in range(4):
                a, b = v(W + 4 * (2 * p + 1) + d), v(W + 4 * (2 * p) + d)
                e(f"v_perm_b32 {v(RK+8*d+p)}, {a}, {b}, s70")
                e(f"v_perm_b32 {v(RK+8*d+4+p)}, {a}, {b}, {sSEL}")

    def tcore(self, xa, xb, W8, D):
        e = self.e
        e(f"v_mov_b32_dpp v46, {xa} quad_perm:[1,0,3,2] {DPF}")
        if xb:
            e(f"v_cvt_pk_bf16_f32 v56, {xb}, {xb}")
        e(f"v_cvt_pk_bf16_f32 v47, {xa}, v46")
        for p in range(4):
            e(f"ds_swizzle_b32 {v(48+p)}, v47 offset:{(2*p << 5) | 0x18}")
        c = "0"
        if xb:
            for k in range(4):
                e(f"v_and_b32 {v(52+k)}, v56, {v(MK[k])}")
            e(f"v_mfma_f32_16x16x32_bf16 {v(D,4)}, v[52:55], {v(W8,4)}, 0")
            c = v(D, 4)
        e("s_waitcnt lgkmcnt(0)")
        for u in (0, 4, 2, 6, 1, 5, 3, 7):
            e(f"v_mfma_f32_16x16x32_bf16 {v(RV+4*u,4)}, v[48:51], {v(RK+4*u,4)}, {c}")
        for r in (0, 2, 1, 3):
            e(f"v_cndmask_b32 {v(D+r)}, {v(RV+4*r+r)}, {v(RV+4*(4+r)+r)}, s[82:83]")

    def bsum(self, D):
        e = self.e
        e(f"v_permlane32_swap_b32 {v(D)}, {v(D+2)}")
        e(f"v_permlane32_swap_b32 {v(D+1)}, {v(D+3)}")
        e(f"v_add_f32_dpp {v(D)}, {v(D+2)}, {v(D)} row_ror:8 {DPF}")
        e(f"v_add_f32_dpp {v(D+1)}, {v(D+3)}, {v(D+1)} row_ror:8 {DPF}")

    def bsum_store(self, D, soff, local, lin=False):
        e = self.e
        self.bsum(D)
        e(f"v_add_u32 {v(D)}, 0x200, {v(D)}")
        e(f"v_add_u32 {v(D+1)}, 0x200, {v(D+1)}")
        e(f"v_bfi_b32 {v(D)}, {sM10}, {vTa0 if lin else vTb0}, {v(D)}")
        e(f"v_bfi_b32 {v(D+1)}, {sM10}, {vTa1 if lin else vTb1}, {v(D+1)}")
        e(f"s_mov_b64 exec, {mJ8}")
        t = f"buffer_store_dwordx2 {v(D,2)}, {lin or vBO}, {WS}, {soff} offen"
        if local:
            self.lstore(t)
        else:
            e(t + " sc1")
        e("s_mov_b64 exec, -1")

    def acc_addr(self, mode):
        e = self.e
        e(f"s_mul_i32 s8, {sW}, {ACCS}")
        if mode == "N":
            e(f"v_and_b32 v16, 1, {vL}")
            e(f"v_lshlrev_b32 v16, 5, v16")
            e(f"v_and_b32 v17, 16, {vL}")
            e(f"v_lshrrev_b32 v18, 5, {vL}")
            e(f"v_lshlrev_b32 v18, 3, v18")
            e(f"v_add3_u32 v16, v16, v17, v18")
            e(f"v_bfe_u32 v17, {vL}, 1, 2")
            e(f"v_add_lshl_u32 v16, v16, v17, 2")
            e(f"v_add_u32 {vA0}, s8, v16")
            e(f"v_add_u32 {vA1}, 16, {vA0}")
        else:
            e(f"v_and_b32 v16, 32, {vL}")
            e(f"v_and_b32 v17, 7, {vL}")
            e(f"v_lshl_add_u32 v16, v17, 1, v16")
            e(f"v_bfe_u32 v17, {vL}, 4, 1")
            e(f"v_add_lshl_u32 v16, v16, v17, 2")
            e(f"v_add_u32 {vA0}, s8, v16")
            e(f"v_add_u32 {vA1}, 64, {vA0}")

    def acc_add(self, D, acc):
        e = self.e
        self.bsum(D)
        e(f"s_mov_b64 exec, {mJ8}")
        e(f"ds_write_b32 {vA0}, {v(D)} offset:{acc}")
        e(f"ds_write_b32 {vA1}, {v(D+1)} offset:{acc}")
        e("s_mov_b64 exec, -1")
        e("s_waitcnt lgkmcnt(0)")
        e("s_barrier")

    def acc_publish(self, acc, soff, local, round_bf16, D=16):
        e = self.e
        skip = self.lab("ap")
        e(f"s_cmp_lg_u32 {sW}, 0")
        e(f"s_cbranch_scc1 {skip}")
        e(f"ds_read_b128 {v(D,4)}, {vAR} offset:{acc}")
        e(f"ds_read_b128 {v(D+4,4)}, {vAR} offset:{acc+4*ACCS}")
        e("s_waitcnt lgkmcnt(0)")
        self.sumrows([D])
        if round_bf16:
            e(f"v_cvt_pk_bf16_f32 {v(D)}, {v(D)}, {v(D)}")
        e(f"v_bfi_b32 {v(D)}, {sM10}, {vTq}, {v(D)}")
        t = f"buffer_store_dword {v(D)}, {vL4}, {WS}, {soff} offen"
        if local:
            self.lstore(t)
        else:
            e(t + " sc1")
        e.label(skip)

    def poll(self, issue, lst, clean=True):
        e = self.e
        top = self.lab("poll")
        e(f"s_mov_b32 {sSP}, 0")
        e.label(top)
        issue()
        e(f"s_add_u32 {sSP}, {sSP}, 1")
        e(f"s_cmp_gt_u32 {sSP}, {SPIN}")
        e("s_cbranch_scc1 L_end")
        e("s_waitcnt vmcnt(0)")
        self.tagcheck(lst, "v21", clean)
        e("v_cmp_ne_u32 vcc, 0, v21")
        e(f"s_cbranch_vccnz {top}")

    def tagcheck(self, lst, dst, clean=True):
        e = self.e
        tmp, n = [], 0
        if clean:
            for r, t in lst:
                e(f"v_xor_b32 {r}, {r}, {t}")
            src = [r for r, _ in lst]
            while len(src) > 2:
                d = f"v{236+n}"
                n = (n + 1) % 8
                e(f"v_or3_b32 {d}, {src[0]}, {src[1]}, {src[2]}")
                src = src[3:] + [d]
            tmp = src
        else:
            by, rest = {}, []
            for r, t in lst:
                by.setdefault(t, []).append(r)
            for t, rs in by.items():
                while len(rs) >= 2:
                    a, b = rs.pop(), rs.pop()
                    d = f"v{236+n}"
                    n += 1
                    e(f"v_bitop3_b32 {d}, {a}, {b}, {t} bitop3:0x7e")
                    tmp.append(d)
                rest += [(r, t) for r in rs]
            if not tmp:
                r, t = rest.pop()
                e(f"v_xor_b32 v236, {r}, {t}")
                tmp = ["v236"]
            for k, (r, t) in enumerate(rest):
                d = tmp[k % len(tmp)]
                e(f"v_bitop3_b32 {d}, {r}, {t}, {d} bitop3:0xbe")
            while len(tmp) > 2:
                e(f"v_or3_b32 {tmp[0]}, {tmp[0]}, {tmp[1]}, {tmp[2]}")
                tmp = tmp[3:] + tmp[:1]
        if len(tmp) == 2:
            e(f"v_bitop3_b32 {dst}, {tmp[0]}, {tmp[1]}, {sM10} bitop3:0xa8")
        else:
            e(f"v_and_b32 {dst}, {sM10}, {tmp[0]}")

    def mpoll(self, loads, until=None, init=True):
        e = self.e
        regs = ["s[96:97]", "s[98:99]", "s[100:101]", "s[78:79]", "s[80:81]"]
        top = self.lab("mp")
        done = self.lab("md")
        if init:
            for m in range(len(loads)):
                e(f"s_mov_b64 {regs[m]}, -1")
        else:
            e(f"s_or_b64 vcc, {regs[0]}, {regs[1]}")
            for m in range(2, len(loads)):
                e(f"s_or_b64 vcc, vcc, {regs[m]}")
            e(f"s_cbranch_scc0 {done}")
        e(f"s_mov_b32 {sSP}, 0")
        e.label(top)
        for m, (txt, _) in enumerate(loads):
            sk = self.lab("ms")
            e(f"s_mov_b64 exec, {regs[m]}")
            e(f"s_cbranch_execz {sk}")
            e(txt)
            e.label(sk)
        e(f"s_add_u32 {sSP}, {sSP}, 1")
        e(f"s_cmp_gt_u32 {sSP}, {SPIN}")
        e("s_cbranch_scc1 L_end")
        e("s_waitcnt vmcnt(0)")
        for m, (_, r) in enumerate(loads):
            sk = self.lab("mc")
            e(f"s_mov_b64 exec, {regs[m]}")
            if self.cskip:
                e(f"s_cbranch_execz {sk}")
            self.tagcheck(self.g4(r), "v21")
            e(f"v_cmp_ne_u32 {regs[m]}, 0, v21")
            if self.cskip:
                e.label(sk)
        if until is not None:
            e(f"s_cmp_lg_u64 {regs[until]}, 0")
        else:
            e(f"s_or_b64 vcc, {regs[0]}, {regs[1]}")
            for m in range(2, len(loads)):
                e(f"s_or_b64 vcc, vcc, {regs[m]}")
        e("s_mov_b64 exec, -1")
        e(f"s_cbranch_scc1 {top}")
        e.label(done)

    def g4(self, base):
        return [(v(base + r), v(TG[r])) for r in range(4)]

    def reduce4(self, r):
        e = self.e
        e(f"v_permlane32_swap_b32 {v(r)}, {v(r+2)}")
        e(f"v_permlane32_swap_b32 {v(r+1)}, {v(r+3)}")
        e(f"v_add_f32 {v(r)}, {v(r)}, {v(r+2)}")
        e(f"v_add_f32 {v(r+1)}, {v(r+1)}, {v(r+3)}")
        e(f"v_permlane16_swap_b32 {v(r)}, {v(r+1)}")
        e(f"v_add_f32 {v(r)}, {v(r)}, {v(r+1)}")

    def c_loads(self, soff):
        e = self.e
        e(f"v_lshlrev_b32 v18, 1, {vL}")
        e(f"v_lshrrev_b32 v19, 3, {vL}")
        e(f"v_lshlrev_b32 v19, 1, v19")
        e(f"buffer_load_ushort v30, v18, {SS1}, {soff} offen")
        e(f"buffer_load_ushort v31, v19, {SS1}, {soff} offen offset:128")

    def div(self, dst, n, d, t1, t2):
        e = self.e
        e(f"v_min_f32 {d}, 0x7e800000, {d}")
        e(f"v_rcp_f32 {t1}, {d}")
        e(f"v_mul_f32 {t2}, {n}, {t1}")
        e(f"v_fma_f32 {d}, -{d}, {t2}, {n}")
        e(f"v_fma_f32 {dst}, {d}, {t1}, {t2}")

    def silu1(self, a):
        e = self.e
        e(f"v_lshlrev_b32 {a}, 16, {a}")
        e(f"v_mul_f32 v33, 0xbfb8aa3b, {a}")
        e("v_exp_f32 v33, v33")
        e("v_add_f32 v33, 1.0, v33")
        self.div(a, a, "v33", "v34", "v35")
        e(f"v_cvt_pk_bf16_f32 {a}, {a}, {a}")

    def silu2(self, X):
        e = self.e
        e(f"v_lshlrev_b32 v30, 16, v30")
        e(f"v_lshlrev_b32 v31, 16, v31")
        e(f"v_mul_f32 v33, 0xbfb8aa3b, v30")
        e(f"v_mul_f32 v34, 0xbfb8aa3b, v31")
        e("v_exp_f32 v33, v33")
        e("v_exp_f32 v34, v34")
        e("v_add_f32 v33, 1.0, v33")
        e("v_add_f32 v34, 1.0, v34")
        self.div("v30", "v30", "v33", "v35", "v36")
        self.div("v31", "v31", "v34", "v35", "v36")
        e("v_cvt_pk_bf16_f32 v30, v30, v30")
        e(f"v_cvt_pk_bf16_f32 {v(X+8)}, v31, v31")
        self.swz(X, "v30")

    def consts(self, perm=False):
        e = self.e
        e.c("constants")
        e(f"s_mov_b32 {sSEL}, 0x07060302")
        e(f"s_mov_b32 {sL2E}, 0x3fb8aa3b")
        e("s_mov_b32 s82, -1"); e("s_mov_b32 s83, 15")
        e("s_mov_b32 s84, 0x00ff00ff"); e("s_mov_b32 s85, 0x00ff00ff")
        e("s_mov_b32 s86, 0x0f0f0f0f"); e("s_mov_b32 s87, 0x0f0f0f0f")
        e("s_mov_b32 s88, 0xaaaaaaaa"); e("s_mov_b32 s89, 0xaaaaaaaa")
        e("s_mov_b32 s90, 0"); e("s_mov_b32 s91, -1")
        e(f"v_mov_b32 v16, 0xffff")
        e(f"v_mov_b32 v17, {sHI}")
        e(f"v_cndmask_b32 v16, v16, v17, {mODD}")
        e(f"v_bfe_u32 v17, {vL}, 1, 2")
        if perm:
            e(f"v_mov_b32 v18, 0x0c0c0302")
            e(f"v_mov_b32 v19, 0x03020c0c")
            e(f"v_cndmask_b32 v18, v18, v19, {mODD}")
            e(f"v_mov_b32 v19, 0x0c0c0c0c")
        for k in range(4):
            e(f"v_cmp_eq_u32 vcc, {k}, v17")
            e(f"v_cndmask_b32 {v(MK[k])}, 0, v16, vcc")
            if perm:
                e(f"v_cndmask_b32 {v(PS[k])}, v19, v18, vcc")
        e(f"v_and_b32 v16, 15, {vL}")
        e(f"v_lshlrev_b32 v16, 5, v16")
        e(f"v_and_b32 v17, 16, {vL}")
        e(f"v_lshrrev_b32 v18, 5, {vL}")
        e(f"v_lshlrev_b32 v18, 3, v18")
        e(f"v_add3_u32 {vBO}, v16, v17, v18")
        e(f"v_lshlrev_b32 {vL4}, 2, {vL}")
        e(f"v_lshrrev_b32 v16, 4, {vL}")
        e(f"v_mul_u32_u24 v17, {ACCS}, v16")
        e(f"v_and_b32 v18, 0xf0, {vL16}")
        e(f"v_add_u32 {vAR}, v17, v18")
        e(f"v_lshl_add_u32 {vCO}, v16, 2, v18")
        self.acc_addr("N")

    def tags(self, touch=()):
        e = self.e
        e.c("tags from epoch+1")
        e("s_waitcnt lgkmcnt(0)")
        self.stamp(15)
        e("s_add_u32 s26, s26, 0x40100401")
        e("s_addc_u32 s27, s27, 0")
        e(f"v_mov_b32 {v(vE0)}, s26")
        e(f"v_mov_b32 {v(vE1)}, s27")
        e(f"v_and_b32 {v(TG[0])}, {sM10}, {v(vE0)}")
        e(f"v_bfe_u32 {v(TG[1])}, {v(vE0)}, 10, 10")
        e(f"v_bfe_u32 {v(TG[2])}, {v(vE0)}, 20, 10")
        e(f"v_alignbit_b32 {v(TG[3])}, {v(vE1)}, {v(vE0)}, 30")
        e(f"v_and_b32 {v(TG[3])}, {sM10}, {v(TG[3])}")
        e(f"v_cndmask_b32 {vTa0}, {v(TG[0])}, {v(TG[2])}, {mODD}")
        e(f"v_cndmask_b32 {vTa1}, {v(TG[1])}, {v(TG[3])}, {mODD}")
        e(f"v_cndmask_b32 {vTb0}, {v(TG[0])}, {v(TG[2])}, {mHI}")
        e(f"v_cndmask_b32 {vTb1}, {v(TG[1])}, {v(TG[3])}, {mHI}")
        e(f"v_and_b32 v16, 16, {vL}")
        e(f"v_cmp_ne_u32 vcc, 0, v16")
        e(f"v_cndmask_b32 {vTs}, {vTb0}, {vTb1}, vcc")
        e(f"v_and_b32 v16, 3, {vL}")
        e(f"v_mul_u32_u24 v16, 10, v16")
        e(f"v_lshrrev_b64 v[18:19], v16, {v(vE0,2)}")
        e(f"v_and_b32 {vTq}, {sM10}, v18")
        e(f"v_bfe_u32 v16, {vL}, 3, 2")
        e(f"v_mul_u32_u24 v16, 10, v16")
        e(f"v_lshrrev_b64 v[18:19], v16, {v(vE0,2)}")
        e(f"v_and_b32 {vTg}, {sM10}, v18")
        if self.force is None:
            sk = self.lab("cen")
            e(f"s_cmp_lg_u32 {sW}, 2")
            e(f"s_cbranch_scc1 {sk}")
            e("s_getreg_b32 s8, hwreg(HW_REG_XCC_ID)")
            e("s_and_b32 s8, s8, 0xff")
            e("s_lshl_b32 s8, s8, 16")
            e(f"v_or_b32 v16, s8, {vTq}")
            e(f"s_lshl_b32 s8, {sX}, 5")
            e(f"s_add_u32 s8, s8, {sJ}")
            e(f"s_lshl_b32 s8, s8, 4")
            e(f"s_add_u32 s8, s8, {CEN}")
            e(f"v_lshlrev_b32 v17, 2, {vL}")
            e("s_mov_b64 exec, 15")
            e(f"buffer_store_dword v16, v17, {WS}, s8 offen")
            e("s_mov_b64 exec, -1")
            e.label(sk)

    def touch(self, items):
        if not self.pretouch:
            return
        e = self.e
        sk = self.lab("tch")
        e(f"s_cmp_lg_u32 {sW}, 3")
        e(f"s_cbranch_scc1 {sk}")
        e(f"v_lshlrev_b32 v17, 7, {vL}")
        for fn, n in items:
            fn("s8")
            e(f"s_mov_b32 exec_lo, {min((1 << n) - 1, 0xffffffff)}")
            e(f"s_mov_b32 exec_hi, {((1 << n) - 1) >> 32}")
            e(f"buffer_load_dword {vDUM}, v17, {WS}, s8 offen sc1")
        e("s_mov_b64 exec, -1")
        e.label(sk)

    def census_load(self, r):
        e = self.e
        e(f"s_lshl_b32 s10, {sX}, 9")
        e(f"s_add_u32 s10, s10, {CEN}")
        e(f"v_and_b32 v16, 0x1f0, {vL16}")
        e(f"buffer_load_dwordx4 {v(r,4)}, v16, {WS}, s10 offen sc1")

    def sumrows(self, regs):
        e = self.e
        for r in regs:
            e(f"v_pk_add_f32 {v(r,2)}, {v(r,2)}, {v(r+4,2)}")
            e(f"v_pk_add_f32 {v(r+2,2)}, {v(r+2,2)}, {v(r+6,2)}")
        for r in regs:
            e(f"v_permlane32_swap_b32 {v(r)}, {v(r+2)}")
            e(f"v_permlane32_swap_b32 {v(r+1)}, {v(r+3)}")
        for r in regs:
            e(f"v_pk_add_f32 {v(r,2)}, {v(r,2)}, {v(r+2,2)}")
        for r in regs:
            e(f"v_permlane16_swap_b32 {v(r)}, {v(r+1)}")
        for r in regs:
            e(f"v_add_f32 {v(r)}, {v(r)}, {v(r+1)}")

    def census_eval(self, r, dst):
        e = self.e
        e(f"v_readfirstlane_b32 s10, {v(r)}")
        e(f"v_xor_b32 v17, {v(r)}, {v(TG[0])}")
        for k in range(1, 4):
            e(f"v_bitop3_b32 v17, {v(r+k)}, {v(TG[k])}, v17 bitop3:0xbe")
        e(f"v_and_b32 v17, {sM10}, v17")
        e(f"v_xor_b32 v18, s10, {v(r)}")
        e(f"v_or_b32 v17, v17, v18")
        e(f"v_cmp_ne_u32 vcc, 0, v17")
        e("s_cmp_eq_u64 vcc, 0")
        e(f"s_cselect_b32 {dst}, 1, 0")

    def off_p4(self, d):
        e = self.e
        e(f"s_lshl_b32 {d}, {sX}, 5")
        e(f"s_add_u32 {d}, {d}, {sJ}")
        e(f"s_mul_i32 {d}, {d}, 1152")
        e(f"s_add_u32 {d}, {d}, {P4}")

    def attention(self, S, qidx, qlag, stop):
        e = self.e
        e.c("==== attention ====")
        S.step(stop=qidx)
        S.step(stop=qidx)
        e(f"s_mul_i32 s9, {sX}, {18*2048}")
        e(f"s_lshr_b32 s10, {sJ}, 4")
        e(f"s_lshl_b32 s10, s10, 10")
        e(f"s_add_u32 s9, s9, s10")
        e(f"s_lshl_b32 s10, {sW}, 7")
        e(f"s_add_u32 s9, s9, s10")
        e(f"s_add_u32 s9, s9, {P2}")
        e(f"s_add_u32 s11, s9, {8*2048}")
        e(f"s_add_u32 s64, s9, {16*2048}")
        e(f"v_lshrrev_b32 v16, 3, {vL}")
        e(f"v_lshlrev_b32 v16, 11, v16")
        e(f"v_and_b32 v17, 0x70, {vL16}")
        e(f"v_add_u32 v28, v16, v17")
        e(f"v_and_b32 v16, 3, {vL}")
        e(f"v_lshlrev_b32 v16, 4, v16")
        e(f"v_and_b32 v17, 4, {vL}")
        e(f"v_lshrrev_b32 v18, 5, {vL}")
        e(f"v_lshlrev_b32 v18, 3, v18")
        e(f"v_add3_u32 v16, v16, v17, v18")
        e(f"v_bfe_u32 v17, {vL}, 4, 1")
        e(f"s_lshr_b32 s10, {sW}, 1")
        e(f"s_lshl_b32 s10, s10, 6")
        e(f"s_and_b32 s8, {sW}, 1")
        e(f"s_lshl_b32 s8, s8, 1")
        e(f"s_add_u32 s10, s10, s8")
        e(f"v_add3_u32 v16, v16, v17, s10")
        e(f"v_lshlrev_b32 v26, 1, v16")
        e(f"v_and_b32 v16, 8, {vL}")
        e(f"v_lshlrev_b32 v29, 2, v16")
        e(f"v_lshlrev_b32 v16, 5, v16")
        e(f"v_and_b32 v18, 3, {vL}")
        e(f"v_lshlrev_b32 v18, 6, v18")
        e(f"v_and_b32 v17, 0x30, {vL}")
        e(f"v_add3_u32 v27, v16, v17, v18")

        def issue():
            for r in range(4):
                e(f"v_mov_b32 {v(44+r)}, {v(TG[r])}")
            e(f"buffer_load_dwordx4 v[32:35], v28, {WS}, s9 offen sc1")
            e(f"buffer_load_dwordx4 v[36:39], v28, {WS}, s11 offen sc1")
            e("s_mov_b64 exec, 0xffff")
            e(f"buffer_load_dwordx4 v[44:47], v28, {WS}, s64 offen sc1")
            e("s_mov_b64 exec, -1")
        e(f"s_lshl_b32 s8, {sW}, 2")
        e(f"v_add_u32 v30, s8, v29")
        e(f"v_and_b32 v16, 32, {vL}")
        e(f"v_lshlrev_b32 v16, 2, v16")
        e(f"v_and_b32 v17, 12, {vL}")
        e(f"v_lshlrev_b32 v17, 3, v17")
        e(f"v_and_b32 v18, 19, {vL}")
        e(f"v_add3_u32 v22, v16, v17, v18")
        e(f"s_mul_i32 s8, {sW}, 1152")
        e(f"s_add_u32 s10, s8, {L_ACCO}")
        e(f"v_lshl_add_u32 v22, v22, 2, s10")
        e(f"v_and_b32 v16, 8, {vL}")
        e(f"v_add_u32 v31, s8, v16")
        e(f"v_lshrrev_b32 v16, 3, {vL}")
        e(f"v_mul_u32_u24 v24, 1152, v16")
        e(f"v_and_b32 v17, 0x70, {vL16}")
        e(f"s_lshl_b32 s8, {sW}, 7")
        e(f"v_add3_u32 v23, v24, v17, s8")
        e(f"v_and_b32 v16, 0x30, {vL}")
        e(f"v_lshrrev_b32 v19, 2, v16")
        e(f"v_lshrrev_b32 v17, 2, v17")
        e(f"v_lshl_add_u32 v20, v16, 1, v17")
        self.off_p4("s12")
        e(f"s_add_u32 s13, s12, s8")
        S.run(qidx)
        cen = self.force is None
        if cen:
            e(f"s_lshl_b32 s10, {sX}, 9")
            e(f"s_add_u32 s10, s10, {CEN}")
            e(f"v_and_b32 v16, 0x1f0, {vL16}")
            e(f"buffer_load_dwordx4 v[40:43], v16, {WS}, s10 offen sc1")
            S.extra("cen")
        issue()
        S.extra("q0")
        S.extra("q1")
        S.extra("q")
        S.run(min(stop, S.index("V7") + 1, qidx + qlag + self.qlx) if self.qlx else min(stop, qidx + qlag))
        S.wait_for("q")
        if cen:
            self.census_eval(40, sLOC)
        chk = self.g4(32) + self.g4(36) + self.g4(44)
        self.tagcheck(chk, "v21")
        e(f"v_cmp_ne_u32 vcc, 0, v21")
        ok = self.lab("qok")
        e(f"s_cbranch_vccz {ok}")
        self.stamp(13)
        self.poll(issue, chk)
        e.label(ok)
        self.stamp(5)

        def vstep():
            S.step(stop=stop)
        vstep()
        e("v_pk_add_f32 v[32:33], v[32:33], v[44:45]")
        e("v_pk_add_f32 v[34:35], v[34:35], v[46:47]")
        self.sumrows([32])
        e(f"v_add_f32_dpp v32, v32, v32 row_ror:8 {DPF}")
        e("v_cvt_pk_bf16_f32 v32, v32, v32")
        e(f"ds_write_b16 v26, v32 offset:{L_Q}")
        for _ in range(self.pre1):
            S.step(stop=min(stop, S.index("V7") + 1))
        e("s_waitcnt lgkmcnt(0)")
        e("s_barrier")
        e(f"ds_read_b128 v[32:35], v27 offset:{L_Q}")
        v7 = S.index("V7") + 1
        if self.vburst:
            while S.step(wait=False, stop=stop if self.wb == 1 else min(stop, v7)):
                pass
        else:
            vstep()
        e("s_waitcnt lgkmcnt(0)")
        for k in range(4):
            e(f"v_cndmask_b32 {v(36+k)}, {v(32+k)}, 0, {mT2}")
        for k in range(4):
            e(f"v_cndmask_b32 {v(32+k)}, 0, {v(32+k)}, {mT2}")
        for u in range(4):
            e(f"v_mfma_f32_16x16x32_bf16 {v(40+4*u,4)}, {v(RK+8*u+4,4)}, v[36:39], 0")
        for u in range(4):
            e(f"v_mfma_f32_16x16x32_bf16 {v(40+4*u,4)}, {v(RK+8*u,4)}, v[32:35], {v(40+4*u,4)}")
        e(f"s_lshl_b32 s12, {sX}, 5")
        e(f"s_add_u32 s12, s12, {sJ}")
        e(f"s_lshl_b32 s12, s12, 4")
        e(f"s_add_u32 s12, s12, {P4S}")
        e(f"s_lshl_b32 s8, {sW}, 3")
        e("s_mov_b32 s10, 0x00010001"); e("s_mov_b32 s11, 0x00010001")
        for u in range(4):
            e(f"v_mov_b32_dpp {v(56+u)}, {v(40+4*u)} quad_perm:[0,0,0,0] {DPF}")
            for i in range(1, 4):
                e(f"v_add_f32_dpp {v(56+u)}, {v(40+4*u+i)}, {v(56+u)} quad_perm:[{i},{i},{i},{i}] {DPF}")
        self.rb2("v56", "v57", "v60")
        self.rb2("v58", "v59", "v61")
        for u in range(4):
            e(f"v_mul_f32 {v(56+u)}, 0x3db504f3, {v(56+u)}")
        self.rb2("v56", "v57", "v60")
        self.rb2("v58", "v59", "v61")
        e("v_max3_f32 v60, v56, v57, v58")
        e("v_max_f32 v60, v60, v59")
        e(f"v_max_f32_dpp v60, v60, v60 row_half_mirror {DPF}")
        e("v_mov_b32 v61, v60")
        e("v_permlane16_swap_b32 v60, v61")
        e("v_max_f32 v60, v60, v61")
        e("v_mov_b32 v61, v60")
        e("v_permlane32_swap_b32 v60, v61")
        e("v_max_f32 v60, v60, v61")
        if not self.vburst:
            vstep()
        if self.wb == 2:
            while S.step(wait=False, stop=stop):
                pass
        for u in range(4):
            e(f"v_sub_f32 {v(56+u)}, {v(56+u)}, v60")
        for u in range(4):
            e(f"v_mul_f32 {v(56+u)}, {sL2E}, {v(56+u)}")
        for u in range(4):
            e(f"v_exp_f32 {v(56+u)}, {v(56+u)}")
        for u in range(4):
            e(f"v_cvt_pk_bf16_f32 {v(56+u)}, {v(56+u)}, {v(56+u)}")
        dp = DPF + " bound_ctrl:0"

        def aprep(t):
            p = v(56 + (t >> 1))
            a = RK + 4 * t
            for k in range(4):
                if (k >= 2) if (t & 1) == 0 else (k < 2):
                    sh = "row_shr:4" if (t & 1) == 0 else "row_shl:4"
                    e(f"v_and_b32_dpp {v(a+k)}, {p}, {v(MK[k])} {sh} {dp}")
                else:
                    e(f"v_and_b32 {v(a+k)}, {p}, {v(MK[k])}")
        for u in range(4):
            e(f"v_and_b32 {v(44+u)}, {sHI}, {v(56+u)}")
        e("v_add_f32 v44, v44, v45")
        e("v_add_f32 v46, v46, v47")
        e("v_add_f32 v61, v44, v46")
        aprep(0)
        e(f"v_add_f32_dpp v61, v61, v61 row_half_mirror {DPF}")
        e("v_mov_b32 v44, v61")
        aprep(1)
        e("v_permlane16_swap_b32 v61, v44")
        e("v_add_f32 v61, v61, v44")
        e("v_mov_b32 v44, v61")
        aprep(2)
        e("v_permlane32_swap_b32 v61, v44")
        e("v_add_f32 v61, v61, v44")
        e("s_mov_b64 exec, 0x101")
        e(f"ds_write_b64 v31, v[60:61] offset:{L_ACCO+1024}")
        e("s_mov_b64 exec, -1")
        for t in range(3, 8):
            aprep(t)
        while not S.issued("V7"):
            vstep()
        e("s_waitcnt lgkmcnt(0)")
        e("s_barrier")
        e(f"ds_read_b128 v[44:47], v24 offset:{L_ACCO+1024}")

        def pv(t):
            S.wait_for(f"V{t}")
            c = "0" if t == 0 else "v[40:43]"
            e(f"v_mfma_f32_16x16x32_bf16 v[40:43], {v(RK+4*t,4)}, {v(RV+4*t,4)}, {c}")
            if t < 7 and S.pos < min(stop, len(S.items)) and S.pos - 1 - S.index(f"V{t}") <= S.items[S.pos][2]:
                S.step(wait=False, stop=stop)
        for t in range(self.npv):
            pv(t)
        e("s_waitcnt lgkmcnt(0)")
        for r in (44, 46):
            e(f"v_max_f32_dpp {v(r+4)}, {v(r)}, {v(r)} row_ror:8 {DPF}")
        for sw in ("16", "32"):
            for r in (48, 50):
                e(f"v_mov_b32 {v(r+1)}, {v(r)}")
            for r in (48, 50):
                e(f"v_permlane{sw}_swap_b32 {v(r)}, {v(r+1)}")
            for r in (48, 50):
                e(f"v_max_f32 {v(r)}, {v(r)}, {v(r+1)}")
        for r in (44, 46):
            e(f"v_sub_f32 {v(r+5)}, {v(r)}, {v(r+4)}")
        for r in (49, 51):
            e(f"v_mul_f32 {v(r)}, {sL2E}, {v(r)}")
        for r in (49, 51):
            e(f"v_exp_f32 {v(r)}, {v(r)}")
        for r in (44, 46):
            e(f"v_mul_f32 {v(r)}, 0x3e000000, {v(r+4)}")
        for r in (45, 47):
            e(f"v_mul_f32 {v(r)}, {v(r)}, {v(r+4)}")
        e("v_readlane_b32 s9, v49, s8")
        e("v_readlane_b32 s8, v51, s8")
        self.reduce4(44)
        e("v_mov_b32 v48, s9")
        e("v_mov_b32 v49, s8")
        e(f"v_add_f32_dpp v44, v44, v44 row_ror:8 {DPF}")
        e(f"v_cndmask_b32 v48, v48, v49, {mHI}")
        e(f"v_bfi_b32 v44, {sM10}, {vTs}, v44")
        e("s_mov_b64 exec, s[10:11]")
        self.lstore(f"buffer_store_dword v44, v19, {WS}, s12 offen")
        S.extra("st")
        e("s_mov_b64 exec, -1")
        self.stamp(6)
        for t in range(self.npv, 8):
            pv(t)
        for r in range(4):
            e(f"v_mul_f32 {v(40+r)}, {v(40+r)}, v48")
        self.stamp(7)
        e(f"ds_write2_b32 v22, v40, v41 offset0:0 offset1:4")
        e(f"ds_write2_b32 v22, v42, v43 offset0:8 offset1:12")
        e("s_waitcnt lgkmcnt(0)")
        e("s_barrier")
        e(f"ds_read_b128 v[40:43], v23 offset:{L_ACCO}")
        e("s_waitcnt lgkmcnt(0)")
        self.reduce4(40)
        e(f"v_add_f32_dpp v40, v40, v40 row_ror:8 {DPF}")
        e(f"v_bfi_b32 v40, {sM10}, {vTq}, v40")
        e(f"s_mov_b64 exec, {mJ8}")
        self.lstore(f"buffer_store_dword v40, v20, {WS}, s13 offen")
        S.extra("p4")
        e("s_mov_b64 exec, -1")
        self.stamp(8)

    def build(self):
        e = self.e
        k0 = self.k0
        e("s_cmp_ge_u32 s2, 256")
        e("s_cbranch_scc1 L_end")
        e("s_load_dwordx16 s[16:31], s[0:1], 0")
        if self.prefetch == 2:
            e.c("thread t touches line t of this kernel's code so that later instruction fetches hit L2")
            e("s_getpc_b64 s[8:9]")
            e.label("L_pc")
            e.raw("    .set CODE_LEFT, L_code_end - L_pc")
            e("v_lshlrev_b32 v16, 7, v0")
            e("v_min_u32 v16, CODE_LEFT-4, v16")
            e("v_mov_b32 v17, s9")
            e("v_add_co_u32 v16, vcc, s8, v16")
            e("v_addc_co_u32 v17, vcc, 0, v17, vcc")
            e(f"global_load_dword {vDUM}, v[16:17], off")
        e("s_load_dwordx8 s[32:39], s[0:1], 64")
        e("s_load_dwordx4 s[40:43], s[0:1], 96")
        if self.stamps or self.hold:
            e("s_memrealtime s[98:99]")
        e("v_lshrrev_b32 v16, 6, v0")
        e("v_and_b32 v0, 63, v0")
        e(f"v_readfirstlane_b32 {sW}, v16")
        e(f"v_lshlrev_b32 {vL16}, 4, v0")
        e(f"s_and_b32 {sX}, s2, 7")
        e(f"s_lshr_b32 {sJ}, s2, 3")
        if self.prefetch == 1:
            sk = self.lab("pf")
            e(f"s_cmp_lg_u32 {sW}, {self.pfw}")
            e(f"s_cbranch_scc1 {sk}")
            e("s_getpc_b64 s[8:9]")
            e.label("L_pc")
            e(f"v_lshlrev_b32 v16, 7, v0")
            e.raw("    .set CODE_LEFT, L_code_end - L_pc")
            for k in range(3):
                e(f"v_cmp_gt_u32 vcc, CODE_LEFT-4, v16")
                e("s_and_saveexec_b64 s[10:11], vcc")
                e(f"s_cbranch_execz L_pfx{k}")
                e(f"global_load_dword {vDUM}, v16, s[8:9]")
                e.label(f"L_pfx{k}")
                e("s_mov_b64 exec, -1")
                e("v_add_u32 v16, 0x2000, v16")
            e.label(sk)
        e(f"s_lshl_b32 s12, {sX}, 1")
        e(f"s_lshr_b32 s13, {sJ}, 4")
        e(f"s_add_u32 s12, s12, s13")
        e(f"s_lshl_b32 s12, s12, 24")
        e(f"s_add_u32 s12, s12, {61440*256}")
        e(f"s_and_b32 s13, {sJ}, 15")
        e(f"s_mul_i32 s94, s13, {((8*self.rm) % 128)*0x2000 if self.rm else 0x22000}")
        e("s_mov_b32 s50, 0x100000"); e("s_mov_b32 s51, 0x20000")
        e(f"s_lshl_b32 s95, {sW}, 10")
        e(f"v_and_b32 v16, 15, {vL}")
        e(f"v_lshlrev_b32 v16, 6, v16")
        e(f"v_and_b32 v17, 0x30, {vL}")
        e(f"v_add3_u32 {vKO}, v16, v17, s95")
        e(f"s_cmp_lt_u32 {sJ}, 18")
        e(f"s_cselect_b32 s15, {sW}, 1")
        e("s_cmp_lg_u32 s15, 0")
        e("s_cbranch_scc1 L_nomod")
        self.voff9(6912)
        e(f"v_lshlrev_b32 v18, 1, {vL}")
        e(f"v_lshrrev_b32 v19, 3, {vL}")
        e(f"v_lshlrev_b32 v19, 1, v19")
        e(f"s_mul_i32 s14, {sX}, {72*6912}")
        e(f"s_lshl_b32 s8, {sJ}, 7")
        e(f"s_add_u32 s14, s14, s8")
        e(f"s_mul_i32 s8, {sX}, 144")
        e("s_mov_b32 s66, 1152"); e("s_mov_b32 s67, 0x20000")
        e(f"s_mov_b32 s58, {576*6912}"); e("s_mov_b32 s59, 0x20000")
        e("s_waitcnt lgkmcnt(0)")
        e("s_mov_b32 s64, s34"); e("s_mov_b32 s65, s35")
        e("s_mov_b32 s56, s36"); e("s_mov_b32 s57, s37")
        e(f"buffer_load_ushort v30, v18, {SS1}, s8 offen")
        e(f"buffer_load_ushort v31, v19, {SS1}, s8 offen offset:128")
        self.wloads(RW1, SW1, "s14", 6912, 0, 9)
        e.label("L_nomod")
        e("s_waitcnt lgkmcnt(0)")
        e("s_add_u32 s48, s18, s12"); e("s_addc_u32 s49, s19, 0")
        if self.hold:
            e("v_mov_b32 v250, s98")
        if self.holdg:
            e("s_and_b32 s8, s98, 0x7fffffff")
            e("s_not_b32 s8, s8")
            e("v_mov_b32 v251, s8")
            e("v_mov_b32 v252, 0")
            e("s_mov_b32 s96, s40"); e("s_mov_b32 s97, s41")
            hg = self.lab("hg")
            e(f"s_cmp_lg_u32 {sW}, 0")
            e(f"s_cbranch_scc1 {hg}")
            e("s_mov_b64 exec, 1")
            e("global_atomic_umax v252, v251, s[40:41] sc1")
            e("s_mov_b64 exec, -1")
            e.label(hg)
        e("s_load_dwordx2 s[26:27], s[42:43], 0")
        if not self.kdelay:
            self.kvloads(RK, vKO, SK, 0, k0)
        if self.tlbw:
            e.c("one wave per slot starts the address translations of the buffers used later (values are ignored)")
            tw = self.lab("tw")
            e(f"s_lshl_b32 s8, {sJ}, 3")
            e(f"s_or_b32 s8, s8, {sW}")
            e(f"s_cmp_lg_u32 s8, 0xf8")
            e(f"s_cbranch_scc1 {tw}")
            e(f"v_lshlrev_b32 v16, 21, {vL}")
            e("s_mov_b64 exec, 7")
            for p in ("s[22:23]", "s[24:25]"):
                e(f"global_load_dword {vDUM}, v16, {p}")
            e("s_mov_b64 exec, 1")
            e(f"global_load_dword {vDUM}, v16, s[16:17]")
            e("s_sub_u32 s10, s12, 0x1000000")
            e("s_add_u32 s8, s20, s10"); e("s_addc_u32 s9, s21, 0")
            e("s_mov_b64 exec, 0x101")
            e(f"global_load_dword {vDUM}, v16, s[8:9]")
            e("s_mov_b64 exec, 7")
            for p in ("s[28:29]", "s[30:31]", "s[32:33]"):
                e(f"global_load_dword {vDUM}, v16, {p}")
            e("s_mov_b64 exec, -1")
            e.label(tw)
        if self.stamps:
            e(f"v_mov_b32 {vST}, 0")
            e(f"v_writelane_b32 {vST}, s98, 0")
        e(f"s_mov_b32 {sM10}, 0x3ff")
        e(f"s_mov_b32 {sHI}, 0xffff0000")
        e(f"s_mov_b32 {sLOC}, 0")
        e(f"v_add_u32 {vVO}, s95, {vL16}")
        self.srd(WS, "s42", "s43", WS_BYTES)
        e("s_add_u32 s52, s20, s12"); e("s_addc_u32 s53, s21, 0"); e("s_mov_b32 s54, 0x100000"); e("s_mov_b32 s55, 0x20000")
        self.consts()
        if self.kdelay:
            self.kvloads(RK, vKO, SK, 0, k0)
        self.tags()
        e(f"s_cmp_ge_u32 {sJ}, 27")
        e("s_cbranch_scc1 L_MR")
        e(f"s_cmp_ge_u32 {sJ}, 18")
        e("s_cbranch_scc1 L_WD")
        self.role_gu()
        self.role_wd()
        self.role_mr()
        e.label("L_fin")
        if self.hold:
            if self.holdg:
                e.label("L_hold")
                e("s_sleep 32")
                e("global_load_dword v250, v252, s[40:41] sc1")
                e("s_waitcnt vmcnt(0)")
                e("v_readfirstlane_b32 s10, v250")
                e("s_memrealtime s[8:9]")
                e("s_not_b32 s10, s10")
                e("s_waitcnt lgkmcnt(0)")
                e("s_and_b32 s8, s8, 0x7fffffff")
                e("s_sub_u32 s8, s8, s10")
                e(f"s_cmp_lt_u32 s8, {self.hold - 300}")
                e("s_cbranch_scc1 L_hold")
                e.label("L_hold2")
                e("s_sleep 4")
                e("s_memrealtime s[8:9]")
                e("s_waitcnt lgkmcnt(0)")
                e("s_and_b32 s8, s8, 0x7fffffff")
                e("s_sub_u32 s8, s8, s10")
                e(f"s_cmp_lt_u32 s8, {self.hold}")
                e("s_cbranch_scc1 L_hold2")
                e("s_branch L_end")
            e("v_readfirstlane_b32 s10, v250")
            e.label("L_hold" if not self.holdg else "L_holdx")
            e("s_sleep 4")
            e("s_memrealtime s[8:9]")
            e("s_waitcnt lgkmcnt(0)")
            e("s_sub_u32 s8, s8, s10")
            e(f"s_cmp_lt_u32 s8, {self.hold}")
            e("s_cbranch_scc1 L_hold")
        if self.stamps:
            e(f"s_lshl_b32 s8, s2, 3")
            e(f"s_add_u32 s8, s8, {sW}")
            e(f"s_lshl_b32 s8, s8, 8")
            e(f"s_add_u32 s8, s8, {STAMP}")
            e(f"v_lshlrev_b32 v16, 2, {vL}")
            e(f"buffer_store_dword {vST}, v16, {WS}, s8 offen")
        e.label("L_end")
        return e

    def role_mr(self):
        e = self.e
        thr = self.thr_mr
        npre = self.mr_pre
        e.label("L_MR")
        e.c("================ MR ================")
        e(f"s_sub_u32 {sR}, {sJ}, 27")
        e(f"s_lshl_b32 {sR}, {sR}, 3")
        e(f"s_add_u32 {sR}, {sR}, {sX}")

        def off_x(base):
            def f(d):
                e(f"s_mul_i32 {d}, {sX}, 2304")
                e(f"s_add_u32 {d}, {d}, {base}")
            return f
        self.srd(SS1, "s34", "s35", 1152)
        self.srd(SW1, "s36", "s37", 576 * 6912)
        e(f"s_cmp_ge_u32 {sR}, 36")
        e(f"s_cselect_b32 s58, 0, s58")
        e(f"v_lshrrev_b32 v16, 3, {vL}")
        e(f"v_mul_u32_u24 v17, 10, v16")
        e(f"v_and_b32 v18, 7, {vL}")
        e(f"v_lshl_add_u32 v17, v18, 1, v17")
        e(f"s_mul_i32 s8, {sW}, 80")
        e(f"buffer_load_ushort v30, v17, {SS1}, s8 offen")
        e(f"v_mul_u32_u24 v16, {5*6912}, v16")
        e(f"v_lshl_add_u32 {vWA}, v18, 4, v16")
        e(f"s_mul_i32 s14, {sW}, {40*6912}")
        e(f"s_lshl_b32 s8, {sR}, 7")
        e(f"s_add_u32 s14, s14, s8")
        e(f"s_add_u32 s14, s14, {18*128}")
        S = self.stream(self.it_w(RW1, SW1, "s14", 6912, 0, 5, thr) + self.it_kv("K", self.k0, 8, thr) + self.it_kv("V", 0, 8, thr))
        S.extra("c")
        S.run(self.k0 + thr + 1)
        S.wait_for("c")
        self.silu1("v30")
        self.swz(48, "v30", 5)

        def off_p11(d):
            e(f"s_mul_i32 {d}, {sX}, {3*2304}")
            e(f"s_add_u32 {d}, {d}, {P11}")
        self.touch([(self.off_p4, 8), (off_x(P9), 18), (off_p11, 45)])
        e("s_waitcnt lgkmcnt(0)")
        S.run(self.k0 + 5 + thr + 1)
        S.wait_for("W4")
        self.core(48, RW1, 5, 40, 32)
        self.acc_add(40, L_ACC1)
        sk = self.lab("mri")
        e(f"s_cmp_ge_u32 {sR}, 36")
        e(f"s_cbranch_scc1 {sk}")
        e(f"s_lshl_b32 s8, {sR}, 8")
        e(f"s_add_u32 s8, s8, {P6}")
        self.acc_publish(L_ACC1, "s8", False, False)
        e.label(sk)
        self.stamp(4)
        self.attention(S, 13 + self.qpos, thr, 21)
        e.c("================ reducers: one wave per 64-column slice ================")
        e(f"s_sub_u32 s8, {sJ}, 27")
        e(f"s_lshl_b32 s8, s8, 1")
        e(f"s_add_u32 s8, s8, {sW}")
        e(f"s_cmp_gt_u32 {sW}, 1")
        e("s_cbranch_scc1 L_pfs" if (self.slowpf or self.dnpf) else "s_cbranch_scc1 L_fin")
        e("s_cmp_gt_u32 s8, 8")
        e("s_cbranch_scc1 L_fin")
        self.srd(SS2, "s16", "s17", 1152)
        e("s_lshl_b32 s9, s8, 7")
        e(f"v_lshlrev_b32 v25, 1, {vL}")
        e(f"buffer_load_ushort v62, v25, {SS2}, s9 offen")
        e(f"s_mul_i32 s12, {sX}, {3*2304}")
        e(f"s_add_u32 s12, s12, {P11}")
        if self.cstat:
            e("s_lshl_b32 s13, s8, 4")
            e("s_add_u32 s13, s13, s12")
        else:
            e(f"s_add_u32 s13, s12, s9")
        e(f"s_add_u32 s13, s13, 4608")
        e("s_lshl_b32 s8, s8, 8")
        e("s_add_u32 s12, s12, s8")
        e(f"s_add_u32 s10, s8, {P6}")
        e(f"s_add_u32 s11, s10, 4608")
        e(f"v_lshrrev_b32 v16, 4, {vL}")
        e(f"v_lshlrev_b32 v26, 2, v16")
        e(f"v_mul_u32_u24 v16, 2304, v16")
        e(f"v_and_b32 v17, 0xf0, {vL16}")
        e(f"v_add_u32 v27, v16, v17")
        e(f"s_add_u32 s14, s8, {P5}")
        e(f"s_add_u32 s15, s14, {4*2304}")
        off_x(P9)("s64")
        e("s_add_u32 s64, s64, s8")
        e("s_mov_b32 s66, 0x00010001"); e("s_mov_b32 s67, 0x00010001")
        e("s_movk_i32 s68, 9216")
        l5 = [(f"buffer_load_dwordx4 {v(32+4*m,4)}, v27, {WS}, {so} offen sc1", 32 + 4 * m) for m, so in enumerate(("s14", "s15"))]
        e(f"v_lshrrev_b32 v16, 4, {vL}")
        e(f"v_mul_u32_u24 v16, 9216, v16")
        e(f"v_add3_u32 v24, v16, v17, s68")

        def issue6():
            for k, (so, off) in enumerate((("s10", 0), ("s10", 2304), ("s11", 0), ("s11", 2304))):
                e(f"buffer_load_dword {v(56+k)}, {vL4}, {WS}, {so} offen offset:{off} sc1")
                e(f"buffer_load_dwordx4 {v(40+4*k,4)}, v24, {WS}, {so} offen offset:{off} sc1")
        self.poll(issue6, [(v(56 + k), vTq) for k in range(4)] + self.g4(40) + self.g4(44) + self.g4(48) + self.g4(52))
        for k in range(4):
            self.reduce4(40 + 4 * k)
            e(f"v_add_f32 {v(56+k)}, {v(56+k)}, {v(40+4*k)}")
            self.rb1(v(56 + k))
        e("v_add_f32 v58, 1.0, v58")
        self.rb1("v58")
        e(f"v_or_b32 v60, v58, {vTq}")
        e(f"v_or_b32 v61, v57, {vTq}")
        e("v_lshlrev_b32 v62, 16, v62")
        self.lstore_multi([f"buffer_store_dword v60, {vL4}, {WS}, s12 offen",
                           f"buffer_store_dword v61, {vL4}, {WS}, s12 offen offset:2304"])
        self.stamp(9)
        self.mpoll(l5)
        self.stamp(10)
        self.sumrows([32])
        e("v_fma_f32 v62, v32, v56, v62")
        e("v_mov_b32 v36, v62")
        e("v_mul_f32 v37, v62, v62")
        e("v_mul_f32 v33, v62, v58")
        e(f"v_bfi_b32 v33, {sM10}, {vTq}, v33")
        e("v_permlane32_swap_b32 v36, v37")
        e("v_add_f32 v36, v36, v37")
        for r in (8, 4, 2, 1):
            e(f"v_add_f32_dpp v36, v36, v36 row_ror:{r} {DPF}")
        e(f"v_bfi_b32 v36, {sM10}, {vTs}, v36")
        self.lstore_multi([f"buffer_store_dword v33, {vL4}, {WS}, s64 offen",
                           "s_mov_b64 exec, s[66:67]",
                           f"buffer_store_dword v36, v26, {WS}, s13 offen",
                           "s_mov_b64 exec, -1"])
        self.stamp(11)
        e.c("---- output: the reducer of slice s in slot s&7 ----")
        e("s_lshr_b32 s10, s8, 8")
        e("s_and_b32 s10, s10, 7")
        e(f"s_cmp_lg_u32 s10, {sX}")
        e("s_cbranch_scc1 L_fin")
        self.srd(SS1, "s38", "s39", 1152)
        if self.tlbw:
            e(f"buffer_load_ushort {vDUM}, v25, {SS1}, s9 offen")
        e(f"s_add_u32 s14, s8, {P8}")
        e(f"s_add_u32 s15, s14, {4*2304}")
        self.mpoll(l5)
        self.sumrows([32])
        e("v_fma_f32 v32, v32, v59, v62")
        e("v_cvt_pk_bf16_f32 v32, v32, v32")
        e(f"buffer_store_short v32, v25, {SS1}, s9 offen")
        self.stamp(16)
        e("s_cmp_lg_u32 s8, 0")
        e("s_cbranch_scc1 L_fin")
        e("s_mov_b64 exec, 1")
        e(f"buffer_store_dwordx2 {v(vE0,2)}, off, {WS}, 0 sc1")
        e("s_mov_b64 exec, -1")
        if self.dnpf:
            e("s_branch L_fin")
            e.label("L_pfs")
            e.c("idle waves: pull the w_down rows that are loaded last into this slot's L2")
            e(f"s_sub_u32 s8, {sW}, 2")
            e("s_mul_i32 s8, s8, 5")
            e(f"s_add_u32 s8, s8, {sJ}")
            e("s_sub_u32 s8, s8, 27")
            e(f"s_cmp_ge_u32 s8, {9*self.dnpf}")
            e("s_cbranch_scc1 L_fin")
            self.srd(SW2, "s32", "s33", 4608 * 1152)
            e("s_lshl_b32 s8, s8, 7")
            e(f"s_mul_i32 s9, {sX}, {576*1152}")
            e("s_add_u32 s8, s8, s9")
            e(f"s_add_u32 s8, s8, {(8-self.dnpf)*1152}")
            e(f"v_lshrrev_b32 v17, 3, {vL}")
            e(f"v_add_u32 v16, {vL}, v17")
            e(f"v_mul_u32_u24 v16, {8*1152}, v16")
            e(f"buffer_load_dword {vDUM}, v16, {SW2}, s8 offen")
        if self.slowpf:
            e("s_branch L_fin")
            e.label("L_pfs")
            e.c("idle waves: pull the gate/up column slice whose lines stream slowest into this slot's L2")
            NT = self.slowpf
            e(f"s_sub_u32 s8, {sW}, 2")
            e("s_mul_i32 s8, s8, 5")
            e(f"s_add_u32 s8, s8, {sJ}")
            e("s_sub_u32 s8, s8, 27")
            e(f"s_cmp_ge_u32 s8, {4*NT}")
            e("s_cbranch_scc1 L_fin")
            e("s_bitcmp1_b32 s8, 0")
            e("s_cselect_b32 s60, s30, s28")
            e("s_cselect_b32 s61, s31, s29")
            e(f"s_mov_b32 s62, {576*9216}")
            e("s_mov_b32 s63, 0x20000")
            e(f"s_mul_i32 s10, {sX}, 1152")
            e("s_add_u32 s9, s10, s60")
            e("s_sub_u32 s9, 0x180, s9")
            e("s_and_b32 s9, s9, 0x380")
            e("s_lshr_b32 s8, s8, 1")
            sk = self.lab("pf2")
            e(f"s_cmp_lt_u32 s8, {NT}")
            e(f"s_cbranch_scc1 {sk}")
            e("s_cmp_lg_u32 s9, 0")
            e("s_cbranch_scc1 L_fin")
            e(f"s_sub_u32 s8, s8, {NT}")
            e("s_movk_i32 s9, 1024")
            e.label(sk)
            e("s_sub_u32 s8, 7, s8")
            e("s_mul_i32 s8, s8, 9216")
            e("s_add_u32 s8, s8, s9")
            e("s_add_u32 s8, s8, s10")
            e(f"v_lshrrev_b32 v17, 3, {vL}")
            e(f"v_add_u32 v16, {vL}, v17")
            e(f"v_mul_u32_u24 v16, {8*9216}, v16")
            e(f"buffer_load_dword {vDUM}, v16, {SW2}, s8 offen")

    def role_wd(self):
        e = self.e
        thr = self.thr
        e.label("L_WD")
        e.c("================ WD ================")
        e(f"s_sub_u32 {sR}, {sJ}, 18")
        self.srd(SW1, "s24", "s25", 4096 * 1152)
        self.srd(SW2, "s32", "s33", 4608 * 1152)
        e(f"v_and_b32 v16, 8, {vL}")
        e(f"v_lshlrev_b32 v16, 2, v16")
        e(f"v_lshrrev_b32 v17, 4, {vL}")
        e(f"v_add_u32 v16, v16, v17")
        e(f"v_mul_u32_u24 v16, 1152, v16")
        e(f"v_and_b32 v17, 0x70, {vL16}")
        e(f"v_add_u32 {vWA}, v16, v17")
        e(f"s_lshl_b32 s14, {sX}, 3")
        e(f"s_add_u32 s14, s14, {sW}")
        e(f"s_mul_i32 s15, s14, {72*1152}")
        e(f"s_mul_i32 s14, s14, {64*1152}")
        e(f"s_lshl_b32 s8, {sR}, 7")
        e(f"s_add_u32 s14, s14, s8")
        e(f"s_add_u32 s15, s15, s8")
        wp = self.wd_pre
        S = self.stream(self.it_w(RW1, SW1, "s14", 4 * 1152, 0, wp, thr) + self.it_kv("K", self.k0, 8, thr) + self.it_kv("V", 0, 8, thr)
                        + self.it_w(RW1, SW1, "s14", 4 * 1152, wp, 8, thr))
        self.touch([(self.off_p4, 8)])
        self.attention(S, wp + 8 + self.qpos_wd, thr, 24)
        S.run(24)
        if self.tr:
            self.transpose(RW1, 0)
        self.voff9(1152)
        ne = self.n_early_wd
        self.wloads(RW2, SW2, "s15", 1152, 0, ne, self.thr_w)
        e.c("---- combine: gather P4 ----")
        e(f"s_lshl_b32 s8, {sX}, 5")
        e(f"s_lshr_b32 s9, {sW}, 2")
        e(f"s_lshl_b32 s9, s9, 4")
        e(f"s_add_u32 s8, s8, s9")
        e(f"s_mul_i32 s8, s8, 1152")
        e(f"s_add_u32 s8, s8, {P4}")
        e(f"s_and_b32 s9, {sW}, 3")
        e(f"s_lshl_b32 s9, s9, 8")
        e(f"s_add_u32 s9, s9, s8")
        e(f"v_lshrrev_b32 v16, 4, {vL}")
        e(f"v_mul_u32_u24 v17, {4*1152}, v16")
        e(f"v_and_b32 v18, 0xf0, {vL16}")
        e(f"v_add_u32 v26, v17, v18")
        e(f"v_lshl_add_u32 v17, v16, 2, {vL}")
        e(f"v_and_b32 v17, 15, v17")
        e(f"v_lshlrev_b32 v27, 4, v17")
        e(f"s_lshl_b32 s68, {sX}, 1")
        e(f"s_lshr_b32 s69, {sW}, 2")
        e(f"s_add_u32 s68, s68, s69")
        e(f"s_lshl_b32 s68, s68, 8")
        e(f"s_add_u32 s68, s68, {P4S}")
        e(f"s_mul_i32 s10, {sX}, 2304")
        e(f"s_lshl_b32 s11, {sR}, 8")
        e(f"s_add_u32 s13, s10, s11")
        e(f"s_add_u32 s12, s13, {P5}")
        e(f"s_mov_b32 s64, s8")
        self.acc_addr("T")
        e(f"s_mov_b32 s8, s64")
        e(f"s_bitcmp1_b32 {sW}, 1")
        e("s_cselect_b64 s[10:11], -1, 0")

        l4 = [(f"buffer_load_dwordx4 {v(32+4*m,4)}, v26, {WS}, s9 offen offset:{1152*m} sc1", 32 + 4 * m) for m in range(4)]
        self.mpoll(l4 + [(f"buffer_load_dwordx4 v[48:51], v27, {WS}, s68 offen sc1", 48)], until=4)
        self.stamp(17)
        e("v_cndmask_b32 v28, v48, v50, s[10:11]")
        e("v_cndmask_b32 v29, v49, v51, s[10:11]")
        e(f"v_max_f32_dpp v30, v28, v28 row_ror:8 {DPF}")
        for r in (4, 2, 1):
            e(f"v_max_f32_dpp v30, v30, v30 row_ror:{r} {DPF}")
        e("v_sub_f32 v28, v28, v30")
        e(f"v_mul_f32 v28, {sL2E}, v28")
        e("v_exp_f32 v28, v28")
        e("v_mul_f32 v29, v28, v29")
        for r in (8, 4, 2, 1):
            e(f"v_add_f32_dpp v29, v29, v29 row_ror:{r} {DPF}")
        e("v_rcp_f32 v29, v29")
        e("v_mul_f32 v28, v28, v29")
        self.mpoll(l4, init=False)
        self.stamp(9)
        for m in range(4):
            for r in range(4):
                op = "v_mul_f32_dpp" if m == 0 else "v_fmac_f32_dpp"
                e(f"{op} {v(52+r)}, v28, {v(32+4*m+r)} row_newbcast:{m} {DPF}")
        self.reduce4(52)
        if self.tr:
            self.tcore("v52", None, None, 40)
        else:
            e("v_cvt_pk_bf16_f32 v52, v52, v52")
            self.swz(56, "v52")
            self.core(56, RW1, 8, 40, 32, lgkm=8)
        self.acc_add(40, L_ACC1)
        self.acc_publish(L_ACC1, "s12", False, False)
        self.stamp(10)
        e("s_barrier")
        self.wloads(RW2, SW2, "s15", 1152, ne, 9, self.thr_dn)
        if self.tr:
            self.transpose(RW2, 1)
        e.c("---- gather P7, gelu ----")
        e(f"s_mul_i32 s8, {sX}, 9216")
        e(f"s_mul_i32 s9, {sW}, 576")
        e(f"s_add_u32 s8, s8, s9")
        e(f"s_add_u32 s8, s8, {P7}")
        e(f"s_add_u32 s9, s8, 4608")
        e(f"v_lshlrev_b32 v26, 3, {vL}")
        e(f"v_and_b32 v27, 0x38, {vL}")
        e(f"v_mov_b32 v38, 0x3d372713")
        e(f"s_add_u32 s12, s13, {P8}")

        if not self.pair:
            e(f"s_mul_i32 s8, {sX}, 9216")
            e(f"s_mul_i32 s9, {sW}, 288")
            e(f"s_add_u32 s8, s8, s9")
            e(f"s_add_u32 s8, s8, {P7}")
            e(f"v_lshrrev_b32 v27, 1, v27")

            def issue2():
                e(f"buffer_load_dword v58, {vL4}, {WS}, s8 offen sc1")
                e(f"buffer_load_dword v59, v27, {WS}, s8 offen offset:256 sc1")
                e(f"buffer_load_dword v60, {vL4}, {WS}, s8 offen offset:2304 sc1")
                e(f"buffer_load_dword v61, v27, {WS}, s8 offen offset:2560 sc1")
            self.poll(issue2, [("v58", vTq), ("v59", vTg), ("v60", vTq), ("v61", vTg)], clean=False)
            self.stamp(11)
            for r in range(4):
                e(f"v_and_b32 {v(32+r)}, {sHI}, {v(58+r)}")
        else:
            def issue2():
                e(f"buffer_load_dwordx2 v[64:65], v26, {WS}, s8 offen sc1")
                e(f"buffer_load_dwordx2 v[66:67], v27, {WS}, s8 offen offset:512 sc1")
                e(f"buffer_load_dwordx2 v[68:69], v26, {WS}, s9 offen sc1")
                e(f"buffer_load_dwordx2 v[70:71], v27, {WS}, s9 offen offset:512 sc1")
            self.poll(issue2, [(v(64 + r), vTq if (r >> 1) % 2 == 0 else vTg) for r in range(8)])
            self.stamp(11)
            for r in range(4):
                e(f"v_add_f32 {v(32+r)}, {v(64+2*r)}, {v(65+2*r)}")
        pr = (("v32", "v36"), ("v33", "v37"))
        for a, t in pr:
            e(f"v_mul_f32 {t}, {a}, {a}")
        for a, t in pr:
            e(f"v_fma_f32 {t}, {t}, v38, 1.0")
        for a, t in pr:
            e(f"v_mul_f32 {t}, {t}, {a}")
        for a, t in pr:
            e(f"v_mul_f32 {t}, 0xc0135761, {t}")
        e("v_exp_f32 v36, v36"); e("v_exp_f32 v37, v37")
        e("v_mul_f32 v32, v32, v34"); e("v_mul_f32 v33, v33, v35")
        e("v_add_f32 v36, 1.0, v36"); e("v_add_f32 v37, 1.0, v37")
        e("v_rcp_f32 v36, v36"); e("v_rcp_f32 v37, v37")
        e("v_mul_f32 v32, v32, v36"); e("v_mul_f32 v33, v33, v37")
        if self.tr:
            self.tcore("v32", "v33", RW2 + 32, 40)
        else:
            e("v_cvt_pk_bf16_f32 v47, v32, v32")
            self.swz(48, "v47")
            e("v_cvt_pk_bf16_f32 v56, v33, v33")
            self.core(48, RW2, 9, 40, 32, lgkm=8, order=[8, 0, 1, 2, 3, 4, 5, 6, 7])
        self.acc_add(40, L_ACC2)
        self.acc_publish(L_ACC2, "s12", False, False)
        self.stamp(12)
        e("s_branch L_fin")

    def role_gu(self):
        e = self.e
        thr = self.thr_gu
        e.c("================ GU ================")
        e(f"s_mov_b32 {sR}, {sJ}")
        self.srd(SW2, "s22", "s23", 576 * 8192)
        w1 = self.lab("w1")
        e(f"s_cmp_lg_u32 {sW}, 1")
        e(f"s_cbranch_scc1 {w1}")
        self.srd(SS2, "s16", "s17", 1152)
        e(f"buffer_load_dwordx4 v[32:35], {vL16}, {SS2}, 0 offen")
        e(f"buffer_load_dwordx4 v[36:39], {vL16}, {SS2}, 0 offen offset:1024")
        e(f"v_and_b32 v16, 7, {vL}")
        e(f"v_lshrrev_b32 v17, 4, {vL}")
        e(f"v_lshl_add_u32 v28, v16, 2, v17")
        e(f"v_lshlrev_b32 v16, 1, v28")
        e(f"s_lshl_b32 s8, {sR}, 6")
        e(f"buffer_load_ushort v40, v16, {SS2}, s8 offen")
        e.label(w1)
        n0 = self.lab("n0")
        e(f"s_cmp_lg_u32 {sW}, 0")
        e(f"s_cbranch_scc1 {n0}")
        e(f"s_waitcnt vmcnt({9+self.k0})")
        self.silu2(48)
        self.core(48, RW1, 9, 40, 32, vm_after=self.k0, lgkm=8)
        e(f"s_lshl_b32 s8, {sR}, 3")
        e(f"s_add_u32 s8, s8, {sX}")
        e(f"s_lshl_b32 s8, s8, 9")
        e(f"s_add_u32 s8, s8, {P1}")
        self.bsum(40)
        for k in range(2):
            e(f"v_bfi_b32 {v(42+k)}, {sM10}, 0, {v(40+k)}")
            e(f"v_sub_f32 {v(42+k)}, {v(40+k)}, {v(42+k)}")
        for k, t in enumerate((vTb0, vTb1, vTb0, vTb1)):
            e(f"v_bfi_b32 {v(40+k)}, {sM10}, {t}, {v(40+k)}")
        e(f"s_mov_b64 exec, {mJ8}")
        e(f"buffer_store_dwordx2 v[40:41], {vBO}, {WS}, s8 offen sc1")
        e(f"buffer_store_dwordx2 v[42:43], {vBO}, {WS}, s8 offen offset:256 sc1")
        e("s_mov_b64 exec, -1")
        self.stamp(1)
        e.label(n0)
        self.srd(SS1, "s34", "s35", 1152)
        self.srd(SW1, "s36", "s37", 576 * 6912)
        e(f"s_mul_i32 s12, {sX}, 18")
        e(f"s_add_u32 s12, s12, {sR}")
        e(f"s_and_b32 s13, s12, 3")
        e(f"s_lshr_b32 s12, s12, 2")
        e(f"s_lshl_b32 s8, s13, 3")
        e(f"s_add_u32 s8, s8, {sW}")
        e(f"s_add_u32 s8, s8, 40")
        e(f"s_lshl_b32 s9, s8, 4")
        e(f"v_lshrrev_b32 v16, 3, {vL}")
        e(f"v_lshlrev_b32 v17, 1, v16")
        e(f"buffer_load_ushort v62, v17, {SS1}, s9 offen")
        e(f"s_mul_i32 s8, s8, {8*6912}")
        e(f"s_lshl_b32 s9, s12, 7")
        e(f"s_add_u32 s8, s8, s9")
        e(f"s_add_u32 s8, s8, {18*128}")
        e(f"v_mul_u32_u24 v16, 6912, v16")
        e(f"v_and_b32 v17, 0x70, {vL16}")
        e(f"v_add_u32 v16, v16, v17")
        e(f"buffer_load_dwordx4 {v(RW1,4)}, v16, {SW1}, s8 offen {self.wf}")
        e(f"s_add_u32 s13, s13, 1")
        e(f"s_mul_i32 s13, s13, 9216")
        e(f"s_lshl_b32 s12, s12, 8")
        e(f"s_add_u32 s13, s13, s12")
        e(f"s_add_u32 s13, s13, {P6}")
        self.acc_addr("T")
        e(f"v_lshrrev_b32 v16, 3, {vL}")
        e(f"v_lshlrev_b32 v16, 15, v16")
        e(f"v_and_b32 v17, 0x70, {vL16}")
        e(f"v_add_u32 {vWA}, v16, v17")
        e(f"s_lshl_b32 s14, {sR}, 18")
        e(f"s_lshl_b32 s8, {sX}, 10")
        e(f"s_add_u32 s14, s14, s8")
        e(f"s_lshl_b32 s8, {sW}, 7")
        e(f"s_add_u32 s14, s14, s8")

        def off_p2(d):
            e(f"s_mul_i32 {d}, {sX}, 18")
            e(f"s_add_u32 {d}, {d}, {sR}")
            e(f"s_lshl_b32 {d}, {d}, 11")
            e(f"s_add_u32 {d}, {d}, {P2}")

        def off_p3(d):
            e(f"s_lshl_b32 {d}, {sX}, 4")
            e(f"s_add_u32 {d}, {d}, {sR}")
            e(f"s_lshl_b32 {d}, {d}, 7")
            e(f"s_add_u32 {d}, {d}, {P3}")

        def off_p7(d):
            e(f"s_mul_i32 {d}, {sX}, 18")
            e(f"s_add_u32 {d}, {d}, {sR}")
            e(f"s_lshl_b32 {d}, {d}, 9")
            e(f"s_add_u32 {d}, {d}, {P7}")
        self.touch([(off_p2, 16), (self.off_p4, 8), (off_p7, 4)])
        e(f"s_cmp_eq_u32 {sW}, 1")
        e(f"s_cbranch_scc1 L_GU_w1")
        e(f"s_waitcnt vmcnt({thr})")
        self.wloads(RW2, SW2, "s14", 8192, 0, 3, thr)
        self.wloads(RW2, SW2, "s14", 8192, 3, 4, thr if self.kpre > self.k0 else None)
        e("s_waitcnt vmcnt(4)")
        self.silu1("v62")
        self.core(62, RW1, 1, 56, 52)
        self.bsum(56)
        e(f"s_mov_b64 exec, {mJ8}")
        e(f"ds_write_b32 {vA0}, v56 offset:{L_ACC2}")
        e(f"ds_write_b32 {vA1}, v57 offset:{L_ACC2}")
        e("s_mov_b64 exec, -1")
        if self.force is None:
            nc = self.lab("nc")
            e(f"s_cmp_lg_u32 {sW}, 2")
            e(f"s_cbranch_scc1 {nc}")
            self.census_load(44)
            e.label(nc)
        self.kvloads(RK, vKO, SK, self.k0, self.kpre - 1, thr)
        self.kvloads(RK, vKO, SK, self.kpre - 1, self.kpre)
        if self.force is None:
            e(f"s_cmp_lg_u32 {sW}, 2")
            e(f"s_cbranch_scc1 L_GU_b1")
            e(f"s_waitcnt vmcnt({self.kpre - self.k0})")
            self.census_eval(44, "s10")
            e("v_mov_b32 v44, s10")
            e("v_mov_b32 v45, 0")
            e(f"ds_write_b32 v45, v44 offset:{L_H32+128}")
        e(f"s_branch L_GU_b1")
        e.label("L_GU_w1")
        self.wloads(RW2, SW2, "s14", 8192, 0, 4)
        e(f"s_waitcnt vmcnt(4)")
        e("v_mov_b32 v41, 0x3f803f80")
        e("v_mov_b32 v42, 0")
        e("v_mov_b32 v43, 0")
        for r in range(8):
            e(f"v_dot2_f32_bf16 v42, {v(32+r)}, v41, v42")
        for r in range(8):
            e(f"v_dot2_f32_bf16 v43, {v(32+r)}, {v(32+r)}, v43")
        e("v_permlane32_swap_b32 v42, v43")
        e("v_add_f32 v42, v42, v43")
        e("v_mov_b32 v43, v42")
        e("v_permlane16_swap_b32 v42, v43")
        e("v_add_f32 v42, v42, v43")
        for r in (8, 4, 2, 1):
            e(f"v_add_f32_dpp v42, v42, v42 row_ror:{r} {DPF}")
        e("v_mov_b32 v43, v42")
        e("v_permlane32_swap_b32 v42, v43")
        S1, S2, mb, rinv = "v42", "v43", "v44", "v45"
        e(f"v_mul_f32 {S1}, 0x3ae38e39, {S1}")
        e(f"v_mul_f32 {S2}, 0x3ae38e39, {S2}")
        e(f"v_fma_f32 {S2}, -{S1}, {S1}, {S2}")
        e(f"v_max_f32 {S2}, 0, {S2}")
        e(f"v_cvt_pk_bf16_f32 {rinv}, {S1}, {S2}")
        e(f"v_lshlrev_b32 {mb}, 16, {rinv}")
        e(f"v_and_b32 {S2}, {sHI}, {rinv}")
        e(f"v_add_f32 {S2}, 0x3727c5ac, {S2}")
        self.rb1(S2)
        e(f"v_sqrt_f32 {S2}, {S2}")
        self.rb1(S2)
        e("v_lshlrev_b32 v40, 16, v40")
        e("v_sub_f32 v40, v40, v44")
        self.rb1("v40")
        self.div("v40", "v40", S2, "v45", "v46")
        self.rb1("v40")
        e("v_lshlrev_b32 v28, 2, v28")
        self.silu1("v62")
        self.core(62, RW1, 1, 56, 52)
        self.bsum(56)
        e(f"s_mov_b64 exec, {mJ8}")
        e(f"ds_write_b32 {vA0}, v56 offset:{L_ACC2}")
        e(f"ds_write_b32 {vA1}, v57 offset:{L_ACC2}")
        e("s_mov_b64 exec, -1")
        e(f"v_lshrrev_b32 v16, 3, {vL}")
        e(f"v_lshlrev_b32 v16, 9, v16")
        e(f"v_and_b32 v17, 0x70, {vL16}")
        e(f"v_add_u32 v26, v16, v17")
        e(f"s_lshr_b32 s8, {sR}, 1")
        e(f"s_lshl_b32 s8, s8, 12")
        e(f"s_and_b32 s9, {sR}, 1")
        e(f"s_lshl_b32 s9, s9, 7")
        e(f"s_add_u32 s8, s8, s9")
        e(f"s_add_u32 s8, s8, {P1}")
        e(f"s_add_u32 s9, s8, {9*4096}")
        cen = self.force is None
        p1k = self.kpre if self.p1k is None else self.p1k
        self.kvloads(RK, vKO, SK, self.k0, p1k, thr)

        def issue():
            e(f"buffer_load_dwordx4 v[32:35], v26, {WS}, s8 offen sc1")
            e(f"buffer_load_dwordx4 v[36:39], v26, {WS}, s9 offen sc1")
            e(f"buffer_load_dwordx4 v[44:47], v26, {WS}, s8 offen offset:256 sc1")
            e(f"buffer_load_dwordx4 v[48:51], v26, {WS}, s9 offen offset:256 sc1")
        self.stamp(17)
        c1 = self.g4(32) + self.g4(36) + self.g4(44) + self.g4(48)
        if p1k < self.kpre:
            issue()
            self.kvloads(RK, vKO, SK, p1k, self.kpre)
            e(f"s_waitcnt vmcnt({self.kpre - p1k})")
            self.tagcheck(c1, "v21")
            e("v_cmp_ne_u32 vcc, 0, v21")
            ok1 = self.lab("p1ok")
            e(f"s_cbranch_vccz {ok1}")
            self.stamp(18)
            self.poll(issue, c1)
            e.label(ok1)
        else:
            self.poll(issue, c1)
        self.stamp(2)
        for k in range(4):
            e(f"v_pk_add_f32 {v(32+2*k,2)}, {v(32+2*k,2)}, {v(44+2*k,2)}")
        if self.stamps:
            e(f"v_writelane_b32 {vST}, {sSP}, 40")
        self.reduce4(32)
        self.reduce4(36)
        e(f"v_add_f32_dpp v32, v32, v32 row_ror:8 {DPF}")
        e(f"v_add_f32_dpp v36, v36, v36 row_ror:8 {DPF}")
        self.rb2("v32", "v36", "v33")
        e("v_add_f32 v36, 1.0, v36")
        self.rb1("v36")
        e("v_mul_f32 v36, v36, v40")
        self.rb1("v36")
        e("v_add_f32 v36, v36, v32")
        e("v_cvt_pk_bf16_f32 v36, v36, v36")
        e(f"ds_write_b32 v28, v36 offset:{L_H32}")
        e.label("L_GU_b1")
        e(f"v_lshrrev_b32 v25, 3, {vL}")
        e(f"v_lshlrev_b32 v26, 4, v25")
        e("v_mov_b32 v27, 0")
        e(f"v_and_b32 v16, 7, {vL}")
        e(f"v_and_b32 v17, 0x30, {vL}")
        e(f"v_lshrrev_b32 v17, 1, v17")
        e(f"v_add_lshl_u32 v24, v16, v17, 3")
        off_p2("s9")
        e(f"s_lshl_b32 s10, {sW}, 8")
        e(f"s_add_u32 s9, s9, s10")
        e("s_waitcnt lgkmcnt(0)")
        e("s_barrier")
        e(f"ds_read_b128 v[48:51], v26 offset:{L_H32}")
        if cen:
            e(f"ds_read_b32 v52, v27 offset:{L_H32+128}")
        e("s_waitcnt lgkmcnt(0)")
        if cen:
            e(f"v_readfirstlane_b32 {sLOC}, v52")
        e(f"s_waitcnt vmcnt({self.kpre - self.k0})")
        self.core(48, RW2, 4, 40, 32)
        self.bsum_store(40, "s9", True, lin="v24")
        self.stamp(3)
        self.acc_publish(L_ACC2, "s13", False, False)
        e.label("L_GU_b2")
        if not self.resume:
            e("s_barrier")

        t2 = self.thr_gu2
        S = Stream(e, self.it_kv("K", self.kpre, 8, t2) + self.it_kv("V", 0, 8, t2)
                   + self.it_w(RW2, SW2, "s14", 9216, 0, self.n_early_gu, t2)
                   + self.it_w(RW2, SW2, "s14", 9216, self.n_early_gu, 9, self.thr_post))
        nk = 8 - self.kpre
        if self.resume:
            S.log = [(f"k{t}", True) for t in range(self.kpre - self.k0)] + [("p2", False)]
        S.run(min(nk, (1 if self.resume else t2 + 1)))
        self.acc_addr("N")
        e(f"s_add_u32 s15, {sR}, 2")
        e(f"s_cmp_ge_u32 s15, 18")
        e(f"s_cselect_b32 s8, 18, 0")
        e(f"s_sub_u32 s15, s15, s8")
        e(f"s_cmp_ge_u32 {sW}, {4 if self.pair else 99}")
        e(f"s_cselect_b32 s9, s15, {sR}")
        e(f"s_cmp_ge_u32 s9, 9")
        e("s_cselect_b32 s60, s30, s28")
        e("s_cselect_b32 s61, s31, s29")
        e("s_cselect_b32 s8, 9, 0")
        e(f"s_mov_b32 s62, {576*9216}")
        e(f"s_sub_u32 s8, s9, s8")
        e(f"s_lshl_b32 s8, s8, 7")
        e(f"s_mul_i32 s14, {sX}, 1152")
        e(f"s_add_u32 s14, s14, s8")
        e(f"s_mul_i32 s8, {sW}, {72*9216}")
        e(f"s_add_u32 s14, s14, s8")
        self.voff9(9216)
        self.attention(S, nk + self.qpos_gu, t2, nk + 8 + self.n_early_gu)
        if self.gate_n:
            e.c("hold the FFN weight stream until most attention partials of this slot are out")
            gd, gt = self.lab("gd"), self.lab("gt")
            e(f"s_cmp_lg_u32 {sW}, 0")
            e(f"s_cbranch_scc1 {gd}")
            e(f"s_mul_i32 s8, {sX}, {32*1152}")
            e(f"s_add_u32 s8, s8, {P4}")
            e(f"v_mul_u32_u24 v26, 1152, {vL}")
            e(f"s_mov_b32 {sSP}, 0")
            e("s_mov_b32 exec_hi, 0")
            e.label(gt)
            e(f"s_add_u32 {sSP}, {sSP}, 1")
            e(f"s_cmp_gt_u32 {sSP}, {SPIN}")
            e("s_cbranch_scc1 L_end")
            e(f"buffer_load_dword v32, v26, {WS}, s8 offen offset:1024 sc1")
            e("s_waitcnt vmcnt(0)")
            e(f"v_and_b32 v32, {sM10}, v32")
            e(f"v_cmp_eq_u32 vcc, v32, {v(TG[0])}")
            e("s_bcnt1_i32_b64 s9, vcc")
            e(f"s_cmp_lt_u32 s9, {self.gate_n}")
            e(f"s_cbranch_scc1 {gt}")
            e("s_mov_b64 exec, -1")
            e.label(gd)
        e("s_barrier")
        S.run(99)
        e.c("---- gather u = x1*(1+cb), stats, finish the LayerNorm ----")
        e(f"s_mul_i32 s8, {sX}, 2304")
        e(f"s_mul_i32 s9, {sW}, 288")
        e(f"s_add_u32 s8, s8, s9")
        e(f"s_add_u32 s8, s8, {P9}")
        e(f"s_mul_i32 s10, {sX}, {3*2304}")
        e(f"s_add_u32 s10, s10, {P11}")
        e(f"s_add_u32 s11, s10, 4608")
        e(f"s_add_u32 s10, s10, s9")
        e(f"v_lshrrev_b32 v16, 3, {vL}")
        e(f"v_lshlrev_b32 v27, 2, v16")
        e(f"v_and_b32 v16, 15, {vL}")
        e(f"v_min_u32 v17, 8, v16")
        e(f"v_lshlrev_b32 v26, {4 if self.cstat else 7}, v17")
        e(f"v_cmp_gt_u32 vcc, 9, v16")
        e(f"v_mov_b32 v16, 0x3ae38e39")
        e(f"v_cndmask_b32 v28, 0, v16, vcc")
        off_p7("s12")
        e(f"s_sub_u32 s13, s15, {sR}")
        e(f"s_lshl_b32 s13, s13, 9")
        e(f"s_add_u32 s13, s13, s12")
        e(f"s_add_u32 s13, s13, 4")
        e(f"s_cmp_eq_u32 {sW}, 1")
        e(f"s_cselect_b32 s12, s13, s12")
        e(f"s_cselect_b32 s13, {4*ACCS}, 0")
        e(f"v_add_u32 v25, s13, {vAR}")
        e(f"v_lshlrev_b32 v24, 3, {vL}")

        def issue11():
            e(f"buffer_load_dword v58, {vL4}, {WS}, s10 offen sc1")
            e(f"buffer_load_dword v59, v27, {WS}, s10 offen offset:256 sc1")
            e(f"buffer_load_dword v60, {vL4}, {WS}, s10 offen offset:2304 sc1")
            e(f"buffer_load_dword v61, v27, {WS}, s10 offen offset:2560 sc1")

        def issue9():
            e(f"buffer_load_dwordx4 v[44:47], v26, {WS}, s11 offen sc1")
            e(f"buffer_load_dword v62, {vL4}, {WS}, s8 offen sc1")
            e(f"buffer_load_dword v63, v27, {WS}, s8 offen offset:256 sc1")
        c11 = [("v58", vTq), ("v59", vTg), ("v60", vTq), ("v61", vTg)]
        c9 = self.g4(44) + [("v62", vTq), ("v63", vTg)]
        if self.tr:
            self.transpose(RW2, 1)
        self.poll(issue11, c11)
        self.poll(issue9, c9)
        self.stamp(10)
        e("v_add_f32 v44, v44, v45")
        e("v_add_f32 v46, v46, v47")
        e("v_mul_f32 v44, v44, v28")
        e("v_mul_f32 v46, v46, v28")
        for r in (8, 4, 2, 1):
            e(f"v_add_f32_dpp v44, v44, v44 row_ror:{r} {DPF}")
            e(f"v_add_f32_dpp v46, v46, v46 row_ror:{r} {DPF}")
        e("v_fma_f32 v46, -v44, v44, v46")
        e("v_fma_f32 v62, -v44, v58, v62")
        e("v_max_f32 v46, 0, v46")
        e("v_fma_f32 v63, -v44, v59, v63")
        e("v_add_f32 v46, 0x3727c5ac, v46")
        e("v_rsq_f32 v46, v46")
        e("v_fma_f32 v62, v62, v46, v60")
        e("v_fma_f32 v63, v63, v46, v61")
        if self.tr:
            self.tcore("v62", "v63", RW2 + 32, 40)
        else:
            e("v_cvt_pk_bf16_f32 v47, v62, v62")
            self.swz(48, "v47")
            e("v_cvt_pk_bf16_f32 v56, v63, v63")
            self.core(48, RW2, 9, 40, 32, lgkm=8, order=[8, 0, 1, 2, 3, 4, 5, 6, 7])
        self.acc_add(40, L_ACC1)
        if not self.pair:
            e(f"s_mul_i32 s12, {sX}, 36")
            e(f"s_add_u32 s12, s12, {sR}")
            e(f"s_lshl_b32 s12, s12, 8")
            e(f"s_add_u32 s12, s12, {P7}")
            self.acc_publish(L_ACC1, "s12", True, True)
            self.stamp(11)
            e("s_branch L_fin")
            return
        e(f"s_cmp_gt_u32 {sW}, 1")
        e(f"s_cbranch_scc1 L_fin")
        e(f"ds_read_b128 v[16:19], v25 offset:{L_ACC1}")
        e("s_waitcnt lgkmcnt(0)")
        self.reduce4(16)
        e(f"v_bfi_b32 v16, {sM10}, {vTq}, v16")
        self.lstore(f"buffer_store_dword v16, v24, {WS}, s12 offen")
        self.stamp(11)
        e("s_branch L_fin")


HEADER = """; Design (one persistent launch, 256 workgroups x 8 waves, one workgroup per CU; generated by own script):
"""


def generate(fn, **kw):
    g = Gen(**kw)
    e = g.build()
    body = e.text()
    nv = max(e.maxv + 1, 136)
    txt = wrap(body, 256, 512, lds=LDS_BYTES, vgpr=nv, sgpr=max(e.maxs + 1, 96), header_extra=HEADER)
    txt = txt.replace("\ns_endpgm\n", "\n    s_endpgm\nL_code_end:\n")
    open(fn, "w").write(txt)
    return e


if __name__ == "__main__":
    import itertools
    names = []
    for spec in sys.argv[1:]:
        nm, _, kv = spec.partition(":")
        kw = {}
        for p in kv.split(","):
            if p:
                k, _, val = p.partition("=")
                kw[k] = eval(val)
        e = generate(nm, **kw)
        names.append(nm)
    print(" ".join(names))
```
